```python
import torch

def _softmax(x, axis=-1):
    return torch.softmax(x, dim=axis)
def _gelu(x):
    return torch.nn.functional.gelu(x, approximate="tanh")
def _silu(x):
    return torch.nn.functional.silu(x)
def _sigmoid(x):
    return torch.sigmoid(x)
def _layernorm(x, axis=-1, eps=1e-5):
    m = x.mean(dim=axis, keepdim=True)
    v = x.var(dim=axis, keepdim=True, unbiased=False)
    return (x - m) / torch.sqrt(v + eps)
def _scatter_add(tgt, idx, src, axis=0):
    return tgt.clone().index_add_(axis, idx, src)
def _segment_sum(src, seg, n):
    out = torch.zeros((n,) + src.shape[1:], dtype=src.dtype)
    return out.index_add_(0, seg, src)
def _pad(x, pw):
    flat = tuple(v for pair in reversed(pw) for v in pair)
    return torch.nn.functional.pad(x, flat)

kernel_name = 'sequential_preLN__linear_attn_block__glu_gated_reglu__prompt'

def setup_inputs():

    _w = (lambda a: (lambda t: t.to(torch.bfloat16) if t.is_floating_point() else t)(torch.as_tensor(a)))
    def _A_setup():
        B, S, D = 1, 2048, 640
        return {
            "x": _w((lambda *s: torch.randn(*s, dtype=torch.bfloat16) * 0.05)(B, S, D)),
            "wqkv": _w((lambda *s: torch.randn(*s, dtype=torch.bfloat16) * 0.05)(D, 3 * D)),
            "wo": _w((lambda *s: torch.randn(*s, dtype=torch.bfloat16) * 0.05)(D, D)),
        }
    _A_in = _A_setup()

    def _B_setup():
        B, S, D, F = 1, 2048, 640, 1728
        return {
            "x": _w((lambda *s: torch.randn(*s, dtype=torch.bfloat16) * 0.05)(B, S, D)),
            "W_gate": _w((lambda *s: torch.randn(*s, dtype=torch.bfloat16) * 0.2)(D, F) * (2.0 / D) ** 0.5),
            "W_up": _w((lambda *s: torch.randn(*s, dtype=torch.bfloat16) * 0.2)(D, F) * (2.0 / D) ** 0.5),
            "W_down": _w((lambda *s: torch.randn(*s, dtype=torch.bfloat16) * 0.2)(F, D) * (1.0 / F) ** 0.5),
        }
    _B_in = _B_setup()

    return {
        "A_x": _A_in["x"],
        "A_wqkv": _A_in["wqkv"],
        "A_wo": _A_in["wo"],
        "B_x": _B_in["x"],
        "B_W_gate": _B_in["W_gate"],
        "B_W_up": _B_in["W_up"],
        "B_W_down": _B_in["W_down"],
    }

def reference(A_x, A_wqkv, A_wo, B_x, B_W_gate, B_W_up, B_W_down):
    def _A_ref(x, wqkv, wo):
        B, S, D = x.shape
        H = 32; Dh = D // H
        qkv = (lambda x, *d: x.permute(*d))((x @ wqkv).reshape(B, S, 3, H, Dh), 2, 0, 3, 1, 4)
        q, k, v = qkv[0], qkv[1], qkv[2]
        phi = lambda t: torch.where(t > 0, t + 1, torch.exp(t)) + 1e-6
        pq, pk = phi(q), phi(k)
        kv = torch.einsum("bhsd,bhse->bhde", pk, v)
        z = torch.einsum("bhsd->bhd", pk)
        num = torch.einsum("bhqd,bhde->bhqe", pq, kv)
        den = torch.einsum("bhqd,bhd->bhq", pq, z)[..., None] + 1e-6
        o = num / den
        return (lambda x, *d: x.permute(*d))(o, 0, 2, 1, 3).reshape(B, S, D) @ wo

    def _B_ref(x, W_gate, W_up, W_down):
        gate = torch.einsum("bsd,df->bsf", x, W_gate)
        up = torch.einsum("bsd,df->bsf", x, W_up)
        gate = gate * (lambda x, dt: x.to(dt))(gate > 0, gate.dtype)
        h = gate * up
        return torch.einsum("bsf,fd->bsd", h, W_down)

    x = A_x
    h = x + _A_ref(_layernorm(x, axis=-1), A_wqkv, A_wo)
    h2 = h + _B_ref(_layernorm(h, axis=-1), B_W_gate, B_W_up, B_W_down)
    return h2
```

```python
import re

def v(i, n=1):
    return f"v{i}" if n == 1 else f"v[{i}:{i+n-1}]"
def a(i, n=1):
    return f"a{i}" if n == 1 else f"a[{i}:{i+n-1}]"
def s(i, n=1):
    return f"s{i}" if n == 1 else f"s[{i}:{i+n-1}]"

_REG = re.compile(r'^(-|abs\()?([vas])(\d+|\[(\d+):(\d+)\])\)?$')

def regs_of(op):
    op = op.strip()
    if op in ('vcc', 'vcc_lo', 'vcc_hi'):
        return {('s', 'vcc')}
    if op == 'exec':
        return {('s', 'exec')}
    if op == 'm0':
        return {('s', 'm0')}
    m = _REG.match(op)
    if not m:
        return set()
    kind = m.group(2)
    if m.group(4) is not None:
        return {(kind, i) for i in range(int(m.group(4)), int(m.group(5)) + 1)}
    return {(kind, int(m.group(3)))}

TRANS = ('v_exp_f32', 'v_log_f32', 'v_rcp_f32', 'v_rsq_f32', 'v_sqrt_f32', 'v_sin_f32', 'v_cos_f32', 'v_rcp_iflag_f32')

class Ins:
    __slots__ = ('text', 'mn', 'ops', 'reads', 'writes', 'kind', 'passes', 'states', 'mods', 'srcC', 'srcAB')
    def __init__(self, text):
        self.text = text
        t = text.split(';')[0].strip()
        self.kind = 'other'
        self.reads = set(); self.writes = set(); self.passes = 0; self.states = 1
        self.srcC = set(); self.srcAB = set()
        if not t or t.endswith(':') or t.startswith('.'):
            self.kind = 'label' if t.endswith(':') else 'meta'
            self.mn = t; self.ops = []; self.states = 0; self.mods = ''
            return
        parts = t.split(None, 1)
        self.mn = mn = parts[0]
        rest = parts[1] if len(parts) > 1 else ''
        toks = []; depth = 0; cur = ''
        for ch in rest:
            if ch in '[(': depth += 1
            if ch in '])': depth -= 1
            if ch == ',' and depth == 0:
                toks.append(cur.strip()); cur = ''
            else:
                cur += ch
        if cur.strip(): toks.append(cur.strip())
        mods = ''
        if toks:
            last = toks[-1].split()
            toks[-1] = last[0]
            mods = ' '.join(last[1:])
        self.ops = toks; self.mods = mods
        R = lambda ops: set().union(*[regs_of(o) for o in ops]) if ops else set()
        if mn.startswith('v_mfma'):
            self.kind = 'mfma'
            self.passes = 8 if '32x32' in mn else 4
            self.writes = regs_of(toks[0]); self.srcAB = R(toks[1:3]); self.srcC = regs_of(toks[3])
            self.reads = self.srcAB | self.srcC
        elif mn.startswith('v_'):
            self.kind = 'valu'
            base = mn.replace('_e32', '').replace('_e64', '').replace('_dpp', '').replace('_sdwa', '')
            if base.startswith('v_cmp'):
                self.writes = regs_of(toks[0]); self.reads = R(toks[1:])
                if base.startswith('v_cmpx'): self.writes |= {('s', 'exec')}
            elif base.startswith('v_permlane') and 'swap' in base:
                self.writes = R(toks[:2]); self.reads = R(toks[:2]); self.kind = 'permlane'
            elif base in ('v_add_co_u32', 'v_sub_co_u32', 'v_addc_co_u32', 'v_subb_co_u32', 'v_div_scale_f32', 'v_mad_u64_u32'):
                self.writes = R(toks[:2]); self.reads = R(toks[2:])
            else:
                self.writes = regs_of(toks[0]); self.reads = R(toks[1:])
                if base in ('v_fmac_f32', 'v_dot2c_f32_bf16', 'v_pk_fmac_f16', 'v_writelane_b32'):
                    self.reads |= regs_of(toks[0])
                if base == 'v_cndmask_b32' and len(toks) == 3:
                    self.reads |= {('s', 'vcc')}
                if base in TRANS: self.kind = 'trans'
                if base in ('v_readfirstlane_b32', 'v_readlane_b32'): self.kind = 'readlane'
                if 'row_' in mods or 'quad_perm' in mods or 'wave_' in mods or mn.endswith('_dpp'):
                    self.kind = 'dpp'
        elif mn.startswith('ds_'):
            self.kind = 'ds'
            if mn.startswith('ds_read') or mn.startswith('ds_bpermute') or mn.startswith('ds_swizzle') or mn.startswith('ds_permute'):
                self.writes = regs_of(toks[0]); self.reads = R(toks[1:])
            else:
                self.reads = R(toks)
        elif mn.startswith('buffer_') or mn.startswith('global_'):
            self.kind = 'vmem'
            if mn in ('buffer_wbl2', 'buffer_inv'):
                pass
            elif 'lds' in mods.split() or 'load_lds' in mn:
                self.reads = R(toks) | {('s', 'm0')}; self.kind = 'ldsdma'
            elif '_load' in mn:
                self.writes = regs_of(toks[0]); self.reads = R(toks[1:])
            elif 'atomic' in mn:
                self.reads = R(toks)
                if 'sc0' in mods.split(): self.writes = regs_of(toks[0]) if mn.startswith('buffer') else regs_of(toks[0])
            else:
                self.reads = R(toks); self.kind = 'vstore'
                if mn.startswith('global_'):
                    self.srcC = regs_of(toks[1])
                else:
                    self.srcC = regs_of(toks[0])
                if not (mn.endswith('x4') or mn.endswith('x3')): self.srcC = set()
        elif mn == 's_nop':
            self.kind = 'nop'; self.states = int(toks[0], 0) + 1
        elif mn.startswith('s_'):
            self.kind = 'salu'
            if mn.startswith('s_cbranch') or mn == 's_branch':
                self.kind = 'branch'
            elif mn in ('s_waitcnt', 's_barrier', 's_endpgm', 's_sleep', 's_setprio'):
                pass
            elif mn.startswith('s_cmp') or mn.startswith('s_bitcmp'):
                self.reads = R(toks)
            elif mn.startswith('s_load') or mn in ('s_memtime', 's_memrealtime'):
                self.writes = regs_of(toks[0]); self.reads = R(toks[1:]); self.kind = 'smem'
            else:
                self.writes = regs_of(toks[0]); self.reads = R(toks[1:])
                if 'saveexec' in mn: self.writes |= {('s', 'exec')}

WINDOW = 24

def need(prod, cons):
    n = 0
    pw = prod.writes
    valu_like = ('valu', 'trans', 'readlane', 'dpp', 'permlane')
    if prod.kind in valu_like:
        vw = {r for r in pw if r[0] in 'va'}
        sw = {r for r in pw if r[0] == 's'}
        if cons.kind == 'mfma' and vw & cons.reads: n = max(n, 2)
        if cons.kind == 'mfma' and ('s', 'exec') in sw: n = max(n, 4)
        if cons.kind == 'readlane' and vw & cons.reads: n = max(n, 1)
        if cons.kind == 'dpp' and vw & cons.reads: n = max(n, 2)
        if cons.kind == 'dpp' and ('s', 'exec') in sw: n = max(n, 5)
        if cons.kind == 'permlane' and vw & cons.reads: n = max(n, 2)
        if cons.kind in ('vmem', 'vstore', 'ldsdma') and sw & cons.reads: n = max(n, 5)
        if cons.kind in valu_like and sw & cons.reads:
            n = max(n, 4 if cons.kind == 'readlane' and len(cons.ops) > 2 and regs_of(cons.ops[2]) & sw else 2)
        if cons.kind in ('salu', 'branch') and (sw & cons.reads or (('s', 'vcc') in sw and 'vcc' in cons.mn)
                                                 or (('s', 'exec') in sw and 'exec' in cons.mn)): n = max(n, 5)
        if prod.kind == 'trans' and cons.kind in valu_like + ('mfma', 'ds', 'vmem', 'vstore') and vw & cons.reads: n = max(n, 1)
    if prod.kind == 'mfma':
        big = {4: 8, 8: 12}[prod.passes]
        if cons.kind == 'mfma':
            if pw & cons.srcAB: n = max(n, big)
            if pw & cons.srcC and not (pw == cons.srcC and prod.passes == cons.passes):
                n = max(n, {4: 6, 8: 10}[prod.passes])
            if pw & cons.writes and not (pw == cons.writes): n = max(n, big)
        else:
            if pw & (cons.reads | cons.writes): n = max(n, big)
        if cons.kind in valu_like and prod.srcC & cons.writes: n = max(n, {4: 3, 8: 7}[prod.passes])
    if prod.kind == 'vstore' and prod.srcC:
        if prod.srcC & cons.writes: n = max(n, 2)
    if prod.kind == 'salu' and ('s', 'm0') in pw and cons.kind == 'ldsdma': n = max(n, 1)
    return n

class Asm:
    def __init__(self):
        self.L = []
        self.uid = 0
    def __call__(self, text):
        for line in text.split('\n'):
            line = line.strip()
            if line: self.L.append(line)
    def label(self, name): self.L.append(name + ':')
    def newlabel(self, stem):
        self.uid += 1
        return f"L_{stem}_{self.uid}"
    def comment(self, t): self.L.append('; ' + t)

    def fix_hazards(self):
        items = [(t, Ins(t) if not t.startswith(';') else None) for t in self.L]
        inserted = 0
        def mklabels():
            return {i.mn[:-1]: k for k, (t, i) in enumerate(items) if i is not None and i.kind == 'label'}
        labels = mklabels()
        def succ_path(start):
            out = []; k = start; tot = 0
            while k < len(items) and tot < WINDOW:
                i = items[k][1]
                if i is not None and i.kind not in ('label', 'meta'):
                    out.append(k); tot += i.states
                    if i.mn in ('s_branch', 's_endpgm', 's_setpc_b64'): break
                k += 1
            return out
        def check(p, path):
            dist = 0
            for ck in path:
                c = items[ck][1]
                n = need(p, c)
                if n > dist:
                    return ck, n - dist
                dist += c.states
                if dist >= WINDOW: break
            return None
        k = 0
        while k < len(items):
            p = items[k][1]
            if p is None or p.kind in ('label', 'meta', 'nop', 'branch') or not (p.writes or p.srcC):
                k += 1; continue
            base = succ_path(k + 1)
            paths = [base]
            for idx, bk in enumerate(base):
                b = items[bk][1]
                if b.kind == 'branch' and b.ops[0] in labels:
                    paths.append(base[:idx + 1] + succ_path(labels[b.ops[0]]))
            hit = None
            for path in paths:
                hit = check(p, path)
                if hit: break
            if hit:
                ck, cnt = hit
                while cnt > 0:
                    c = min(cnt, 16)
                    t = f"s_nop {c-1}"
                    items.insert(ck, (t, Ins(t))); inserted += 1; cnt -= c
                    if ck <= k: k += 1
                labels = mklabels()
                continue
            k += 1
        self.L = [t for t, _ in items]
        return inserted

    def text(self):
        out = []
        for t in self.L:
            out.append(t if (t.endswith(':') or t.startswith('.') or t.startswith(';')) else '    ' + t)
        return '\n'.join(out) + '\n'

def interleave(main, fill, per=None, start=0):
    out = []; n = len(main); f = list(fill); k = 0
    for i, m in enumerate(main):
        out.append(m)
        if i < start: continue
        if per is None:
            want = ((i - start + 1) * len(f) + (n - start) - 1) // (n - start)
        else:
            want = min(len(f), (i - start + 1) * per)
        while k < want:
            out.append(f[k]); k += 1
    out.extend(f[k:])
    return out
```

```python
import sys
from asmlib import *

NAME = 'sequential_preLN__linear_attn_block__glu_gated_reglu__prompt'
KNAME = NAME + '_kernel'

WS_CNT, WS_CNT_SZ = 0x0, 0x4000
WS_KVF, WS_KVF_SZ = 0x10000, 8 * 16384
WS_HST, WS_HST_SZ = 0x40000, 128 * 20 * 128
WS_PART, WS_PART_SZ = 0x100000, 8 * 32 * 18 * 1024
WS_O, WS_O_SZ = 0x600000, 128 * 20 * 1024
WS_H, WS_H_SZ = 0x900000, 128 * 20 * 1024
WS_HH, WS_HH_SZ = 0xC00000, 128 * 54 * 1024
WS_DBG, WS_DBG_SZ = 0x1400000, 0x1000000
C_A, C_B, C_O, C_H, C_HH = 0, 8, 16, 48, 72
NZERO = 16

JOBS = [(0,0),(0,1),(1,0),(1,1),(1,2),(2,1),(2,2),(2,3),(3,2),(3,3),(3,4),(4,3),(4,4)] + [(i,5) for i in range(5)]

SRD_X, SRD_W, SRD_W2, SRD_A, SRD_B, SRD_CNT, SRD_T, SRD_DBG = 4, 8, 12, 16, 20, 24, 28, 32
P_X, P_WQKV, P_WO, P_WG, P_WU, P_WD, P_OUT, P_DBG, P_WS = 40, 42, 44, 48, 50, 52, 54, 56, 58
sW, sR, sG, sRHO, sXCD, sJ = 60, 61, 62, 63, 64, 65
sT0, sT1, sT2, sT3, sT4, sT5 = 66, 67, 68, 69, 70, 71
sWA, sWB, sK, sLD = 72, 73, 74, 75
sROT = 76
sMASK = 82
sSAVE = 90
sC = 92
sC3, sR3, sV3, sR4, sS4, sV4, sTT, sXO = 94, 95, 96, 97, 98, 99, 100, 101
VSLAB, VSLAB4, VXR = 8, 9, 15
VTR3, VTR4 = 244, 248
AHRES = 240

LDS_BYTES = 163840
STAGE = 20480
def slot_of(sig): return (sig + 4) % 8
FR = 3 * STAGE
CS = FR + 22528
ST = CS + 1024
RED = ST + 1024
RED2 = 65536
RED3 = 65536
HRES = 148

class G:
    def __init__(self, stop=None, dbg=False):
        self.A = Asm(); self.stop = stop; self.dbg = dbg

    def srd(self, dst, ptr, off, size):
        A = self.A
        if off:
            A(f"s_add_u32 {s(dst)}, {s(ptr)}, {off}")
            A(f"s_addc_u32 {s(dst+1)}, {s(ptr+1)}, 0")
        else:
            A(f"s_mov_b32 {s(dst)}, {s(ptr)}")
            A(f"s_mov_b32 {s(dst+1)}, {s(ptr+1)}")
        A(f"s_mov_b32 {s(dst+2)}, {size}")
        A(f"s_mov_b32 {s(dst+3)}, 0x20000")

    def prologue(self):
        A = self.A
        A("s_cmp_ge_u32 s2, 256")
        A("s_cbranch_scc1 L_end")
        A("s_load_dwordx16 s[40:55], s[0:1], 0")
        A("s_load_dwordx4 s[56:59], s[0:1], 64")
        A("v_and_b32 v1, 63, v0")
        A("v_lshrrev_b32 v2, 6, v0")
        A(f"s_and_b32 {s(sXCD)}, s2, 7")
        A(f"v_readfirstlane_b32 {s(sW)}, v2")
        A(f"s_lshr_b32 {s(sJ)}, s2, 3")
        A(f"s_and_b32 {s(sRHO)}, {s(sJ)}, 7")
        A(f"s_lshr_b32 {s(sT0)}, {s(sXCD)}, 1")
        A(f"s_lshl_b32 {s(sT0)}, {s(sT0)}, 3")
        A(f"s_add_u32 {s(sR)}, {s(sT0)}, {s(sRHO)}")
        A(f"s_and_b32 {s(sT0)}, {s(sXCD)}, 1")
        A(f"s_lshl_b32 {s(sT0)}, {s(sT0)}, 2")
        A(f"s_lshr_b32 {s(sT1)}, {s(sJ)}, 3")
        A(f"s_add_u32 {s(sG)}, {s(sT0)}, {s(sT1)}")
        A("s_waitcnt lgkmcnt(0)")
        self.srd(SRD_X, P_X, 0, 2048 * 1280)
        self.srd(SRD_W, P_WQKV, 0, 640 * 3840)
        self.srd(SRD_CNT, P_WS, WS_CNT, WS_CNT_SZ)
        self.srd(SRD_DBG, P_DBG, 0, 256)
        self.srd(SRD_T, P_WS, WS_DBG, WS_DBG_SZ)

    def zero_counters(self):
        A = self.A
        L = A.newlabel('nz')
        A(f"s_cmp_ge_u32 s2, {NZERO}")
        A(f"s_cbranch_scc1 {L}")
        A(f"s_cmp_lg_u32 {s(sW)}, 0")
        A(f"s_cbranch_scc1 {L}")
        A("v_lshlrev_b32 v2, 4, v1")
        A(f"s_lshl_b32 {s(sT0)}, s2, 10")
        for i in range(4): A(f"v_mov_b32 v{4+i}, 0")
        A(f"buffer_store_dwordx4 v[4:7], v2, {s(SRD_CNT,4)}, {s(sT0)} offen sc1")
        A("s_waitcnt vmcnt(0)")
        A("v_mov_b32 v4, 1")
        A("s_mov_b64 exec, 1")
        A(f"buffer_atomic_add v4, v2, {s(SRD_DBG,4)}, 0 offen sc1")
        A("s_mov_b64 exec, -1")
        A.label(L)

    def poll(self, srd, voff_setup, nlanes, target, tmp):
        A = self.A
        Lskip, Lp, Lgot = A.newlabel('pskip'), A.newlabel('poll'), A.newlabel('got')
        A(f"s_cmp_lg_u32 {s(sW)}, 0")
        A(f"s_cbranch_scc1 {Lskip}")
        voff_setup()
        A(f"s_mov_b64 exec, {(1 << nlanes) - 1}")
        A(f"s_mov_b32 {s(sT5)}, 0")
        A.label(Lp)
        A(f"buffer_load_dword v{tmp+1}, v{tmp}, {s(srd,4)}, 0 offen sc1")
        A(f"s_add_u32 {s(sT5)}, {s(sT5)}, 1")
        A("s_waitcnt vmcnt(0)")
        A(f"v_cmp_gt_u32 vcc, {target}, v{tmp+1}" if not isinstance(target, str) else f"v_cmp_gt_u32 vcc, {target}, v{tmp+1}")
        A(f"s_cbranch_vccz {Lgot}")
        A(f"s_cmp_lt_u32 {s(sT5)}, 0x40000")
        A(f"s_cbranch_scc1 {Lp}")
        A.label(Lgot)
        A("s_mov_b64 exec, -1")
        A.label(Lskip)
        A("s_barrier")

    def signal(self, cidx_sgpr, tmp):
        A = self.A
        L = A.newlabel('sig')
        A(f"s_cmp_lg_u32 {s(sW)}, 0")
        A(f"s_cbranch_scc1 {L}")
        A(f"s_lshl_b32 {s(sT5)}, {s(cidx_sgpr)}, 7")
        A(f"v_mov_b32 v{tmp}, {s(sT5)}")
        A(f"v_mov_b32 v{tmp+1}, 1")
        A("s_mov_b64 exec, 1")
        A(f"buffer_atomic_add v{tmp+1}, v{tmp}, {s(SRD_CNT,4)}, 0 offen sc1")
        A("s_mov_b64 exec, -1")
        A.label(L)

    def p1(self):
        A = self.A
        V = self.V = {}
        XF = 16
        ACK, ACV = 96, 116
        CSK, CSV = 136, 144
        SUM, GRAM = 152, 156
        ONES = 160
        KF = 164
        VTR = 244
        VTRB = 249
        VOW = 250
        VOX = 255
        VXA = 10
        self.XF, self.ONES = XF, ONES
        A("v_lshrrev_b32 v2, 3, v1")
        A("v_and_b32 v3, 6, v2")
        A("v_and_b32 v4, 7, v1")
        A("v_xor_b32 v3, v3, v4")
        A("v_lshlrev_b32 v3, 4, v3")
        A("v_mul_u32_u24 v2, 1280, v2")
        A(f"v_add_u32 v{VOX}, v2, v3")
        A(f"s_lshl_b32 {s(sT0)}, {s(sR)}, 6")
        A(f"s_lshl_b32 {s(sT1)}, {s(sW)}, 4")
        A(f"s_add_u32 {s(sT0)}, {s(sT0)}, {s(sT1)}")
        A(f"s_mul_i32 {s(sT0)}, {s(sT0)}, 1280")
        A(f"s_lshl_b32 {s(sT1)}, {s(sRHO)}, 7")
        A(f"s_mul_i32 {s(sLD)}, {s(sW)}, {STAGE}")
        for sl in range(10):
            for hh in range(2):
                A(f"s_add_u32 {s(sT2)}, {s(sT0)}, {s(sT1)}")
                if hh: A(f"s_add_u32 {s(sT2)}, {s(sT2)}, {8*1280}")
                A(f"s_add_u32 m0, {s(sLD)}, {(hh*10+sl)*1024}")
                A(f"buffer_load_dwordx4 v{VOX}, {s(SRD_X,4)}, {s(sT2)} offen lds")
            A(f"s_add_u32 {s(sT1)}, {s(sT1)}, 128")
            A(f"s_cmp_ge_u32 {s(sT1)}, 1280")
            A(f"s_cselect_b32 {s(sT2)}, 1280, 0")
            A(f"s_sub_u32 {s(sT1)}, {s(sT1)}, {s(sT2)}")
        A(f"s_mov_b32 {s(sC)}, 6554")
        A(f"s_mov_b32 {s(sC+1)}, 3840")
        for i in range(5):
            A(f"v_add_u32 v2, {64*i}, v1")
            A(f"v_mul_lo_u32 v3, v2, {s(sC)}")
            A("v_lshrrev_b32 v3, 16, v3")
            A("v_mul_u32_u24 v4, 10, v3")
            A("v_sub_u32 v4, v2, v4")
            A("v_and_b32 v5, 0x13, v3")
            A("v_and_b32 v6, 4, v3")
            A("v_lshlrev_b32 v6, 1, v6")
            A("v_and_b32 v7, 8, v3")
            A("v_lshrrev_b32 v7, 1, v7")
            A("v_or3_b32 v5, v5, v6, v7")
            A(f"v_mul_lo_u32 v5, v5, {s(sC+1)}")
            A(f"v_lshl_add_u32 v{VOW+i}, v4, 4, v5")
        A(f"s_and_b32 {s(sT0)}, {s(sW)}, 1")
        A(f"s_mul_i32 {s(sT0)}, {s(sT0)}, {32*3840}")
        A(f"s_mul_i32 {s(sT1)}, {s(sG)}, 160")
        A(f"s_add_u32 {s(sWB)}, {s(sT0)}, {s(sT1)}")
        A(f"s_lshr_b32 {s(sT0)}, {s(sW)}, 1")
        A(f"s_add_u32 {s(sT0)}, {s(sT0)}, 1")
        A(f"s_mul_i32 {s(sT0)}, {s(sT0)}, 1280")
        A(f"s_add_u32 {s(sWA)}, {s(sWB)}, {s(sT0)}")
        A(f"s_mul_i32 {s(sLD)}, {s(sW)}, 5120")

        def issue_stage(sig):
            if sig < 10:
                A(f"s_add_u32 {s(sT0)}, {s(sRHO)}, {sig}")
                base = sWA
            else:
                A(f"s_lshr_b32 {s(sT0)}, {s(sW)}, 1")
                A(f"s_add_u32 {s(sT0)}, {s(sT0)}, {s(sRHO)}")
                A(f"s_add_u32 {s(sT0)}, {s(sT0)}, {2*(sig-10)}")
                base = sWB
            A(f"s_cmp_ge_u32 {s(sT0)}, 10")
            A(f"s_cselect_b32 {s(sT1)}, 10, 0")
            A(f"s_sub_u32 {s(sT0)}, {s(sT0)}, {s(sT1)}")
            A(f"s_mul_i32 {s(sT0)}, {s(sT0)}, {64*3840}")
            A(f"s_add_u32 {s(sT0)}, {s(sT0)}, {s(base)}")
            for i in range(5):
                A(f"s_add_u32 m0, {s(sLD)}, {slot_of(sig)*STAGE + i*1024}")
                A(f"buffer_load_dwordx4 v{VOW+i}, {s(SRD_W,4)}, {s(sT0)} offen lds")
        self.issue_stage = issue_stage
        for sig in range(4): issue_stage(sig)
        self.zero_counters_after_issue = True
        for j in range(5):
            A(f"s_add_u32 {s(sROT+j)}, {s(sW)}, {j}")
            A(f"s_cmp_ge_u32 {s(sROT+j)}, 5")
            A(f"s_cselect_b32 {s(sT0)}, 5, 0")
            A(f"s_sub_u32 {s(sROT+j)}, {s(sROT+j)}, {s(sT0)}")
        A("v_bfe_u32 v2, v1, 2, 2")
        A("v_bfe_u32 v3, v1, 4, 1")
        A("v_lshl_add_u32 v2, v3, 2, v2")
        A("v_bfe_u32 v3, v1, 5, 1")
        A("v_lshl_add_u32 v2, v3, 4, v2")
        A("v_mul_u32_u24 v2, 160, v2")
        A("v_and_b32 v3, 3, v1")
        A("v_lshl_add_u32 v2, v3, 3, v2")
        A(f"v_add_u32 v{VTRB}, {slot_of(10)*STAGE}, v2")
        for j in range(5):
            A(f"s_lshl_b32 {s(sT0)}, {s(sROT+j)}, 5")
            A(f"s_add_u32 {s(sT0)}, {s(sT0)}, {slot_of(0)*STAGE}")
            A(f"v_add_u32 v{VTR+j}, {s(sT0)}, v2")
        A("v_and_b32 v2, 15, v1")
        A("v_lshrrev_b32 v3, 3, v2")
        A("v_mul_u32_u24 v3, 10240, v3")
        A("v_and_b32 v4, 7, v2")
        A("v_lshl_add_u32 v3, v4, 7, v3")
        A(f"s_mul_i32 {s(sT0)}, {s(sW)}, {STAGE}")
        A(f"v_add_u32 v3, {s(sT0)}, v3")
        A("v_and_b32 v4, 6, v2")
        A("v_lshrrev_b32 v5, 4, v1")
        A("v_xor_b32 v6, v5, v4")
        A(f"v_lshl_add_u32 v{VXA}, v6, 4, v3")
        A("v_or_b32 v5, 4, v5")
        A("v_xor_b32 v6, v5, v4")
        A(f"v_lshl_add_u32 v{VXA+1}, v6, 4, v3")
        for i in range(4): A(f"v_mov_b32 v{ONES+i}, 0x3f803f80")
        self.zero_counters()
        A("s_waitcnt vmcnt(20)")
        for m in range(20):
            A(f"ds_read_b128 {v(XF+4*m,4)}, v{VXA+(m&1)} offset:{(m>>1)*1024}")
            if m == 11: A("s_waitcnt lgkmcnt(8)")
        A("s_waitcnt lgkmcnt(0)")
        A("s_barrier")
        for sig in range(4, 8): issue_stage(sig)

        def rd(buf, sec, j, h, second):
            dst = KF + buf*40 + sec*20 + j*4 + 2*second
            return f"ds_read_b64_tr_b16 {v(dst,2)}, v{VTR+j} offset:{(sec*2+h)*5120 + second*1280}"
        def reads(buf, h):
            return [rd(buf, sec, j, h, sec2) for j in range(5) for sec in range(2) for sec2 in range(2)]
        def mfmas(buf, m):
            first = (m == 0)
            c = lambda r: '0' if first else v(r,4)
            xf = v(XF+4*m,4)
            out = []
            out.append(f"v_mfma_f32_16x16x32_bf16 {v(SUM,4)}, {v(ONES,4)}, {xf}, {c(SUM)}")
            out.append(f"v_mfma_f32_16x16x32_bf16 {v(GRAM,4)}, {xf}, {xf}, {c(GRAM)}")
            for j in range(5):
                kf = v(KF+buf*40+j*4,4); vf = v(KF+buf*40+20+j*4,4)
                out.append(f"v_mfma_f32_16x16x32_bf16 {v(ACK+4*j,4)}, {xf}, {kf}, {c(ACK+4*j)}")
                out.append(f"v_mfma_f32_16x16x32_bf16 {v(ACV+4*j,4)}, {xf}, {vf}, {c(ACV+4*j)}")
                if j < 2:
                    out.append(f"v_mfma_f32_16x16x32_bf16 {v(CSK+4*j,4)}, {v(ONES,4)}, {kf}, {c(CSK+4*j)}")
                    out.append(f"v_mfma_f32_16x16x32_bf16 {v(CSV+4*j,4)}, {v(ONES,4)}, {vf}, {c(CSV+4*j)}")
            return out

        last_issued = 7
        for sig in range(10):
            A(f"s_waitcnt vmcnt({5*(last_issued - sig)})")
            A("s_barrier")
            for t in reads(0, 0): A(t)
            if sig >= 1 and sig + 7 <= 14:
                issue_stage(sig + 7); last_issued = sig + 7
            A("s_waitcnt lgkmcnt(0)")
            for t in interleave(mfmas(0, 2*sig), reads(1, 1), per=2): A(t)
            A("s_waitcnt lgkmcnt(0)")
            nxt = []
            if sig < 9:
                d = (slot_of(sig+1) - slot_of(sig)) * STAGE
                nxt = [f"v_add_u32 v{VTR+j}, {d & 0xffffffff}, v{VTR+j}" for j in range(5)]
            for t in interleave(mfmas(1, 2*sig+1), nxt, per=1): A(t)
        self.vm_after_p1a = 5 * (last_issued - 9)

        T = KF
        MEANC, RSC, MRC = 12, 13, 14
        self.MEANC, self.RSC, self.MRC = MEANC, RSC, MRC
        A("v_and_b32 v2, 3, v1")
        A(f"v_cmp_eq_u32 {s(sMASK,2)}, 1, v2")
        A(f"v_cmp_eq_u32 {s(sMASK+2,2)}, 2, v2")
        A(f"v_cmp_eq_u32 {s(sMASK+4,2)}, 3, v2")
        A("v_bfe_u32 v2, v1, 2, 2")
        A("v_lshrrev_b32 v3, 4, v1")
        A(f"v_cmp_eq_u32 {s(sMASK+6,2)}, v2, v3")
        A(f"v_cndmask_b32 v{T}, v{GRAM}, v{GRAM+1}, {s(sMASK,2)}")
        A(f"v_cndmask_b32 v{T}, v{T}, v{GRAM+2}, {s(sMASK+2,2)}")
        A(f"v_cndmask_b32 v{T}, v{T}, v{GRAM+3}, {s(sMASK+4,2)}")
        A(f"v_cndmask_b32 v{T}, 0, v{T}, {s(sMASK+6,2)}")
        A(f"v_mov_b32 v{T+1}, v{T}")
        A(f"v_permlane16_swap_b32 v{T}, v{T+1}")
        A(f"v_add_f32 v{T}, v{T}, v{T+1}")
        A(f"v_mov_b32 v{T+1}, v{T}")
        A(f"v_permlane32_swap_b32 v{T}, v{T+1}")
        A(f"v_add_f32 v{T}, v{T}, v{T+1}")
        A(f"v_mul_f32 v{MEANC}, {1.0/640!r}, v{SUM}")
        A(f"v_mul_f32 v{T}, {1.0/640!r}, v{T}")
        A(f"v_fma_f32 v{T}, -v{MEANC}, v{MEANC}, v{T}")
        A(f"v_max_f32 v{T}, 0, v{T}")
        A(f"v_add_f32 v{T}, 0x3727c5ac, v{T}")
        A(f"v_rsq_f32 v{RSC}, v{T}")
        A(f"v_mul_f32 v{MRC}, v{MEANC}, v{RSC}")
        A("v_and_b32 v2, 15, v1")
        A(f"s_lshl_b32 {s(sT0)}, {s(sW)}, 7")
        A(f"s_add_u32 {s(sT0)}, {s(sT0)}, {ST}")
        A(f"v_lshl_add_u32 v3, v2, 2, {s(sT0)}")
        A(f"ds_write_b32 v3, v{MRC}")
        A(f"ds_write_b32 v3, v{RSC} offset:64")
        A("v_lshrrev_b32 v4, 4, v1")
        A(f"v_lshl_add_u32 v4, v4, 4, {s(sT0)}")
        MRR, RSR = T+4, T+8
        A(f"ds_read_b128 {v(MRR,4)}, v4")
        A(f"ds_read_b128 {v(RSR,4)}, v4 offset:64")
        VCS = T + 12
        for j in range(5):
            A(f"s_lshl_b32 {s(sT0)}, {s(sROT+j)}, 6")
            A(f"s_add_u32 {s(sT0)}, {s(sT0)}, {CS}")
            A(f"v_lshl_add_u32 v{VCS+j}, v2, 2, {s(sT0)}")
        for j in range(2):
            A(f"ds_write_b32 v{VCS+j}, v{CSK+4*j}")
            A(f"ds_write_b32 v{VCS+j}, v{CSV+4*j} offset:320")
        A(f"s_lshr_b32 {s(sT0)}, {s(sW)}, 1")
        A(f"s_lshl_b32 {s(sT0)}, {s(sT0)}, 10")
        A(f"s_add_u32 {s(sT0)}, {s(sT0)}, {FR + 20*1024}")
        A(f"v_lshl_add_u32 v5, v1, 4, {s(sT0)}")
        A(f"ds_write_b128 v5, {v(ONES,4)}")
        A("s_waitcnt lgkmcnt(0)")
        A("s_barrier")
        CSR = T + 20
        for j in range(5):
            A(f"ds_read_b32 v{CSR+j}, v{VCS+j}")
            A(f"ds_read_b32 v{CSR+5+j}, v{VCS+j} offset:320")
        VFR = T + 32
        for j in range(5):
            A(f"s_lshl_b32 {s(sT0)}, {s(sROT+j)}, 11")
            A(f"s_lshr_b32 {s(sT1)}, {s(sW)}, 1")
            A(f"s_lshl_b32 {s(sT1)}, {s(sT1)}, 10")
            A(f"s_add_u32 {s(sT0)}, {s(sT0)}, {s(sT1)}")
            A(f"s_and_b32 {s(sT1)}, {s(sW)}, 1")
            A(f"s_lshl_b32 {s(sT1)}, {s(sT1)}, 3")
            A(f"s_add_u32 {s(sT0)}, {s(sT0)}, {s(sT1)}")
            A(f"s_add_u32 {s(sT0)}, {s(sT0)}, {FR}")
            A(f"v_lshl_add_u32 v{VFR+j}, v1, 4, {s(sT0)}")
        A("s_waitcnt lgkmcnt(0)")
        U, Y, E, PK = T+40, T+44, T+48, T+52
        LOG2E = 1.4426950408889634
        A(f"s_mov_b32 {s(sC)}, 0xb58637bd")
        for j in range(5):
            for r in range(4):
                A(f"v_fma_f32 v{U+r}, v{MRR+r}, v{CSR+j}, {s(sC)}")
            for r in range(4):
                A(f"v_fma_f32 v{Y+r}, v{ACK+4*j+r}, v{RSR+r}, -v{U+r}")
            for r in range(4):
                A(f"v_min_f32 v{E+r}, 0, v{Y+r}")
            for r in range(4):
                A(f"v_mul_f32 v{E+r}, {LOG2E!r}, v{E+r}")
            for r in range(4):
                A(f"v_exp_f32 v{E+r}, v{E+r}")
            for r in range(4):
                A(f"v_max_f32 v{Y+r}, 0, v{Y+r}")
            for r in range(4):
                A(f"v_add_f32 v{Y+r}, v{Y+r}, v{E+r}")
            A(f"v_cvt_pk_bf16_f32 v{PK}, v{Y}, v{Y+1}")
            A(f"v_cvt_pk_bf16_f32 v{PK+1}, v{Y+2}, v{Y+3}")
            A(f"ds_write_b64 v{VFR+j}, {v(PK,2)}")
            for r in range(4):
                A(f"v_mul_f32 v{U+r}, v{MRR+r}, v{CSR+5+j}")
            for r in range(4):
                A(f"v_fma_f32 v{Y+r}, v{ACV+4*j+r}, v{RSR+r}, -v{U+r}")
            A(f"v_cvt_pk_bf16_f32 v{PK+2}, v{Y}, v{Y+1}")
            A(f"v_cvt_pk_bf16_f32 v{PK+3}, v{Y+2}, v{Y+3}")
            A(f"ds_write_b64 v{VFR+j}, {v(PK+2,2)} offset:{5*2048}")
        A("s_waitcnt lgkmcnt(0)")
        A("s_barrier")
        ia = sum(JOBS[k][0] << (3*k) for k in range(18))
        ib = sum(JOBS[k][1] << (3*k) for k in range(18))
        self.srd(SRD_B, P_WS, WS_PART, WS_PART_SZ)
        A(f"s_lshl_b32 {s(sT4)}, {s(sG)}, 5")
        A(f"s_add_u32 {s(sT4)}, {s(sT4)}, {s(sR)}")
        A(f"s_mul_i32 {s(sT4)}, {s(sT4)}, {18*1024}")
        A("v_lshlrev_b32 v2, 4, v1")
        JA, JB, JD = T, T+16, T+32
        for q in range(5):
            A(f"s_add_u32 {s(sT0)}, {s(sW)}, {4*q}")
            A(f"s_mul_i32 {s(sT1)}, {s(sT0)}, 3")
            A(f"s_mov_b32 {s(sC)}, {ia & 0xffffffff}")
            A(f"s_mov_b32 {s(sC+1)}, {ia >> 32}")
            A(f"s_lshr_b64 {s(sC,2)}, {s(sC,2)}, {s(sT1)}")
            A(f"s_and_b32 {s(sT2)}, {s(sC)}, 7")
            A(f"s_mov_b32 {s(sC)}, {ib & 0xffffffff}")
            A(f"s_mov_b32 {s(sC+1)}, {ib >> 32}")
            A(f"s_lshr_b64 {s(sC,2)}, {s(sC,2)}, {s(sT1)}")
            A(f"s_and_b32 {s(sT3)}, {s(sC)}, 7")
            A(f"s_lshl_b32 {s(sT2)}, {s(sT2)}, 11")
            A(f"s_add_u32 {s(sT2)}, {s(sT2)}, {FR}")
            A(f"s_lshl_b32 {s(sT3)}, {s(sT3)}, 11")
            A(f"s_add_u32 {s(sT3)}, {s(sT3)}, {FR + 5*2048}")
            A(f"v_add_u32 v3, {s(sT2)}, v2")
            A(f"v_add_u32 v4, {s(sT3)}, v2")
            A(f"ds_read_b128 {v(JA,4)}, v3")
            A(f"ds_read_b128 {v(JB,4)}, v4")
            A(f"ds_read_b128 {v(JA+4,4)}, v3 offset:1024")
            A(f"ds_read_b128 {v(JB+4,4)}, v4 offset:1024")
            A(f"s_lshl_b32 {s(sT1)}, {s(sT0)}, 10")
            A(f"s_add_u32 {s(sT1)}, {s(sT1)}, {s(sT4)}")
            A(f"s_cmp_lt_u32 {s(sT0)}, 18")
            A(f"s_cselect_b32 {s(sT1)}, {s(sT1)}, 0x7ff00000")
            A("s_waitcnt lgkmcnt(2)")
            A(f"v_mfma_f32_16x16x32_bf16 {v(JD+4*q,4)}, {v(JA,4)}, {v(JB,4)}, 0")
            A("s_waitcnt lgkmcnt(0)")
            A(f"v_mfma_f32_16x16x32_bf16 {v(JD+4*q,4)}, {v(JA+4,4)}, {v(JB+4,4)}, {v(JD+4*q,4)}")
            A(f"buffer_store_dwordx4 {v(JD+4*q,4)}, v2, {s(SRD_B,4)}, {s(sT1)} offen sc1")
        nst = 5

        ACQ, CSQ = ACK, ACK + 20
        QF = KF
        def rdq(buf, j, quarter, second):
            return f"ds_read_b64_tr_b16 {v(QF+buf*20+j*4+2*second,2)}, v{VTRB} offset:{quarter*5120 + j*32 + second*1280}"
        def readsq(buf, quarter): return [rdq(buf, j, quarter, sec2) for j in range(5) for sec2 in range(2)]
        def mfq(buf, m):
            first = (m == 0)
            c = lambda r: '0' if first else v(r,4)
            out = []
            for j in range(5):
                qf = v(QF+buf*20+j*4,4)
                out.append(f"v_mfma_f32_16x16x32_bf16 {v(ACQ+4*j,4)}, {qf}, {v(XF+4*m,4)}, {c(ACQ+4*j)}")
                out.append(f"v_mfma_f32_16x16x32_bf16 {v(CSQ+4*j,4)}, {qf}, {v(ONES,4)}, {c(CSQ+4*j)}")
            return out
        for sig in range(10, 15):
            if sig < 12:
                A(f"s_waitcnt vmcnt({5*(14 - sig) + nst})")
            elif sig == 12:
                A("s_waitcnt vmcnt(0)")
            A("s_barrier")
            if sig == 12:
                self.wait_zero_done()
                A(f"s_add_u32 {s(sT0)}, {s(sG)}, {C_A}")
                self.signal(sT0, 2)
                self.issue_w3()
            for t in readsq(0, 0): A(t)
            for qq in range(4):
                A("s_waitcnt lgkmcnt(0)")
                nx = readsq((qq+1) & 1, qq+1) if qq < 3 else []
                for t in interleave(mfq(qq & 1, 4*(sig-10)+qq), nx, per=1): A(t)
            if sig < 14:
                d = (slot_of(sig+1) - slot_of(sig)) * STAGE
                A(f"v_add_u32 v{VTRB}, {d & 0xffffffff}, v{VTRB}")
        PQ = 2 * 0 + 232
        self.PQ = PQ
        A(f"s_mov_b32 {s(sC)}, 0xb58637bd")
        for j in range(5):
            for r in range(4):
                A(f"v_fma_f32 v{U+r}, v{MRC}, v{CSQ+4*j+r}, {s(sC)}")
            for r in range(4):
                A(f"v_fma_f32 v{Y+r}, v{ACQ+4*j+r}, v{RSC}, -v{U+r}")
            for r in range(4):
                A(f"v_min_f32 v{E+r}, 0, v{Y+r}")
            for r in range(4):
                A(f"v_mul_f32 v{E+r}, {LOG2E!r}, v{E+r}")
            for r in range(4):
                A(f"v_exp_f32 v{E+r}, v{E+r}")
            for r in range(4):
                A(f"v_max_f32 v{Y+r}, 0, v{Y+r}")
            for r in range(4):
                A(f"v_add_f32 v{Y+r}, v{Y+r}, v{E+r}")
            A(f"v_cvt_pk_bf16_f32 v{PQ+2*j}, v{Y}, v{Y+1}")
            A(f"v_cvt_pk_bf16_f32 v{PQ+2*j+1}, v{Y+2}, v{Y+3}")
        A(f"v_mov_b32 v{PQ+10}, 0")
        A(f"v_mov_b32 v{PQ+11}, 0")
        if self.dbg:
            A.comment("debug: dump pq")
            A(f"s_lshl_b32 {s(sT0)}, s2, 2")
            A(f"s_add_u32 {s(sT0)}, {s(sT0)}, {s(sW)}")
            A(f"s_mul_i32 {s(sT0)}, {s(sT0)}, {5*512}")
            A("v_lshlrev_b32 v2, 3, v1")
            for j in range(5):
                A(f"buffer_store_dwordx2 {v(PQ+2*j,2)}, v2, {s(SRD_T,4)}, {s(sT0)} offen offset:{j*512}")

    def wait_zero_done(self):
        def setup():
            self.A("v_mov_b32 v2, 0")
        self.poll(SRD_DBG, setup, 1, NZERO, 2)


    def map_p3(self):
        A = self.A
        A(f"s_lshr_b32 {s(sT0)}, {s(sXCD)}, 1")
        A(f"s_mul_i32 {s(sT1)}, {s(sJ)}, 52")
        A(f"s_lshr_b32 {s(sT1)}, {s(sT1)}, 8")
        A(f"s_mul_i32 {s(sT2)}, {s(sT1)}, 5")
        A(f"s_sub_u32 {s(sT2)}, {s(sJ)}, {s(sT2)}")
        A(f"s_and_b32 {s(sT3)}, {s(sXCD)}, 1")
        A(f"s_mul_i32 {s(sT3)}, {s(sT3)}, 5")
        A(f"s_add_u32 {s(sC3)}, {s(sT2)}, {s(sT3)}")
        A(f"s_mul_i32 {s(sT2)}, {s(sT0)}, 6")
        A(f"s_cmp_eq_u32 {s(sT0)}, 3")
        A(f"s_cselect_b32 {s(sT3)}, 1, 0")
        A(f"s_sub_u32 {s(sT2)}, {s(sT2)}, {s(sT3)}")
        A(f"s_add_u32 {s(sR3)}, {s(sT2)}, {s(sT1)}")
        A(f"s_cmp_ge_u32 {s(sT0)}, 2")
        A(f"s_cselect_b32 {s(sT3)}, 5, 6")
        A(f"s_cmp_lt_u32 {s(sT1)}, {s(sT3)}")
        A(f"s_cselect_b32 {s(sV3)}, 1, 0")
        A(f"s_lshr_b32 {s(sT0)}, {s(sXCD)}, 2")
        A(f"s_lshl_b32 {s(sT0)}, {s(sT0)}, 2")
        A(f"s_and_b32 {s(sT1)}, {s(sJ)}, 3")
        A(f"s_add_u32 {s(sR4)}, {s(sT0)}, {s(sT1)}")
        A(f"s_and_b32 {s(sT0)}, {s(sXCD)}, 3")
        A(f"s_lshr_b32 {s(sT1)}, {s(sJ)}, 2")
        A(f"s_mul_i32 {s(sT2)}, {s(sT0)}, 7")
        A(f"s_add_u32 {s(sS4)}, {s(sT2)}, {s(sT1)}")
        A(f"s_cmp_eq_u32 {s(sT0)}, 3")
        A(f"s_cselect_b32 {s(sT2)}, 6, 7")
        A(f"s_cmp_lt_u32 {s(sT1)}, {s(sT2)}")
        A(f"s_cselect_b32 {s(sV4)}, 1, 0")

    def slab_voffset(self, dst, rowstride):
        A = self.A
        A("v_lshrrev_b32 v2, 3, v1")
        A("v_bfe_u32 v3, v1, 4, 2")
        A("v_lshlrev_b32 v3, 1, v3")
        A("v_and_b32 v4, 7, v1")
        A("v_xor_b32 v3, v3, v4")
        A("v_lshlrev_b32 v3, 4, v3")
        A(f"v_mul_u32_u24 v2, {rowstride}, v2")
        A(f"v_add_u32 v{dst}, v2, v3")

    def tr_addrs(self, dst, base_sgpr_or_imm):
        A = self.A
        A("v_bfe_u32 v2, v1, 2, 2")
        A("v_lshrrev_b32 v3, 4, v1")
        A("v_lshl_add_u32 v2, v3, 2, v2")
        A("v_bfe_u32 v3, v2, 1, 2")
        A("v_and_b32 v4, 3, v1")
        A("v_lshlrev_b32 v4, 3, v4")
        A("v_lshl_add_u32 v2, v2, 7, v4")
        A(f"v_add_u32 v2, {base_sgpr_or_imm}, v2")
        for ct in range(4):
            A(f"v_xor_b32 v4, {ct}, v3")
            A(f"v_lshl_add_u32 v{dst+ct}, v4, 5, v2")

    def issue_w3(self):
        A = self.A
        L = A.newlabel('now3')
        self.map_p3()
        self.slab_voffset(VSLAB, 1280)
        self.srd(SRD_W2, P_WO, 0, 640 * 1280)
        A(f"s_cmp_eq_u32 {s(sV3)}, 0")
        A(f"s_cbranch_scc1 {L}")
        A(f"s_mul_i32 {s(sT0)}, {s(sW)}, {160*1280}")
        A(f"s_lshl_b32 {s(sT1)}, {s(sC3)}, 7")
        A(f"s_add_u32 {s(sT0)}, {s(sT0)}, {s(sT1)}")
        A(f"s_add_u32 {s(sT1)}, {s(sW)}, 4")
        A(f"s_mul_i32 {s(sT1)}, {s(sT1)}, {STAGE}")
        for i in range(20):
            A(f"s_add_u32 m0, {s(sT1)}, {i*1024}")
            A(f"buffer_load_dwordx4 v{VSLAB}, {s(SRD_W2,4)}, {s(sT0)} offen lds")
            A(f"s_add_u32 {s(sT0)}, {s(sT0)}, {8*1280}")
        A.label(L)

    def issue_w4(self, m0, m1):
        A = self.A
        A(f"s_lshl_b32 {s(sT0)}, {s(sW)}, 3")
        A(f"s_add_u32 {s(sT0)}, {s(sT0)}, {32*m0}")
        A(f"s_mul_i32 {s(sT0)}, {s(sT0)}, 3456")
        A(f"s_lshl_b32 {s(sT1)}, {s(sS4)}, 7")
        A(f"s_add_u32 {s(sT0)}, {s(sT0)}, {s(sT1)}")
        A(f"s_lshl_b32 {s(sT1)}, {s(sW)}, 10")
        for m in range(m0, m1):
            A(f"s_add_u32 m0, {s(sT1)}, {m*8192}")
            A(f"buffer_load_dwordx4 v{VSLAB4}, {s(SRD_W,4)}, {s(sT0)} offen lds")
            A(f"s_add_u32 m0, {s(sT1)}, {m*8192 + 4096}")
            A(f"buffer_load_dwordx4 v{VSLAB4}, {s(SRD_W2,4)}, {s(sT0)} offen lds")
            A(f"s_add_u32 {s(sT0)}, {s(sT0)}, {32*3456}")

    def p2(self):
        A = self.A
        PQ = self.PQ
        A("s_waitcnt lgkmcnt(0)")
        def setupA():
            A(f"s_add_u32 {s(sT0)}, {s(sG)}, {C_A}")
            A(f"s_lshl_b32 {s(sT0)}, {s(sT0)}, 7")
            A(f"v_mov_b32 v2, {s(sT0)}")
        self.poll(SRD_CNT, setupA, 1, 32, 2)
        half_items = []
        for (j, i0, i1) in [(0,0,1),(1,0,1),(1,2,7),(2,1,2),(2,3,7),(3,2,3),(3,4,7),(4,3,4)]:
            half_items += [(i0, j), (i1, j)]
        ti = sum(h[0] << (3*k) for k, h in enumerate(half_items))
        tj = sum(h[1] << (3*k) for k, h in enumerate(half_items))
        A(f"s_and_b32 {s(sT0)}, {s(sR)}, 15")
        A(f"s_mul_i32 {s(sT0)}, {s(sT0)}, 3")
        A(f"s_mov_b32 {s(sC)}, {ti & 0xffffffff}")
        A(f"s_mov_b32 {s(sC+1)}, {ti >> 32}")
        A(f"s_lshr_b64 {s(sC,2)}, {s(sC,2)}, {s(sT0)}")
        A(f"s_and_b32 {s(sT1)}, {s(sC)}, 7")
        A(f"s_mov_b32 {s(sC)}, {tj & 0xffffffff}")
        A(f"s_mov_b32 {s(sC+1)}, {tj >> 32}")
        A(f"s_lshr_b64 {s(sC,2)}, {s(sC,2)}, {s(sT0)}")
        A(f"s_and_b32 {s(sT2)}, {s(sC)}, 7")
        A(f"s_lshl_b32 {s(sT3)}, {s(sT1)}, 1")
        A(f"s_add_u32 {s(sT3)}, {s(sT3)}, {s(sT2)}")
        A(f"s_add_u32 {s(sT4)}, {s(sT1)}, 13")
        A(f"s_cmp_ge_u32 {s(sR)}, 16")
        A(f"s_cselect_b32 {s(sT3)}, {s(sT4)}, {s(sT3)}")
        A(f"s_cmp_eq_u32 {s(sT1)}, 7")
        A(f"s_cselect_b32 {s(sT3)}, 0, {s(sT3)}")
        self.srd(SRD_A, P_WS, WS_PART, WS_PART_SZ)
        A(f"s_lshl_b32 {s(sT4)}, {s(sG)}, 5")
        A(f"s_lshl_b32 {s(sT0)}, {s(sW)}, 3")
        A(f"s_add_u32 {s(sT4)}, {s(sT4)}, {s(sT0)}")
        A(f"s_mul_i32 {s(sT4)}, {s(sT4)}, 18")
        A(f"s_add_u32 {s(sT4)}, {s(sT4)}, {s(sT3)}")
        A(f"s_lshl_b32 {s(sT4)}, {s(sT4)}, 10")
        A("v_lshlrev_b32 v2, 4, v1")
        T = 164
        for k in range(8):
            A(f"buffer_load_dwordx4 {v(T+4*k,4)}, v2, {s(SRD_A,4)}, {s(sT4)} offen sc1")
            if k < 7: A(f"s_add_u32 {s(sT4)}, {s(sT4)}, {18*1024}")
        A(f"s_mov_b32 {s(sC)}, 3277")
        A("v_and_b32 v3, 15, v1")
        A(f"s_lshl_b32 {s(sT0)}, {s(sT2)}, 4")
        A(f"v_add_u32 v3, {s(sT0)}, v3")
        A(f"v_mul_lo_u32 v3, v3, {s(sC)}")
        A("v_lshrrev_b32 v3, 16, v3")
        A("v_lshrrev_b32 v4, 4, v1")
        A(f"s_lshl_b32 {s(sT0)}, {s(sT1)}, 4")
        A(f"v_lshl_add_u32 v4, v4, 2, {s(sT0)}")
        for r in range(4):
            A(f"v_add_u32 v5, {r}, v4")
            A(f"v_mul_lo_u32 v5, v5, {s(sC)}")
            A("v_lshrrev_b32 v5, 16, v5")
            A(f"v_cmp_eq_u32 {s(sMASK+2*r,2)}, v5, v3")
        for k in (4, 2, 1):
            A(f"s_waitcnt vmcnt({0 if k == 4 else 0})") if k == 4 else None
            for b in range(k):
                for r in range(4):
                    A(f"v_add_f32 v{T+4*b+r}, v{T+4*b+r}, v{T+4*(b+k)+r}")
        A(f"s_lshl_b32 {s(sT0)}, {s(sW)}, 10")
        A(f"s_add_u32 {s(sT0)}, {s(sT0)}, {RED2}")
        A(f"v_add_u32 v3, {s(sT0)}, v2")
        A(f"ds_write_b128 v3, {v(T,4)}")
        Lw3 = A.newlabel('now3r')
        A(f"s_cmp_eq_u32 {s(sV3)}, 0")
        A(f"s_cbranch_scc1 {Lw3}")
        A(f"s_add_u32 {s(sT0)}, {s(sW)}, 4")
        A(f"s_mul_i32 {s(sT0)}, {s(sT0)}, {STAGE}")
        self.tr_addrs(VTR3, s(sT0))
        for mm in range(5):
            for ct in range(4):
                for sec in range(2):
                    A(f"ds_read_b64_tr_b16 {a(mm*16+ct*4+2*sec,2)}, v{VTR3+ct} offset:{mm*4096+sec*2048}")
            A("s_waitcnt lgkmcnt(8)")
        A.label(Lw3)
        A("s_waitcnt lgkmcnt(0)")
        A("s_barrier")
        Lr = A.newlabel('red')
        A(f"s_cmp_lg_u32 {s(sW)}, 0")
        A(f"s_cbranch_scc1 {Lr}")
        A("v_lshlrev_b32 v2, 4, v1")
        A(f"v_add_u32 v3, {RED2}, v2")
        for k in range(4):
            A(f"ds_read_b128 {v(T+4*k,4)}, v3 offset:{k*1024}")
        A("s_waitcnt lgkmcnt(0)")
        for r in range(4):
            A(f"v_add_f32 v{T+r}, v{T+r}, v{T+4+r}")
            A(f"v_add_f32 v{T+8+r}, v{T+8+r}, v{T+12+r}")
        for r in range(4):
            A(f"v_add_f32 v{T+r}, v{T+r}, v{T+8+r}")
        for r in range(4):
            A(f"v_cndmask_b32 v{T+r}, 0, v{T+r}, {s(sMASK+2*r,2)}")
        A(f"v_cvt_pk_bf16_f32 v{T}, v{T}, v{T+1}")
        A(f"v_cvt_pk_bf16_f32 v{T+1}, v{T+2}, v{T+3}")
        self.srd(SRD_B, P_WS, WS_KVF, WS_KVF_SZ)
        A(f"s_lshl_b32 {s(sT0)}, {s(sG)}, 14")
        A(f"s_lshr_b32 {s(sT1)}, {s(sR)}, 1")
        A(f"s_lshl_b32 {s(sT1)}, {s(sT1)}, 10")
        A(f"s_add_u32 {s(sT0)}, {s(sT0)}, {s(sT1)}")
        A(f"s_and_b32 {s(sT1)}, {s(sR)}, 1")
        A(f"s_lshl_b32 {s(sT1)}, {s(sT1)}, 3")
        A(f"s_add_u32 {s(sT0)}, {s(sT0)}, {s(sT1)}")
        A(f"buffer_store_dwordx2 {v(T,2)}, v2, {s(SRD_B,4)}, {s(sT0)} offen sc1")
        A("s_waitcnt vmcnt(0)")
        A(f"s_add_u32 {s(sT0)}, {s(sG)}, {C_B}")
        self.signal(sT0, 4)
        A.label(Lr)
        self.slab_voffset(VSLAB4, 3456)
        self.srd(SRD_W, P_WG, 0, 640 * 3456)
        self.srd(SRD_W2, P_WU, 0, 640 * 3456)
        L4 = A.newlabel('now4a')
        A(f"s_cmp_eq_u32 {s(sV4)}, 0")
        A(f"s_cbranch_scc1 {L4}")
        self.issue_w4(0, 8)
        A.label(L4)
        def setupB():
            A(f"s_add_u32 {s(sT0)}, {s(sG)}, {C_B}")
            A(f"s_lshl_b32 {s(sT0)}, {s(sT0)}, 7")
            A(f"v_mov_b32 v2, {s(sT0)}")
        self.poll(SRD_CNT, setupB, 1, 32, 2)
        self.srd(SRD_A, P_WS, WS_KVF, WS_KVF_SZ)
        A("v_lshlrev_b32 v2, 4, v1")
        A(f"s_lshl_b32 {s(sT0)}, {s(sG)}, 14")
        KV = 164
        for f in range(16):
            A(f"buffer_load_dwordx4 {v(KV+4*f,4)}, v2, {s(SRD_A,4)}, {s(sT0)} offen offset:{(f & 3)*1024} sc1")
            if f & 3 == 3 and f < 15: A(f"s_add_u32 {s(sT0)}, {s(sT0)}, 4096")
        NUM, DEN = 96, 116
        plan = [(0, 0, True), (1, 0, True), (1, 4, False), (2, 2, True), (2, 6, False), (3, 4, True), (3, 8, False), (4, 6, True)]
        A("s_waitcnt vmcnt(8)")
        for f, (j, boff, first) in enumerate(plan):
            A(f"v_mfma_f32_16x16x32_bf16 {v(NUM+4*j,4)}, {v(KV+4*f,4)}, {v(PQ+boff,4)}, {'0' if first else v(NUM+4*j,4)}")
        A("s_waitcnt vmcnt(0)")
        for f, (j, boff, first) in enumerate(plan):
            A(f"v_mfma_f32_16x16x32_bf16 {v(DEN+4*j,4)}, {v(KV+32+4*f,4)}, {v(PQ+boff,4)}, {'0' if first else v(DEN+4*j,4)}")
        self.srd(SRD_B, P_WS, WS_O, WS_O_SZ)
        A(f"s_lshl_b32 {s(sT0)}, {s(sR)}, 2")
        A(f"s_add_u32 {s(sT0)}, {s(sT0)}, {s(sW)}")
        A(f"s_mul_i32 {s(sT0)}, {s(sT0)}, {20*1024}")
        A(f"s_mul_i32 {s(sT1)}, {s(sG)}, 5")
        for j in range(5):
            for r in range(4):
                A(f"v_add_f32 v{DEN+4*j+r}, 0x358637bd, v{DEN+4*j+r}")
            for r in range(4):
                A(f"v_rcp_f32 v{DEN+4*j+r}, v{DEN+4*j+r}")
            for r in range(4):
                A(f"v_mul_f32 v{NUM+4*j+r}, v{NUM+4*j+r}, v{DEN+4*j+r}")
            A(f"v_cvt_pk_bf16_f32 v{NUM+4*j}, v{NUM+4*j}, v{NUM+4*j+1}")
            A(f"v_cvt_pk_bf16_f32 v{NUM+4*j+1}, v{NUM+4*j+2}, v{NUM+4*j+3}")
            A(f"s_add_u32 {s(sT2)}, {s(sT1)}, {j}")
            A(f"s_lshr_b32 {s(sT3)}, {s(sT2)}, 1")
            A(f"s_lshl_b32 {s(sT3)}, {s(sT3)}, 10")
            A(f"s_and_b32 {s(sT2)}, {s(sT2)}, 1")
            A(f"s_lshl_b32 {s(sT2)}, {s(sT2)}, 3")
            A(f"s_add_u32 {s(sT2)}, {s(sT2)}, {s(sT3)}")
            A(f"s_add_u32 {s(sT2)}, {s(sT2)}, {s(sT0)}")
            A(f"buffer_store_dwordx2 {v(NUM+4*j,2)}, v2, {s(SRD_B,4)}, {s(sT2)} offen sc1")
        A("s_waitcnt vmcnt(0)")
        A("s_barrier")
        A(f"s_add_u32 {s(sT0)}, {s(sR)}, {C_O}")
        self.signal(sT0, 4)

    def reduce4(self, ACC, OUT):
        A = self.A
        A(f"s_mul_i32 {s(sT0)}, {s(sW)}, 6144")
        A(f"s_add_u32 {s(sT0)}, {s(sT0)}, {RED3}")
        A(f"v_lshl_add_u32 v2, v1, 4, {s(sT0)}")
        A(f"v_add_u32 v3, 49152, v2")
        for tt in range(6):
            for ct in range(4):
                dest = (tt // 3) * 2 + (ct >> 1); idx = (tt % 3) * 2 + (ct & 1)
                A(f"ds_write_b128 v{2 + (dest >> 1)}, {v(ACC + (tt*4+ct)*4, 4)} offset:{(dest & 1)*24576 + idx*1024}")
        A(f"s_mul_i32 {s(sT0)}, {s(sW)}, 24576")
        A(f"s_add_u32 {s(sT0)}, {s(sT0)}, {RED3}")
        A(f"v_lshl_add_u32 v2, v1, 4, {s(sT0)}")
        A("s_waitcnt lgkmcnt(0)")
        A("s_barrier")
        for src in range(4):
            for idx in range(6):
                A(f"ds_read_b128 {v(ACC + (src*6+idx)*4, 4)}, v2 offset:{src*6144 + idx*1024}")
            if src >= 1: A("s_waitcnt lgkmcnt(6)") if src < 3 else None
        A("s_waitcnt lgkmcnt(0)")
        for k in range(24):
            A(f"v_add_f32 v{ACC+k}, v{ACC+k}, v{ACC+24+k}")
            A(f"v_add_f32 v{ACC+48+k}, v{ACC+48+k}, v{ACC+72+k}")
        for k in range(24):
            A(f"v_add_f32 v{OUT+k}, v{ACC+k}, v{ACC+48+k}")

    def p3(self):
        A = self.A
        Lend = A.newlabel('p3end')
        A(f"s_cmp_eq_u32 {s(sV3)}, 0")
        A(f"s_cbranch_scc1 {Lend}")
        ACC, XR, OUT = 16, 112, 124
        A("v_and_b32 v2, 15, v1")
        A("v_mul_u32_u24 v2, 1280, v2")
        A("v_lshrrev_b32 v3, 4, v1")
        A(f"v_lshl_add_u32 v{VXR}, v3, 3, v2")
        A(f"s_lshr_b32 {s(sT0)}, {s(sW)}, 1")
        A(f"s_mul_i32 {s(sT0)}, {s(sT0)}, 3")
        A(f"s_mul_i32 {s(sT1)}, {s(sR3)}, 6")
        A(f"s_add_u32 {s(sTT)}, {s(sT0)}, {s(sT1)}")
        A(f"s_mul_i32 {s(sT0)}, {s(sTT)}, {16*1280}")
        A(f"s_lshl_b32 {s(sT1)}, {s(sC3)}, 7")
        A(f"s_add_u32 {s(sT0)}, {s(sT0)}, {s(sT1)}")
        A(f"s_and_b32 {s(sT1)}, {s(sW)}, 1")
        A(f"s_lshl_b32 {s(sT1)}, {s(sT1)}, 6")
        A(f"s_add_u32 {s(sXO)}, {s(sT0)}, {s(sT1)}")
        A(f"s_mov_b32 {s(sT0)}, {s(sXO)}")
        for i in range(3):
            for c in range(2):
                A(f"buffer_load_dwordx2 {v(XR+4*i+2*c,2)}, v{VXR}, {s(SRD_X,4)}, {s(sT0)} offen offset:{32*c}")
            if i < 2: A(f"s_add_u32 {s(sT0)}, {s(sT0)}, {16*1280}")
        def setup():
            A(f"s_mul_i32 {s(sT0)}, {s(sR3)}, 3")
            A(f"s_lshr_b32 {s(sT0)}, {s(sT0)}, 1")
            A(f"v_add_u32 v2, {s(sT0)}, v1")
            A("v_min_u32 v2, 31, v2")
            A(f"v_add_u32 v2, {C_O}, v2")
            A("v_lshlrev_b32 v2, 7, v2")
        self.poll(SRD_CNT, setup, 2, 8, 2)
        self.srd(SRD_A, P_WS, WS_O, WS_O_SZ)
        A("v_lshlrev_b32 v2, 4, v1")
        A(f"s_mul_i32 {s(sT0)}, {s(sR3)}, {6*20*1024}")
        A(f"s_mul_i32 {s(sT1)}, {s(sW)}, {5*1024}")
        A(f"s_add_u32 {s(sT0)}, {s(sT0)}, {s(sT1)}")
        OF = 80
        for mm in range(5):
            A(f"s_add_u32 {s(sT1)}, {s(sT0)}, {mm*1024}")
            for tt in range(6):
                A(f"buffer_load_dwordx4 {a(OF+(mm*6+tt)*4,4)}, v2, {s(SRD_A,4)}, {s(sT1)} offen sc1")
                if tt < 5: A(f"s_add_u32 {s(sT1)}, {s(sT1)}, {20*1024}")
        for mm in range(5):
            A(f"s_waitcnt vmcnt({6*(4-mm)})")
            for tt in range(6):
                for ct in range(4):
                    d = ACC + (tt*4+ct)*4
                    A(f"v_mfma_f32_16x16x32_bf16 {v(d,4)}, {a(mm*16+ct*4,4)}, {a(OF+(mm*6+tt)*4,4)}, {'0' if mm == 0 else v(d,4)}")
        self.reduce4(ACC, OUT)
        T = 16
        self.srd(SRD_B, P_WS, WS_H, WS_H_SZ)
        self.srd(SRD_A, P_WS, WS_HST, WS_HST_SZ)
        A(f"s_mul_i32 {s(sT0)}, {s(sTT)}, 20")
        A(f"s_lshl_b32 {s(sT1)}, {s(sC3)}, 1")
        A(f"s_add_u32 {s(sT0)}, {s(sT0)}, {s(sT1)}")
        A(f"s_and_b32 {s(sT1)}, {s(sW)}, 1")
        A(f"s_add_u32 {s(sT0)}, {s(sT0)}, {s(sT1)}")
        A(f"s_lshl_b32 {s(sT1)}, {s(sT0)}, 10")
        A(f"s_lshl_b32 {s(sT2)}, {s(sT0)}, 7")
        A("v_lshlrev_b32 v4, 4, v1")
        A("v_and_b32 v5, 15, v1")
        A("v_lshlrev_b32 v5, 3, v5")
        for i in range(3):
            for c in range(2):
                for hreg in range(2):
                    x = XR + 4*i + 2*c + hreg
                    o = OUT + (i*2+c)*4 + 2*hreg
                    A(f"v_lshlrev_b32 v{T}, 16, v{x}")
                    A(f"v_and_b32 v{T+1}, 0xffff0000, v{x}")
                    A(f"v_add_f32 v{o}, v{o}, v{T}")
                    A(f"v_add_f32 v{o+1}, v{o+1}, v{T+1}")
            o = OUT + i*8
            A(f"v_add_f32 v{T}, v{o}, v{o+1}")
            A(f"v_mul_f32 v{T+1}, v{o}, v{o}")
            A(f"v_fmac_f32 v{T+1}, v{o+1}, v{o+1}")
            for k in range(2, 8):
                A(f"v_add_f32 v{T}, v{T}, v{o+k}")
                A(f"v_fmac_f32 v{T+1}, v{o+k}, v{o+k}")
            for k in range(4):
                A(f"v_cvt_pk_bf16_f32 v{HRES+4*i+k}, v{o+2*k}, v{o+2*k+1}")
            A(f"buffer_store_dwordx4 {v(HRES+4*i,4)}, v4, {s(SRD_B,4)}, {s(sT1)} offen sc1")
            for k in range(4):
                A(f"v_accvgpr_write_b32 a{AHRES+4*i+k}, v{HRES+4*i+k}")
            for sw in ('v_permlane16_swap_b32', 'v_permlane32_swap_b32'):
                A(f"v_mov_b32 v{T+2}, v{T}")
                A(f"v_mov_b32 v{T+3}, v{T+1}")
                A(f"{sw} v{T}, v{T+2}")
                A(f"{sw} v{T+1}, v{T+3}")
                A(f"v_add_f32 v{T}, v{T}, v{T+2}")
                A(f"v_add_f32 v{T+1}, v{T+1}, v{T+3}")
            A(f"v_mov_b32 v{T+4+2*i}, v{T}")
            A(f"v_mov_b32 v{T+5+2*i}, v{T+1}")
            A("s_mov_b64 exec, 0xffff")
            A(f"buffer_store_dwordx2 {v(T+4+2*i,2)}, v5, {s(SRD_A,4)}, {s(sT2)} offen sc1")
            A("s_mov_b64 exec, -1")
            if i < 2:
                A(f"s_add_u32 {s(sT1)}, {s(sT1)}, {20*1024}")
                A(f"s_add_u32 {s(sT2)}, {s(sT2)}, {20*128}")
        A("s_waitcnt vmcnt(0)")
        A("s_barrier")
        A(f"s_add_u32 {s(sT0)}, {s(sR3)}, {C_H}")
        self.signal(sT0, 4)
        A.label(Lend)

    def p4(self):
        A = self.A
        Lend = A.newlabel('p4end')
        A(f"s_cmp_eq_u32 {s(sV4)}, 0")
        A(f"s_cbranch_scc1 {Lend}")
        ACC = 16
        CSR = 160
        T = 208
        WF = 0
        AF = 64
        D = 8
        A("s_barrier")
        self.issue_w4(8, 20)
        self.tr_addrs(VTR4, "0")
        for i in range(4): A(f"v_mov_b32 v{T+i}, 0x3f803f80")
        A("s_waitcnt vmcnt(0)")
        A("s_barrier")
        def wreads(buf, m):
            return [f"ds_read_b64_tr_b16 {a(WF+buf*32+(sec*4+ct)*4+2*h,2)}, v{VTR4+ct} offset:{(m % 8)*8192 + sec*4096 + h*2048}"
                    for sec in range(2) for ct in range(4) for h in range(2)]
        A(f"s_lshl_b32 {s(sT0)}, {s(sW)}, 0")
        A(f"v_mov_b32 v{T+8}, v{VTR4}")
        for ct in range(1, 4):
            A(f"s_cmp_eq_u32 {s(sW)}, {ct}")
            A(f"s_cselect_b64 vcc, -1, 0")
            A(f"v_cndmask_b32 v{T+8}, v{T+8}, v{VTR4+ct}, vcc")
        for m in range(20):
            if m in (8, 16): A(f"v_add_u32 v{T+8}, 65536, v{T+8}")
            b = 64 + (m & 1) * 8
            for sec in range(2):
                for h in range(2):
                    A(f"ds_read_b64_tr_b16 {a(b+sec*4+2*h,2)}, v{T+8} offset:{(m % 8)*8192 + sec*4096 + h*2048}")
            if m > 0:
                pb = 64 + ((m-1) & 1) * 8
                A("s_waitcnt lgkmcnt(4)")
                for sec in range(2):
                    A(f"v_mfma_f32_16x16x32_bf16 {v(T+12+4*sec,4)}, {a(pb+sec*4,4)}, {v(T,4)}, {'0' if m == 1 else v(T+12+4*sec,4)}")
        A("s_waitcnt lgkmcnt(0)")
        for sec in range(2):
            A(f"v_mfma_f32_16x16x32_bf16 {v(T+12+4*sec,4)}, {a(64+8+sec*4,4)}, {v(T,4)}, {v(T+12+4*sec,4)}")
        for t in wreads(0, 0): A(t)
        A("s_waitcnt lgkmcnt(0)")
        A("s_barrier")
        A("v_lshrrev_b32 v2, 4, v1")
        A("v_lshlrev_b32 v2, 4, v2")
        A(f"s_lshl_b32 {s(sT0)}, {s(sW)}, 6")
        A(f"v_add_u32 v3, {s(sT0)}, v2")
        A(f"ds_write_b128 v3, {v(T+12,4)}")
        A(f"ds_write_b128 v3, {v(T+16,4)} offset:256")
        A("s_waitcnt lgkmcnt(0)")
        A("s_barrier")
        for k in range(8):
            A(f"ds_read_b128 {v(CSR+4*k,4)}, v2 offset:{k*64}")
        def setup():
            A(f"s_lshl_b32 {s(sT0)}, {s(sR4)}, 4")
            A(f"s_mul_i32 {s(sT1)}, {s(sT0)}, 43")
            A(f"s_lshr_b32 {s(sT1)}, {s(sT1)}, 8")
            A(f"s_add_u32 {s(sT0)}, {s(sT0)}, 15")
            A(f"s_mul_i32 {s(sT0)}, {s(sT0)}, 43")
            A(f"s_lshr_b32 {s(sT0)}, {s(sT0)}, 8")
            A(f"v_add_u32 v2, {s(sT1)}, v1")
            A(f"v_min_u32 v2, {s(sT0)}, v2")
            A(f"v_add_u32 v2, {C_H}, v2")
            A("v_lshlrev_b32 v2, 7, v2")
        self.poll(SRD_CNT, setup, 4, 10, 2)
        self.srd(SRD_A, P_WS, WS_H, WS_H_SZ)
        self.srd(SRD_B, P_WS, WS_HST, WS_HST_SZ)
        A("v_lshlrev_b32 v2, 4, v1")
        VA = T + 20
        for i in range(4): A(f"v_add_u32 v{VA+i}, {i*20*1024}, v2")
        A(f"s_lshl_b32 {s(sT0)}, {s(sR4)}, 4")
        A(f"s_lshl_b32 {s(sT1)}, {s(sW)}, 2")
        A(f"s_add_u32 {s(sTT)}, {s(sT0)}, {s(sT1)}")
        A(f"s_mul_i32 {s(sK)}, {s(sTT)}, {20*1024}")
        def aloads(m):
            out = [f"buffer_load_dwordx4 {a(AF+(m % D)*16+4*i,4)}, v{VA+i}, {s(SRD_A,4)}, {s(sK)} offen sc1" for i in range(4)]
            out.append(f"s_add_u32 {s(sK)}, {s(sK)}, 1024")
            return out
        for m in range(D):
            for t in aloads(m): A(t)
        ST_ = 192
        A("v_and_b32 v3, 15, v1")
        A("v_lshlrev_b32 v3, 3, v3")
        A("v_lshrrev_b32 v4, 4, v1")
        A("v_mul_u32_u24 v4, 640, v4")
        A(f"v_add_u32 v{VA+4}, v3, v4")
        A(f"s_mul_i32 {s(sT0)}, {s(sTT)}, 2560")
        SP = 216 + 20
        nstat = 0
        self.stat_regs = []
        for i in range(4):
            for k in range(5):
                A(f"buffer_load_dwordx2 {a(192+(i*5+k)*2,2)}, v{VA+4}, {s(SRD_B,4)}, {s(sT0)} offen offset:{k*128} sc1")
                nstat += 1
            if i < 3: A(f"s_add_u32 {s(sT0)}, {s(sT0)}, 2560")
        outstanding_after = lambda m: 4 * (min(m + D, 20) - m - 1)
        for m in range(20):
            buf = m & 1
            issued = min(m + D, 20)
            extra = nstat if m < D else 0
            A(f"s_waitcnt vmcnt({min(63, 4*(issued - m - 1) + extra)}) lgkmcnt(0)")
            mf = []
            for i in range(4):
                for sec in range(2):
                    for ct in range(4):
                        d = ACC + (i*8 + sec*4 + ct)*4
                        mf.append(f"v_mfma_f32_16x16x32_bf16 {v(d,4)}, {a(WF+buf*32+(sec*4+ct)*4,4)}, {a(AF+(m % D)*16+4*i,4)}, {'0' if m == 0 else v(d,4)}")
            fill = []
            if m + 1 < 20:
                if (m + 1) in (8, 16):
                    fill += [f"v_add_u32 v{VTR4+ct}, 65536, v{VTR4+ct}" for ct in range(4)]
                fill += wreads(buf ^ 1, m + 1)
            body = interleave(mf, fill, per=1)
            for t in body: A(t)
            if m + D < 20:
                for t in aloads(m + D): A(t)
        A("s_barrier")
        self.issue_w5(0, 10)
        MEAN, RS2 = 192, 196
        for i in range(4):
            for k in range(10): A(f"v_accvgpr_read_b32 v{T+k}, a{192+i*10+k}")
            for k in range(1, 5):
                A(f"v_add_f32 v{T}, v{T}, v{T+2*k}")
                A(f"v_add_f32 v{T+1}, v{T+1}, v{T+2*k+1}")
            for sw in ('v_permlane16_swap_b32', 'v_permlane32_swap_b32'):
                A(f"v_mov_b32 v{T+2}, v{T}")
                A(f"v_mov_b32 v{T+3}, v{T+1}")
                A(f"{sw} v{T}, v{T+2}")
                A(f"{sw} v{T+1}, v{T+3}")
                A(f"v_add_f32 v{T}, v{T}, v{T+2}")
                A(f"v_add_f32 v{T+1}, v{T+1}, v{T+3}")
            A(f"v_mul_f32 v{MEAN+i}, {1.0/640!r}, v{T}")
            A(f"v_mul_f32 v{T+1}, {1.0/640!r}, v{T+1}")
            A(f"v_fma_f32 v{T+1}, -v{MEAN+i}, v{MEAN+i}, v{T+1}")
            A(f"v_max_f32 v{T+1}, 0, v{T+1}")
            A(f"v_add_f32 v{T+1}, 0x3727c5ac, v{T+1}")
            A(f"v_rcp_f32 v{RS2+i}, v{T+1}")
        self.srd(SRD_B, P_WS, WS_HH, WS_HH_SZ)
        A(f"s_mul_i32 {s(sT0)}, {s(sTT)}, 54")
        A(f"s_lshl_b32 {s(sT1)}, {s(sS4)}, 1")
        A(f"s_add_u32 {s(sT0)}, {s(sT0)}, {s(sT1)}")
        A(f"s_lshl_b32 {s(sT0)}, {s(sT0)}, 10")
        A("v_lshlrev_b32 v4, 4, v1")
        for i in range(4):
            for pair in range(2):
                P = T + 8 + ((i*2+pair) & 1) * 4
                for c in range(2):
                    ct = 2*pair + c
                    g = ACC + (i*8 + ct)*4; u = ACC + (i*8 + 4 + ct)*4
                    for r in range(4):
                        A(f"v_fma_f32 v{g+r}, -v{MEAN+i}, v{CSR+4*ct+r}, v{g+r}")
                        A(f"v_fma_f32 v{u+r}, -v{MEAN+i}, v{CSR+16+4*ct+r}, v{u+r}")
                    for r in range(4):
                        A(f"v_max_f32 v{g+r}, 0, v{g+r}")
                        A(f"v_mul_f32 v{u+r}, v{RS2+i}, v{u+r}")
                    for r in range(4):
                        A(f"v_mul_f32 v{g+r}, v{g+r}, v{u+r}")
                    A(f"v_cvt_pk_bf16_f32 v{P+2*c}, v{g}, v{g+1}")
                    A(f"v_cvt_pk_bf16_f32 v{P+2*c+1}, v{g+2}, v{g+3}")
                A(f"buffer_store_dwordx4 {v(P,4)}, v4, {s(SRD_B,4)}, {s(sT0)} offen offset:{pair*1024} sc1")
            if i < 3: A(f"s_add_u32 {s(sT0)}, {s(sT0)}, {54*1024}")
        A("s_waitcnt vmcnt(0)")
        A("s_barrier")
        A(f"s_add_u32 {s(sT0)}, {s(sR4)}, {C_HH}")
        self.signal(sT0, 4)
        Lj = A.newlabel('p4join')
        A(f"s_branch {Lj}")
        A.label(Lend)
        A("s_barrier")
        self.issue_w5(0, 10)
        A.label(Lj)

    def issue_w5(self, m0, m1):
        A = self.A
        L = A.newlabel('now5')
        A(f"s_cmp_eq_u32 {s(sV3)}, 0")
        A(f"s_cbranch_scc1 {L}")
        if m0 == 0:
            self.slab_voffset(VSLAB, 1280)
            self.srd(SRD_W, P_WD, 0, 1728 * 1280)
        A(f"s_mul_i32 {s(sT0)}, {s(sW)}, 14")
        A(f"s_add_u32 {s(sT0)}, {s(sT0)}, {m0}")
        A(f"s_mul_i32 {s(sT0)}, {s(sT0)}, {32*1280}")
        A(f"s_lshl_b32 {s(sT1)}, {s(sC3)}, 7")
        A(f"s_add_u32 {s(sT0)}, {s(sT0)}, {s(sT1)}")
        A(f"s_mul_i32 {s(sT1)}, {s(sW)}, 40960")
        for mm in range(m0, m1):
            for i in range(4):
                A(f"s_add_u32 m0, {s(sT1)}, {(mm-m0)*4096 + i*1024}")
                A(f"buffer_load_dwordx4 v{VSLAB}, {s(SRD_W,4)}, {s(sT0)} offen lds")
                A(f"s_add_u32 {s(sT0)}, {s(sT0)}, {8*1280}")
        A.label(L)

    def p5(self):
        A = self.A
        Lend = A.newlabel('p5end')
        A(f"s_cmp_eq_u32 {s(sV3)}, 0")
        A(f"s_cbranch_scc1 {Lend}")
        ACC, OUT = 16, 112
        AF = 136; D = 4
        A(f"s_mul_i32 {s(sT0)}, {s(sW)}, 40960")
        self.tr_addrs(VTR3, s(sT0))
        def w5reads(m0, m1):
            for mm in range(m0, m1):
                for ct in range(4):
                    for h in range(2):
                        A(f"ds_read_b64_tr_b16 {a(mm*16+ct*4+2*h,2)}, v{VTR3+ct} offset:{(mm-m0)*4096 + h*2048}")
                A("s_waitcnt lgkmcnt(8)")
            A("s_waitcnt lgkmcnt(0)")
        A("s_waitcnt vmcnt(0)")
        w5reads(0, 10)
        self.issue_w5(10, 14)
        A("s_waitcnt vmcnt(0)")
        w5reads(10, 14)
        def setup():
            A(f"s_mul_i32 {s(sT0)}, {s(sR3)}, 6")
            A(f"s_lshr_b32 {s(sT1)}, {s(sT0)}, 4")
            A(f"s_add_u32 {s(sT0)}, {s(sT0)}, 5")
            A(f"s_min_u32 {s(sT0)}, {s(sT0)}, 127")
            A(f"s_lshr_b32 {s(sT0)}, {s(sT0)}, 4")
            A(f"v_add_u32 v2, {s(sT1)}, v1")
            A(f"v_min_u32 v2, {s(sT0)}, v2")
            A(f"v_add_u32 v2, {C_HH}, v2")
            A("v_lshlrev_b32 v2, 7, v2")
        self.poll(SRD_CNT, setup, 2, 27, 2)
        self.srd(SRD_A, P_WS, WS_HH, WS_HH_SZ)
        A("v_lshlrev_b32 v2, 4, v1")
        VA = 232
        for tt in range(6): A(f"v_add_u32 v{VA+tt}, {tt*54*1024}, v2")
        A(f"s_mul_i32 {s(sT0)}, {s(sR3)}, {6*54}")
        A(f"s_mul_i32 {s(sT1)}, {s(sW)}, 14")
        A(f"s_add_u32 {s(sT0)}, {s(sT0)}, {s(sT1)}")
        A(f"s_lshl_b32 {s(sK)}, {s(sT0)}, 10")
        A(f"s_mul_i32 {s(sT2)}, {s(sW)}, 14")
        def aloads(mm):
            out = []
            if mm >= 12:
                out.append(f"s_add_u32 {s(sT3)}, {s(sT2)}, {mm}")
                out.append(f"s_cmp_lt_u32 {s(sT3)}, 54")
                out.append(f"s_cselect_b32 {s(sT3)}, {s(sK)}, 0x7ff00000")
                so = sT3
            else:
                so = sK
            out += [f"buffer_load_dwordx4 {v(AF+(mm % D)*24+4*tt,4)}, v{VA+tt}, {s(SRD_A,4)}, {s(so)} offen sc1" for tt in range(6)]
            out.append(f"s_add_u32 {s(sK)}, {s(sK)}, 1024")
            return out
        for mm in range(D):
            for t in aloads(mm): A(t)
        for mm in range(14):
            issued = min(mm + D, 14)
            A(f"s_waitcnt vmcnt({6*(issued - mm - 1)})")
            for tt in range(6):
                for ct in range(4):
                    d = ACC + (tt*4+ct)*4
                    A(f"v_mfma_f32_16x16x32_bf16 {v(d,4)}, {a(mm*16+ct*4,4)}, {v(AF+(mm % D)*24+4*tt,4)}, {'0' if mm == 0 else v(d,4)}")
            if mm + D < 14:
                for t in aloads(mm + D): A(t)
        A("s_barrier")
        self.reduce4(ACC, OUT)
        T = 16
        self.srd(SRD_B, P_OUT, 0, 2048 * 1280)
        A(f"s_mov_b32 {s(sT0)}, {s(sXO)}")
        for i in range(3):
            for c in range(2):
                o = OUT + (i*2+c)*4
                for hreg in range(2):
                    A(f"v_accvgpr_read_b32 v{T+2}, a{AHRES + 4*i + 2*c + hreg}")
                    A(f"v_lshlrev_b32 v{T}, 16, v{T+2}")
                    A(f"v_and_b32 v{T+1}, 0xffff0000, v{T+2}")
                    A(f"v_add_f32 v{o+2*hreg}, v{o+2*hreg}, v{T}")
                    A(f"v_add_f32 v{o+2*hreg+1}, v{o+2*hreg+1}, v{T+1}")
                A(f"v_cvt_pk_bf16_f32 v{o}, v{o}, v{o+1}")
                A(f"v_cvt_pk_bf16_f32 v{o+1}, v{o+2}, v{o+3}")
                A(f"buffer_store_dwordx2 {v(o,2)}, v{VXR}, {s(SRD_B,4)}, {s(sT0)} offen offset:{32*c}")
            if i < 2: A(f"s_add_u32 {s(sT0)}, {s(sT0)}, {16*1280}")
        A.label(Lend)

    def finish(self):
        A = self.A
        A.label("L_end")
        A("s_endpgm")

    def build(self):
        self.prologue()
        self.p1()
        if self.stop != 'p1':
            self.p2()
            if self.stop != 'p2':
                self.p3()
                if self.stop != 'p3':
                    self.p4()
                    if self.stop != 'p4':
                        self.p5()
        self.finish()
        n = self.A.fix_hazards()
        hdr = open('cdna_kernels/' + NAME + '.s.ref').read().split('; Override launch')[0]
        out = hdr
        out += "; Override launch geometry by editing the next line.\n"
        out += f"; @launch grid=(256,1,1) block=(256,1,1) lds={LDS_BYTES}\n"
        out += '.amdgcn_target "amdgcn-amd-amdhsa--gfx950"\n.text\n'
        out += f".globl {KNAME}\n.p2align 8\n.type {KNAME},@function\n{KNAME}:\n"
        out += self.A.text()
        out += f""".section .rodata,"a"
.p2align 6
.amdhsa_kernel {KNAME}
  .amdhsa_next_free_vgpr 512
  .amdhsa_next_free_sgpr 102
  .amdhsa_accum_offset 256
  .amdhsa_group_segment_fixed_size 0
  .amdhsa_kernarg_size 80
  .amdhsa_user_sgpr_count 2
  .amdhsa_user_sgpr_kernarg_segment_ptr 1
  .amdhsa_system_sgpr_workgroup_id_x 1
.end_amdhsa_kernel
"""
        return out, n

if __name__ == '__main__':
    dbg = '--dbg' in sys.argv
    stop = next((a.split('=')[1] for a in sys.argv if a.startswith('--stop=')), None)
    out = [a for a in sys.argv[1:] if not a.startswith('--')]
    g = G(dbg=dbg, stop=stop)
    txt, n = g.build()
    path = out[0] if out else 'k.s'
    open(path, 'w').write(txt)
    print('wrote', path, 'nops inserted', n, 'lines', txt.count('\n'))
```

```python
import re

def v(i, n=1):
    return f"v{i}" if n == 1 else f"v[{i}:{i+n-1}]"
def a(i, n=1):
    return f"a{i}" if n == 1 else f"a[{i}:{i+n-1}]"
def s(i, n=1):
    return f"s{i}" if n == 1 else f"s[{i}:{i+n-1}]"

_REG = re.compile(r'^(-|abs\()?([vas])(\d+|\[(\d+):(\d+)\])\)?$')

def regs_of(op):
    op = op.strip()
    if op in ('vcc', 'vcc_lo', 'vcc_hi'):
        return {('s', 'vcc')}
    if op == 'exec':
        return {('s', 'exec')}
    if op == 'm0':
        return {('s', 'm0')}
    m = _REG.match(op)
    if not m:
        return set()
    kind = m.group(2)
    if m.group(4) is not None:
        return {(kind, i) for i in range(int(m.group(4)), int(m.group(5)) + 1)}
    return {(kind, int(m.group(3)))}

TRANS = ('v_exp_f32', 'v_log_f32', 'v_rcp_f32', 'v_rsq_f32', 'v_sqrt_f32', 'v_sin_f32', 'v_cos_f32', 'v_rcp_iflag_f32')

class Ins:
    __slots__ = ('text', 'mn', 'ops', 'reads', 'writes', 'kind', 'passes', 'states', 'mods', 'srcC', 'srcAB')
    def __init__(self, text):
        self.text = text
        t = text.split(';')[0].strip()
        self.kind = 'other'
        self.reads = set(); self.writes = set(); self.passes = 0; self.states = 1
        self.srcC = set(); self.srcAB = set()
        if not t or t.endswith(':') or t.startswith('.'):
            self.kind = 'label' if t.endswith(':') else 'meta'
            self.mn = t; self.ops = []; self.states = 0; self.mods = ''
            return
        parts = t.split(None, 1)
        self.mn = mn = parts[0]
        rest = parts[1] if len(parts) > 1 else ''
        toks = []; depth = 0; cur = ''
        for ch in rest:
            if ch in '[(': depth += 1
            if ch in '])': depth -= 1
            if ch == ',' and depth == 0:
                toks.append(cur.strip()); cur = ''
            else:
                cur += ch
        if cur.strip(): toks.append(cur.strip())
        mods = ''
        if toks:
            last = toks[-1].split()
            toks[-1] = last[0]
            mods = ' '.join(last[1:])
        self.ops = toks; self.mods = mods
        R = lambda ops: set().union(*[regs_of(o) for o in ops]) if ops else set()
        if mn.startswith('v_mfma'):
            self.kind = 'mfma'
            self.passes = 8 if '32x32' in mn else 4
            self.writes = regs_of(toks[0]); self.srcAB = R(toks[1:3]); self.srcC = regs_of(toks[3])
            self.reads = self.srcAB | self.srcC
        elif mn.startswith('v_'):
            self.kind = 'valu'
            base = mn.replace('_e32', '').replace('_e64', '').replace('_dpp', '').replace('_sdwa', '')
            if base.startswith('v_cmp'):
                self.writes = regs_of(toks[0]); self.reads = R(toks[1:])
                if base.startswith('v_cmpx'): self.writes |= {('s', 'exec')}
            elif base.startswith('v_permlane') and 'swap' in base:
                self.writes = R(toks[:2]); self.reads = R(toks[:2]); self.kind = 'permlane'
            elif base in ('v_add_co_u32', 'v_sub_co_u32', 'v_addc_co_u32', 'v_subb_co_u32', 'v_div_scale_f32', 'v_mad_u64_u32'):
                self.writes = R(toks[:2]); self.reads = R(toks[2:])
            else:
                self.writes = regs_of(toks[0]); self.reads = R(toks[1:])
                if base in ('v_fmac_f32', 'v_dot2c_f32_bf16', 'v_pk_fmac_f16', 'v_writelane_b32'):
                    self.reads |= regs_of(toks[0])
                if base == 'v_cndmask_b32' and len(toks) == 3:
                    self.reads |= {('s', 'vcc')}
                if base in TRANS: self.kind = 'trans'
                if base in ('v_readfirstlane_b32', 'v_readlane_b32'): self.kind = 'readlane'
                if 'row_' in mods or 'quad_perm' in mods or 'wave_' in mods or mn.endswith('_dpp'):
                    self.kind = 'dpp'
        elif mn.startswith('ds_'):
            self.kind = 'ds'
            if mn.startswith('ds_read') or mn.startswith('ds_bpermute') or mn.startswith('ds_swizzle') or mn.startswith('ds_permute'):
                self.writes = regs_of(toks[0]); self.reads = R(toks[1:])
            else:
                self.reads = R(toks)
        elif mn.startswith('buffer_') or mn.startswith('global_'):
            self.kind = 'vmem'
            if mn in ('buffer_wbl2', 'buffer_inv'):
                pass
            elif 'lds' in mods.split() or 'load_lds' in mn:
                self.reads = R(toks) | {('s', 'm0')}; self.kind = 'ldsdma'
            elif '_load' in mn:
                self.writes = regs_of(toks[0]); self.reads = R(toks[1:])
            elif 'atomic' in mn:
                self.reads = R(toks)
                if 'sc0' in mods.split(): self.writes = regs_of(toks[0]) if mn.startswith('buffer') else regs_of(toks[0])
            else:
                self.reads = R(toks); self.kind = 'vstore'
                if mn.startswith('global_'):
                    self.srcC = regs_of(toks[1])
                else:
                    self.srcC = regs_of(toks[0])
                if not (mn.endswith('x4') or mn.endswith('x3')): self.srcC = set()
        elif mn == 's_nop':
            self.kind = 'nop'; self.states = int(toks[0], 0) + 1
        elif mn.startswith('s_'):
            self.kind = 'salu'
            if mn.startswith('s_cbranch') or mn == 's_branch':
                self.kind = 'branch'
            elif mn in ('s_waitcnt', 's_barrier', 's_endpgm', 's_sleep', 's_setprio'):
                pass
            elif mn.startswith('s_cmp') or mn.startswith('s_bitcmp'):
                self.reads = R(toks)
            elif mn.startswith('s_load') or mn in ('s_memtime', 's_memrealtime'):
                self.writes = regs_of(toks[0]); self.reads = R(toks[1:]); self.kind = 'smem'
            else:
                self.writes = regs_of(toks[0]); self.reads = R(toks[1:])
                if 'saveexec' in mn: self.writes |= {('s', 'exec')}

WINDOW = 24

def need(prod, cons):
    n = 0
    pw = prod.writes
    valu_like = ('valu', 'trans', 'readlane', 'dpp', 'permlane')
    if prod.kind in valu_like:
        vw = {r for r in pw if r[0] in 'va'}
        sw = {r for r in pw if r[0] == 's'}
        if cons.kind == 'mfma' and vw & cons.reads: n = max(n, 2)
        if cons.kind == 'mfma' and ('s', 'exec') in sw: n = max(n, 4)
        if cons.kind == 'readlane' and vw & cons.reads: n = max(n, 1)
        if cons.kind == 'dpp' and vw & cons.reads: n = max(n, 2)
        if cons.kind == 'dpp' and ('s', 'exec') in sw: n = max(n, 5)
        if cons.kind == 'permlane' and vw & cons.reads: n = max(n, 2)
        if cons.kind in ('vmem', 'vstore', 'ldsdma') and sw & cons.reads: n = max(n, 5)
        if cons.kind in valu_like and sw & cons.reads:
            n = max(n, 4 if cons.kind == 'readlane' and len(cons.ops) > 2 and regs_of(cons.ops[2]) & sw else 2)
        if cons.kind in ('salu', 'branch') and (sw & cons.reads or (('s', 'vcc') in sw and 'vcc' in cons.mn)
                                                 or (('s', 'exec') in sw and 'exec' in cons.mn)): n = max(n, 5)
        if prod.kind == 'trans' and cons.kind in valu_like + ('mfma', 'ds', 'vmem', 'vstore') and vw & cons.reads: n = max(n, 1)
    if prod.kind == 'mfma':
        big = {4: 8, 8: 12}[prod.passes]
        if cons.kind == 'mfma':
            if pw & cons.srcAB: n = max(n, big)
            if pw & cons.srcC and not (pw == cons.srcC and prod.passes == cons.passes):
                n = max(n, {4: 6, 8: 10}[prod.passes])
            if pw & cons.writes and not (pw == cons.writes): n = max(n, big)
        else:
            if pw & (cons.reads | cons.writes): n = max(n, big)
        if cons.kind in valu_like and prod.srcC & cons.writes: n = max(n, {4: 3, 8: 7}[prod.passes])
    if prod.kind == 'vstore' and prod.srcC:
        if prod.srcC & cons.writes: n = max(n, 2)
    if prod.kind == 'salu' and ('s', 'm0') in pw and cons.kind == 'ldsdma': n = max(n, 1)
    return n

VMEM_PREFIX = ('buffer_load', 'buffer_store', 'buffer_atomic', 'global_load', 'global_store', 'global_atomic')

class Asm:
    def __init__(self):
        self.L = []
        self.uid = 0
        self.vmseq = []
    def __call__(self, text):
        for line in text.split('\n'):
            line = line.strip()
            if not line: continue
            if line.startswith('WAITVM'):
                parts = line.split()
                tags = parts[1].split(',')
                last = max(k for k, t in enumerate(self.vmseq) if t in tags)
                n = min(63, len(self.vmseq) - 1 - last)
                self.L.append(f"s_waitcnt vmcnt({n})" + (" " + " ".join(parts[2:]) if len(parts) > 2 else ""))
                continue
            if line.startswith(VMEM_PREFIX):
                m = re.search(r';\s*@(\S+)', line)
                tag = m.group(1) if m else 'anon'
                if tag != 'nocount': self.vmseq.append(tag)
                line = line.split(';')[0].rstrip()
            self.L.append(line)
    def label(self, name): self.L.append(name + ':')
    def newlabel(self, stem):
        self.uid += 1
        return f"L_{stem}_{self.uid}"
    def comment(self, t): self.L.append('; ' + t)

    def fix_hazards(self):
        items = [(t, Ins(t) if not t.startswith(';') else None) for t in self.L]
        inserted = 0
        def mklabels():
            return {i.mn[:-1]: k for k, (t, i) in enumerate(items) if i is not None and i.kind == 'label'}
        labels = mklabels()
        def succ_path(start):
            out = []; k = start; tot = 0
            while k < len(items) and tot < WINDOW:
                i = items[k][1]
                if i is not None and i.kind not in ('label', 'meta'):
                    out.append(k); tot += i.states
                    if i.mn in ('s_branch', 's_endpgm', 's_setpc_b64'): break
                k += 1
            return out
        def check(p, path):
            dist = 0
            for ck in path:
                c = items[ck][1]
                n = need(p, c)
                if n > dist:
                    return ck, n - dist
                dist += c.states
                if dist >= WINDOW: break
            return None
        k = 0
        while k < len(items):
            p = items[k][1]
            if p is None or p.kind in ('label', 'meta', 'nop', 'branch') or not (p.writes or p.srcC):
                k += 1; continue
            base = succ_path(k + 1)
            paths = [base]
            for idx, bk in enumerate(base):
                b = items[bk][1]
                if b.kind == 'branch' and b.ops[0] in labels:
                    paths.append(base[:idx + 1] + succ_path(labels[b.ops[0]]))
            hit = None
            for path in paths:
                hit = check(p, path)
                if hit: break
            if hit:
                ck, cnt = hit
                while cnt > 0:
                    c = min(cnt, 16)
                    t = f"s_nop {c-1}"
                    items.insert(ck, (t, Ins(t))); inserted += 1; cnt -= c
                    if ck <= k: k += 1
                labels = mklabels()
                continue
            k += 1
        self.L = [t for t, _ in items]
        return inserted

    def text(self):
        out = []
        for t in self.L:
            out.append(t if (t.endswith(':') or t.startswith('.') or t.startswith(';')) else '    ' + t)
        return '\n'.join(out) + '\n'

def interleave(main, fill, per=None, start=0):
    out = []; n = len(main); f = list(fill); k = 0
    for i, m in enumerate(main):
        out.append(m)
        if i < start: continue
        if per is None:
            want = ((i - start + 1) * len(f) + (n - start) - 1) // (n - start)
        else:
            want = min(len(f), (i - start + 1) * per)
        while k < want:
            out.append(f[k]); k += 1
    out.extend(f[k:])
    return out

def weave(main, streams):
    slots = [[] for _ in range(len(main) + 1)]
    for groups, lo, hi in streams:
        n = len(groups)
        hi = min(hi, len(main)); lo = max(lo, 0)
        for k, g in enumerate(groups):
            pos = lo + int((k + 0.5) * (hi - lo) / n) if n else lo
            pos = min(max(pos, 0), len(main) - 1)
            slots[pos].extend(g if isinstance(g, (list, tuple)) else [g])
    out = []
    for i, m in enumerate(main):
        out.append(m)
        out.extend(slots[i])
    return out
```

```python
import sys, json
from asmlib import *

NAME = 'sequential_preLN__linear_attn_block__glu_gated_reglu__prompt'
KNAME = NAME + '_kernel'

WS_CNT, WS_CNT_SZ = 0x0, 0x4000
WS_KVF, WS_KVF_SZ = 0x10000, 8 * 16384
WS_HST, WS_HST_SZ = 0x40000, 128 * 20 * 128
WS_PART, WS_PART_SZ = 0x100000, 8 * 32 * 18 * 1024
WS_O, WS_O_SZ = 0x600000, 128 * 20 * 1024
WS_H, WS_H_SZ = 0x900000, 128 * 20 * 1024
WS_HH, WS_HH_SZ = 0xC00000, 128 * 54 * 1024
WS_DBG, WS_DBG_SZ = 0x1400000, 0x1000000
C_A, C_B, C_O, C_H, C_HH = 0, 8, 16, 48, 72
NZERO = 16
OOB = 0x7ff00000

JOBS = [(0,0),(0,1),(1,0),(1,1),(1,2),(2,1),(2,2),(2,3),(3,2),(3,3),(3,4),(4,3),(4,4)] + [(i,5) for i in range(5)]

SRD_X, SRD_W, SRD_W2, SRD_A, SRD_B, SRD_CNT, SRD_T, SRD_DBG = 4, 8, 12, 16, 20, 24, 28, 32
P_X, P_WQKV, P_WO, P_WG, P_WU, P_WD, P_OUT, P_DBG, P_WS = 40, 42, 44, 48, 50, 52, 54, 56, 58
sK2, sK3 = 46, 47
sW, sR, sG, sRHO, sXCD, sJ = 60, 61, 62, 63, 64, 65
sT0, sT1, sT2, sT3, sT4, sT5 = 66, 67, 68, 69, 70, 71
sWA, sWB, sK, sLD = 72, 73, 74, 75
sROT = 76
sMASK = 82
sC = 92
sC2 = 90
sC3, sR3, sV3, sR4, sS4, sV4, sTT, sXO = 94, 95, 96, 97, 98, 99, 100, 101
VSLAB, VSLAB4, VXR = 8, 9, 15
VTR3, VTR4 = 244, 248
AHRES = 240
AZERO = 253

LDS_BYTES = 163840
STAGE = 20480
def slot_of(sig): return (sig + 4) % 8
FR = 3 * STAGE
CS = FR + 22528
ST = CS + 1024
RED2 = 65536
RED3 = 90112
W4_EARLY = 11
MF = "v_mfma_f32_16x16x32_bf16"
LOG2E = 1.4426950408889634

def f32bits(x):
    import struct
    return struct.unpack('<I', struct.pack('<f', x))[0]

class G:
    def __init__(self, stop=None, dbg=False, prof=False, exp=''):
        self.exp = exp
        self.A = Asm(); self.stop = stop; self.dbg = dbg; self.prof = prof
        self.stamps = []

    def stamp(self, name):
        if not self.prof: return
        A = self.A
        i = len(self.stamps); self.stamps.append(name)
        A("s_memrealtime s[36:37]")
        A("s_memtime s[38:39]")
        A("v_accvgpr_read_b32 v7, a252" if i else "v_mov_b32 v7, 0")
        A("s_waitcnt lgkmcnt(0)")
        A(f"v_writelane_b32 v7, s36, {i}")
        A("v_accvgpr_write_b32 a252, v7")
        A("v_accvgpr_read_b32 v7, a254" if i else "v_mov_b32 v7, 0")
        A(f"v_writelane_b32 v7, s38, {i}")
        A("v_accvgpr_write_b32 a254, v7")

    def lstamp_pre(self, name):
        if not (self.prof and 'fine' in self.exp): return
        self.A("s_memrealtime s[36:37]")
        self._ls = name
    def lstamp_post(self):
        if not (self.prof and 'fine' in self.exp): return
        i = len(self.stamps); self.stamps.append(self._ls)
        self.A("v_accvgpr_read_b32 v7, a252")
        self.A(f"v_writelane_b32 v7, s36, {i}")
        self.A("v_accvgpr_write_b32 a252, v7")

    def dump_stamps(self):
        A = self.A
        L = A.newlabel('nost')
        A(f"s_cmp_lg_u32 {s(sW)}, 0")
        A(f"s_cbranch_scc1 {L}")
        self.srd(SRD_T, P_WS, WS_DBG + 0x800000, 0x20000)
        A("v_accvgpr_read_b32 v7, a252")
        A("v_lshlrev_b32 v2, 2, v1")
        A(f"s_lshl_b32 {s(sT0)}, s2, 8")
        A(f"buffer_store_dword v7, v2, {s(SRD_T,4)}, {s(sT0)} offen")
        A("v_accvgpr_read_b32 v6, a254")
        A(f"s_add_u32 {s(sT0)}, {s(sT0)}, 0x10000")
        A(f"buffer_store_dword v6, v2, {s(SRD_T,4)}, {s(sT0)} offen")
        A.label(L)

    def srd_l(self, dst, ptr, off, size):
        out = []
        if off:
            out += [f"s_add_u32 {s(dst)}, {s(ptr)}, {off}", f"s_addc_u32 {s(dst+1)}, {s(ptr+1)}, 0"]
        else:
            out += [f"s_mov_b32 {s(dst)}, {s(ptr)}", f"s_mov_b32 {s(dst+1)}, {s(ptr+1)}"]
        out += [f"s_mov_b32 {s(dst+2)}, {size}", f"s_mov_b32 {s(dst+3)}, 0x20000"]
        return out
    def srd(self, dst, ptr, off, size):
        for t in self.srd_l(dst, ptr, off, size): self.A(t)

    def prologue(self):
        A = self.A
        A("s_cmp_ge_u32 s2, 256")
        A("s_cbranch_scc1 L_end")
        A("s_load_dwordx16 s[40:55], s[0:1], 0")
        A("s_load_dwordx4 s[56:59], s[0:1], 64")
        A("v_and_b32 v1, 63, v0")
        self.stamp('start')
        A("v_lshrrev_b32 v2, 6, v0")
        A(f"s_and_b32 {s(sXCD)}, s2, 7")
        A(f"v_readfirstlane_b32 {s(sW)}, v2")
        A(f"s_lshr_b32 {s(sJ)}, s2, 3")
        A(f"s_and_b32 {s(sRHO)}, {s(sJ)}, 7")
        A(f"s_lshr_b32 {s(sT0)}, {s(sXCD)}, 1")
        A(f"s_lshl_b32 {s(sT0)}, {s(sT0)}, 3")
        A(f"s_add_u32 {s(sR)}, {s(sT0)}, {s(sRHO)}")
        A(f"s_and_b32 {s(sT0)}, {s(sXCD)}, 1")
        A(f"s_lshl_b32 {s(sT0)}, {s(sT0)}, 2")
        A(f"s_lshr_b32 {s(sT1)}, {s(sJ)}, 3")
        A(f"s_add_u32 {s(sG)}, {s(sT0)}, {s(sT1)}")

    def code_prefetch(self):
        A = self.A
        A("s_getpc_b64 s[36:37]")
        A.label("L_pc0")
        A(f"s_lshl_b32 {s(sT0)}, {s(sJ)}, 2")
        A(f"s_add_u32 {s(sT0)}, {s(sT0)}, {s(sW)}")
        A(f"s_lshl_b32 {s(sT0)}, {s(sT0)}, 10")
        A(f"s_min_u32 {s(sT0)}, {s(sT0)}, L_end-L_pc0-1024")
        A(f"v_lshl_add_u32 v6, v1, 4, {s(sT0)}")
        A("global_load_dwordx4 a[244:247], v6, s[36:37]")

    def zero_counters(self):
        A = self.A
        L = A.newlabel('nz')
        A(f"s_cmp_ge_u32 s2, {NZERO}")
        A(f"s_cbranch_scc1 {L}")
        A(f"s_cmp_lg_u32 {s(sW)}, 3")
        A(f"s_cbranch_scc1 {L}")
        A("v_lshlrev_b32 v2, 4, v1")
        A(f"s_lshl_b32 {s(sT0)}, s2, 10")
        for i in range(4): A(f"v_mov_b32 v{4+i}, 0")
        A(f"buffer_store_dwordx4 v[4:7], v2, {s(SRD_CNT,4)}, {s(sT0)} offen sc1 ; @nocount")
        A("s_waitcnt vmcnt(0)")
        A("v_mov_b32 v4, 1")
        A("v_mov_b32 v2, 0")
        A("s_mov_b64 exec, 1")
        A(f"buffer_atomic_add v4, v2, {s(SRD_DBG,4)}, 0 offen sc1 ; @nocount")
        A("s_mov_b64 exec, -1")
        A.label(L)

    def poll(self, srd, voff_setup, nlanes, target, tmp, barrier=True):
        A = self.A
        Lskip, Lp, Lgot = A.newlabel('pskip'), A.newlabel('poll'), A.newlabel('got')
        A(f"s_cmp_lg_u32 {s(sW)}, 0")
        A(f"s_cbranch_scc1 {Lskip}")
        voff_setup()
        A(f"s_mov_b64 exec, {(1 << nlanes) - 1}")
        A(f"s_mov_b32 {s(sT5)}, 0")
        A.label(Lp)
        A(f"buffer_load_dword v{tmp+1}, v{tmp}, {s(srd,4)}, 0 offen sc1 ; @nocount")
        A(f"s_add_u32 {s(sT5)}, {s(sT5)}, 1")
        A("s_waitcnt vmcnt(0)")
        A(f"v_cmp_gt_u32 vcc, {target}, v{tmp+1}")
        A(f"s_cbranch_vccz {Lgot}")
        A(f"s_cmp_lt_u32 {s(sT5)}, 0x40000")
        A(f"s_cbranch_scc1 {Lp}")
        A.label(Lgot)
        A("s_mov_b64 exec, -1")
        A.label(Lskip)
        if barrier: A("s_barrier")

    def signal(self, cidx_sgpr, tmp, wave=0):
        A = self.A
        L = A.newlabel('sig')
        A(f"s_cmp_lg_u32 {s(sW)}, {wave}")
        A(f"s_cbranch_scc1 {L}")
        A(f"s_lshl_b32 {s(sT5)}, {s(cidx_sgpr)}, 7")
        A(f"v_mov_b32 v{tmp}, {s(sT5)}")
        A(f"v_mov_b32 v{tmp+1}, 1")
        A("s_mov_b64 exec, 1")
        A(f"buffer_atomic_add v{tmp+1}, v{tmp}, {s(SRD_CNT,4)}, 0 offen sc1 ; @nocount")
        A("s_mov_b64 exec, -1")
        A.label(L)

    def p1(self):
        A = self.A
        XF = 16
        ACK, ACV = 96, 116
        INIT, SUM, GRAM, ONES = 136, 140, 144, 148
        KF = 152
        VTRW = 232
        VOW = 250; VOX = 255; VXA = 10
        A("v_lshrrev_b32 v2, 3, v1")
        A("v_and_b32 v3, 6, v2")
        A("v_and_b32 v4, 7, v1")
        A("v_xor_b32 v3, v3, v4")
        A("v_lshlrev_b32 v3, 4, v3")
        A("v_mul_u32_u24 v2, 1280, v2")
        A(f"v_add_u32 v{VOX}, v2, v3")
        A(f"s_lshl_b32 {s(sT0)}, {s(sR)}, 6")
        A(f"s_lshl_b32 {s(sT1)}, {s(sW)}, 4")
        A(f"s_add_u32 {s(sT0)}, {s(sT0)}, {s(sT1)}")
        A(f"s_mul_i32 {s(sT0)}, {s(sT0)}, 1280")
        A(f"s_lshl_b32 {s(sT1)}, {s(sRHO)}, 7")
        A(f"s_mul_i32 {s(sLD)}, {s(sW)}, {STAGE}")
        A(f"s_add_u32 {s(sT3)}, {s(sT0)}, {s(sT1)}")
        A(f"s_add_u32 {s(sT4)}, {s(sT0)}, 1280")
        A(f"s_mov_b32 {s(sC)}, 6554")
        A(f"s_mov_b32 {s(sC+1)}, 3840")
        A("s_waitcnt lgkmcnt(0)")
        self.srd(SRD_X, P_X, 0, 2048 * 1280)
        wv = []
        for i in range(5):
            wv += [f"v_add_u32 v2, {64*i}, v1", f"v_mul_lo_u32 v3, v2, {s(sC)}", "v_lshrrev_b32 v3, 16, v3",
                   "v_mul_u32_u24 v4, 10, v3", "v_sub_u32 v4, v2, v4", "v_and_b32 v5, 0x13, v3", "v_and_b32 v6, 4, v3",
                   "v_lshlrev_b32 v6, 1, v6", "v_and_b32 v7, 8, v3", "v_lshrrev_b32 v7, 1, v7", "v_or3_b32 v5, v5, v6, v7",
                   f"v_mul_lo_u32 v5, v5, {s(sC+1)}", f"v_lshl_add_u32 v{VOW+i}, v4, 4, v5"]
        wv += self.srd_l(SRD_W, P_WQKV, 0, 640 * 3840)
        wv += [f"s_and_b32 {s(sT0)}, {s(sW)}, 1", f"s_mul_i32 {s(sT0)}, {s(sT0)}, {32*3840}", f"s_mul_i32 {s(sT1)}, {s(sG)}, 160",
               f"s_add_u32 {s(sWB)}, {s(sT0)}, {s(sT1)}", f"s_lshr_b32 {s(sT0)}, {s(sW)}, 1", f"s_add_u32 {s(sT0)}, {s(sT0)}, 1",
               f"s_mul_i32 {s(sT0)}, {s(sT0)}, 1280", f"s_add_u32 {s(sWA)}, {s(sWB)}, {s(sT0)}"]
        xg = []
        for sl in range(10):
            xg.append([f"s_add_u32 m0, {s(sLD)}, {sl*1024}", f"s_add_u32 {s(sT2)}, {s(sT3)}, {8*1280}",
                       f"buffer_load_dwordx4 v{VOX}, {s(SRD_X,4)}, {s(sT3)} offen lds ; @x"])
            g = [f"s_add_u32 m0, {s(sLD)}, {(10+sl)*1024}", f"s_add_u32 {s(sT3)}, {s(sT3)}, 128",
                 f"buffer_load_dwordx4 v{VOX}, {s(SRD_X,4)}, {s(sT2)} offen lds ; @x"]
            if sl < 9:
                g += [f"s_cmp_ge_u32 {s(sT3)}, {s(sT4)}", f"s_cselect_b32 {s(sK2)}, 1280, 0", f"s_sub_u32 {s(sT3)}, {s(sT3)}, {s(sK2)}"]
            xg.append(g)
        per = -(-len(wv) // 20)
        for k, g in enumerate(xg):
            for t in g: A(t)
            for t in wv[k*per:(k+1)*per]: A(t)
        A(f"s_mul_i32 {s(sLD)}, {s(sW)}, 5120")

        def stage_groups(sig):
            pre = []
            if sig < 10:
                pre.append(f"s_add_u32 {s(sK)}, {s(sRHO)}, {sig}")
                base = sWA
            else:
                pre.append(f"s_lshr_b32 {s(sK)}, {s(sW)}, 1")
                pre.append(f"s_add_u32 {s(sK)}, {s(sK)}, {s(sRHO)}")
                pre.append(f"s_add_u32 {s(sK)}, {s(sK)}, {2*(sig-10)}")
                base = sWB
            pre += [f"s_cmp_ge_u32 {s(sK)}, 10", f"s_cselect_b32 {s(sK2)}, 10, 0", f"s_sub_u32 {s(sK)}, {s(sK)}, {s(sK2)}",
                    f"s_mul_i32 {s(sK)}, {s(sK)}, {64*3840}", f"s_add_u32 {s(sK)}, {s(sK)}, {s(base)}"]
            gs = []
            for i in range(5):
                g = [f"s_add_u32 m0, {s(sLD)}, {slot_of(sig)*STAGE + i*1024}", "s_nop 0",
                     f"buffer_load_dwordx4 v{VOW+i}, {s(SRD_W,4)}, {s(sK)} offen lds ; @st{sig}"]
                gs.append((pre if i == 0 else []) + g)
            return gs
        for sig in range(2): self.emit_groups(stage_groups(sig))
        self.code_prefetch()
        self.srd(SRD_CNT, P_WS, WS_CNT, WS_CNT_SZ)
        self.srd(SRD_DBG, P_DBG, 0, 256)
        self.srd(SRD_T, P_WS, WS_DBG, WS_DBG_SZ)
        A("v_bfe_u32 v2, v1, 2, 2")
        A("v_bfe_u32 v3, v1, 4, 1")
        A("v_lshl_add_u32 v2, v3, 2, v2")
        A("v_bfe_u32 v3, v1, 5, 1")
        A("v_lshl_add_u32 v2, v3, 4, v2")
        A("v_mul_u32_u24 v2, 160, v2")
        A("v_and_b32 v3, 3, v1")
        A(f"v_lshl_add_u32 v{VTRW}, v3, 3, v2")
        A(f"v_add_u32 v{VTRW+1}, {3*STAGE}, v{VTRW}")
        A(f"v_add_u32 v{VTRW+2}, {6*STAGE}, v{VTRW}")
        A("v_and_b32 v2, 15, v1")
        A("v_lshrrev_b32 v3, 3, v2")
        A("v_mul_u32_u24 v3, 10240, v3")
        A("v_and_b32 v4, 7, v2")
        A("v_lshl_add_u32 v3, v4, 7, v3")
        A(f"s_mul_i32 {s(sT0)}, {s(sW)}, {STAGE}")
        A(f"v_add_u32 v3, {s(sT0)}, v3")
        A("v_and_b32 v4, 6, v2")
        A("v_lshrrev_b32 v5, 4, v1")
        A("v_xor_b32 v6, v5, v4")
        A(f"v_lshl_add_u32 v{VXA}, v6, 4, v3")
        A("v_or_b32 v5, 4, v5")
        A("v_xor_b32 v6, v5, v4")
        A(f"v_lshl_add_u32 v{VXA+1}, v6, 4, v3")
        for i in range(4):
            A(f"v_mov_b32 v{ONES+i}, 0x3f803f80")
            A(f"v_mov_b32 v{INIT+i}, 0x358637bd")
        self.stamp('issued')
        A("WAITVM x")
        self.stamp('x_landed')
        for m in range(20):
            A(f"ds_read_b128 {v(XF+4*m,4)}, v{VXA+(m&1)} offset:{(m>>1)*1024}")
        self.map_p3()
        A("v_and_b32 v3, 3, v1")
        A(f"v_cmp_eq_u32 {s(sMASK,2)}, 1, v3")
        A(f"v_cmp_eq_u32 {s(sMASK+2,2)}, 2, v3")
        A(f"v_cmp_eq_u32 {s(sMASK+4,2)}, 3, v3")
        A("v_bfe_u32 v3, v1, 2, 2")
        A("v_lshrrev_b32 v4, 4, v1")
        A(f"v_cmp_eq_u32 {s(sMASK+6,2)}, v3, v4")
        A("s_waitcnt lgkmcnt(0)")
        A("s_barrier")
        mf = []
        for m in range(20):
            xf = v(XF+4*m,4)
            mf.append(f"{MF} {v(SUM,4)}, {v(ONES,4)}, {xf}, {'0' if m == 0 else v(SUM,4)}")
            mf.append(f"{MF} {v(GRAM,4)}, {xf}, {xf}, {'0' if m == 0 else v(GRAM,4)}")
        for t in weave(mf, [(stage_groups(2) + stage_groups(3), 0, 40)]): A(t)
        T = KF
        A(f"v_cndmask_b32 v{T}, v{GRAM}, v{GRAM+1}, {s(sMASK,2)}")
        A(f"v_cndmask_b32 v{T}, v{T}, v{GRAM+2}, {s(sMASK+2,2)}")
        A(f"v_cndmask_b32 v{T}, v{T}, v{GRAM+3}, {s(sMASK+4,2)}")
        A(f"v_cndmask_b32 v{T}, 0, v{T}, {s(sMASK+6,2)}")
        A(f"v_mov_b32 v{T+1}, v{T}")
        A(f"v_mul_f32 v{T+2}, {1.0/640!r}, v{SUM}")
        A(f"v_permlane16_swap_b32 v{T}, v{T+1}")
        A(f"v_add_f32 v{T}, v{T}, v{T+1}")
        A(f"v_mov_b32 v{T+1}, v{T}")
        A(f"s_mov_b32 {s(sC)}, 0xffff0000")
        A(f"v_permlane32_swap_b32 v{T}, v{T+1}")
        A(f"v_add_f32 v{T}, v{T}, v{T+1}")
        A(f"v_mul_f32 v{T}, {1.0/640!r}, v{T}")
        A(f"v_fma_f32 v{T}, -v{T+2}, v{T+2}, v{T}")
        A(f"v_max_f32 v{T}, 0, v{T}")
        A(f"v_add_f32 v{T}, 0x3727c5ac, v{T}")
        A(f"v_rsq_f32 v{T+4}, v{T}")
        A(f"v_mul_f32 v{T+6}, v{T+2}, v{T+4}")
        norm = []
        for r in range(80):
            x = XF + r; u = T + 8 + 2*(r & 3)
            norm.append([f"v_lshlrev_b32 v{u}, 16, v{x}", f"v_and_b32 v{u+1}, {s(sC)}, v{x}",
                         f"v_pk_fma_f32 {v(u,2)}, {v(u,2)}, {v(T+4,2)}, {v(T+6,2)} op_sel_hi:[1,0,0] neg_lo:[0,0,1] neg_hi:[0,0,1]",
                         f"v_cvt_pk_bf16_f32 v{x}, v{u}, v{u+1}"])
        nl = []
        for b in range(0, 80, 4):
            for k in range(4):
                for r in range(4): nl.append(norm[b+r][k])
        for t in weave(nl, [(stage_groups(4) + stage_groups(5), 8, 310)]): A(t)
        self.zero_counters()
        self.stamp('normed')

        def rd(buf, sec, j, sig, h, second):
            sl = slot_of(sig)
            dst = KF + buf*40 + sec*20 + j*4 + 2*second
            return f"ds_read_b64_tr_b16 {v(dst,2)}, v{VTRW + sl // 3} offset:{(sl % 3)*STAGE + (sec*2+h)*5120 + j*32 + second*1280}"
        def reads(buf, sig, h):
            return [rd(buf, sec, j, sig, h, sec2) for j in range(5) for sec in range(2) for sec2 in range(2)]
        def mfmas(buf, m):
            first = (m == 0)
            xf = v(XF+4*m,4)
            out = []
            for j in range(5):
                kf = v(KF+buf*40+j*4,4); vf = v(KF+buf*40+20+j*4,4)
                out.append(f"{MF} {v(ACK+4*j,4)}, {xf}, {kf}, {v(INIT,4) if first else v(ACK+4*j,4)}")
                out.append(f"{MF} {v(ACV+4*j,4)}, {xf}, {vf}, {'0' if first else v(ACV+4*j,4)}")
            return out

        A("WAITVM st0")
        A("s_barrier")
        for t in reads(0, 0, 0): A(t)
        pend = []
        for sig in range(10):
            A("s_waitcnt lgkmcnt(0)")
            for t in weave(mfmas(0, 2*sig), [([[x] for x in reads(1, sig, 1)], 0, 8), (pend, 6, 10)]): A(t)
            if sig == 3:
                A("v_mov_b32 v2, 0")
                A(f"buffer_load_dword a{AZERO}, v2, {s(SRD_DBG,4)}, 0 offen sc1 ; @zero")
            if sig < 9: A(f"WAITVM st{sig+1} lgkmcnt(0)")
            else: A("s_waitcnt lgkmcnt(0)")
            A("s_barrier")
            gs = stage_groups(sig + 6) if sig + 6 <= 11 else []
            nxt = [[x] for x in reads(0, sig + 1, 0)] if sig < 9 else []
            for t in weave(mfmas(1, 2*sig+1), [(nxt, 0, 8), (gs[:3], 5, 10)]): A(t)
            pend = gs[3:]
        self.stamp('p1a_loop')

        T = KF
        VFR = T
        Y, E, PK = T + 4, T + 8, T + 12
        A(f"s_lshr_b32 {s(sT1)}, {s(sW)}, 1")
        A(f"s_lshl_b32 {s(sT1)}, {s(sT1)}, 10")
        A(f"s_add_u32 {s(sT0)}, {s(sT1)}, {FR + 20*1024}")
        A(f"v_lshl_add_u32 v5, v1, 4, {s(sT0)}")
        A(f"ds_write_b128 v5, {v(ONES,4)}")
        A(f"s_and_b32 {s(sT2)}, {s(sW)}, 1")
        A(f"s_lshl_b32 {s(sT2)}, {s(sT2)}, 3")
        A(f"s_add_u32 {s(sT1)}, {s(sT1)}, {s(sT2)}")
        A(f"s_add_u32 {s(sT1)}, {s(sT1)}, {FR}")
        A(f"v_lshl_add_u32 v{VFR}, v1, 4, {s(sT1)}")
        A(f"s_mov_b32 {s(sC2)}, {f32bits(LOG2E)}")
        A(f"s_mov_b32 {s(sC2+1)}, {f32bits(LOG2E)}")
        A(f"s_mov_b32 {s(sC)}, 0x358637bd")
        def phi_tile(acc, dst, E=E):
            out = []
            for p in range(2): out.append(f"v_pk_mul_f32 {v(E+2*p,2)}, {v(acc+2*p,2)}, {s(sC2,2)}")
            for r in range(4): out.append(f"v_exp_f32 v{E+r}, v{E+r} clamp")
            for r in range(4): out.append(f"v_max_f32 v{acc+r}, {s(sC)}, v{acc+r}")
            for p in range(2): out.append(f"v_pk_add_f32 {v(acc+2*p,2)}, {v(acc+2*p,2)}, {v(E+2*p,2)}")
            out.append(f"v_cvt_pk_bf16_f32 v{dst}, v{acc}, v{acc+1}")
            out.append(f"v_cvt_pk_bf16_f32 v{dst+1}, v{acc+2}, v{acc+3}")
            return out
        self.phi_tile = phi_tile
        for j in range(5):
            b = PK + 4*(j & 1)
            A(f"v_cvt_pk_bf16_f32 v{b+2}, v{ACV+4*j}, v{ACV+4*j+1}")
            A(f"v_cvt_pk_bf16_f32 v{b+3}, v{ACV+4*j+2}, v{ACV+4*j+3}")
            A(f"ds_write_b64 v{VFR}, {v(b+2,2)} offset:{5*2048 + j*2048}")
            for t in phi_tile(ACK+4*j, b): A(t)
            A(f"ds_write_b64 v{VFR}, {v(b,2)} offset:{j*2048}")
        ia = sum(JOBS[k][0] << (3*k) for k in range(18))
        ib = sum(JOBS[k][1] << (3*k) for k in range(18))
        self.srd(SRD_B, P_WS, WS_PART, WS_PART_SZ)
        A(f"s_lshl_b32 {s(sT4)}, {s(sG)}, 5")
        A(f"s_add_u32 {s(sT4)}, {s(sT4)}, {s(sR)}")
        A(f"s_mul_i32 {s(sT4)}, {s(sT4)}, {18*1024}")
        A("v_lshlrev_b32 v2, 4, v1")
        JADDR = T + 20
        A(f"s_mul_i32 {s(sT1)}, {s(sW)}, 3")
        A(f"s_mov_b32 {s(sC)}, {ia & 0xffffffff}")
        A(f"s_mov_b32 {s(sC+1)}, {ia >> 32}")
        A(f"s_lshr_b64 {s(sC,2)}, {s(sC,2)}, {s(sT1)}")
        A(f"s_mov_b32 {s(sC2)}, {ib & 0xffffffff}")
        A(f"s_mov_b32 {s(sC2+1)}, {ib >> 32}")
        A(f"s_lshr_b64 {s(sC2,2)}, {s(sC2,2)}, {s(sT1)}")
        for q in range(5):
            A(f"s_and_b32 {s(sT2)}, {s(sC)}, 7")
            A(f"s_and_b32 {s(sT3)}, {s(sC2)}, 7")
            A(f"s_lshl_b32 {s(sT2)}, {s(sT2)}, 11")
            A(f"s_lshl_b32 {s(sT3)}, {s(sT3)}, 11")
            A(f"s_add_u32 {s(sT2)}, {s(sT2)}, {FR}")
            A(f"s_add_u32 {s(sT3)}, {s(sT3)}, {FR + 5*2048}")
            A(f"v_add_u32 v{JADDR+2*q}, {s(sT2)}, v2")
            A(f"v_add_u32 v{JADDR+2*q+1}, {s(sT3)}, v2")
            if q < 4:
                A(f"s_lshr_b64 {s(sC,2)}, {s(sC,2)}, 12")
                A(f"s_lshr_b64 {s(sC2,2)}, {s(sC2,2)}, 12")
        A("s_waitcnt lgkmcnt(0)")
        A("s_barrier")
        JF = T + 32
        JD = 96
        def jreads(q, base):
            return [f"ds_read_b128 {v(base,4)}, v{JADDR+2*q}", f"ds_read_b128 {v(base+4,4)}, v{JADDR+2*q+1}",
                    f"ds_read_b128 {v(base+8,4)}, v{JADDR+2*q} offset:1024", f"ds_read_b128 {v(base+12,4)}, v{JADDR+2*q+1} offset:1024"]
        for q in range(3):
            for t in jreads(q, JF + 16*q): A(t)
        A(f"s_lshl_b32 {s(sT0)}, {s(sW)}, 10")
        A(f"s_add_u32 {s(sT0)}, {s(sT0)}, {s(sT4)}")
        for q in range(5):
            b = JF + 16*(q % 3)
            A(f"s_waitcnt lgkmcnt({min(8, 4*(min(q+3,5)-q-1))})")
            A(f"{MF} {v(JD+4*q,4)}, {v(b,4)}, {v(b+4,4)}, 0")
            A(f"{MF} {v(JD+4*q,4)}, {v(b+8,4)}, {v(b+12,4)}, {v(JD+4*q,4)}")
            if q + 3 < 5:
                for t in jreads(q + 3, b): A(t)
        for q in range(5):
            if q == 4:
                A(f"s_cmp_lt_u32 {s(sW)}, 2")
                A(f"s_cselect_b32 {s(sT0)}, {s(sT0)}, {OOB}")
            A(f"buffer_store_dwordx4 {v(JD+4*q,4)}, v2, {s(SRD_B,4)}, {s(sT0)} offen sc1 ; @part")
            if q < 4: A(f"s_add_u32 {s(sT0)}, {s(sT0)}, 4096")
        self.stamp('p1a_epi')

        ACQ = 116
        QF = KF
        def rdq(buf, j, ks, second):
            sl = slot_of(10 + ks // 4)
            return f"ds_read_b64_tr_b16 {v(QF+buf*20+j*4+2*second,2)}, v{VTRW + sl // 3} offset:{(sl % 3)*STAGE + (ks % 4)*5120 + j*32 + second*1280}"
        def readsq(buf, ks): return [rdq(buf, j, ks, sec2) for j in range(5) for sec2 in range(2)]
        def mfq(buf, m):
            return [f"{MF} {v(ACQ+4*j,4)}, {v(QF+buf*20+j*4,4)}, {v(XF+4*m,4)}, {v(INIT,4) if m == 0 else v(ACQ+4*j,4)}" for j in range(5)]
        A("WAITVM st11")
        A("s_barrier")
        for t in readsq(0, 0): A(t)
        late = stage_groups(12) + stage_groups(13) + stage_groups(14)
        w3 = self.w3_groups()
        for ks in range(20):
            if ks in (7, 11, 15):
                A(f"WAITVM st{12 + (ks - 7)//4} lgkmcnt(0)")
                A("s_barrier")
            else:
                A("s_waitcnt lgkmcnt(0)")
            if ks == 5:
                A("WAITVM part")
                A("s_barrier")
                self.check_zero_done()
                A(f"s_add_u32 {s(sT0)}, {s(sG)}, {C_A}")
                self.signal(sT0, 2)
            side = [[x] for x in readsq((ks+1) & 1, ks+1)] if ks < 19 else []
            streams = [(side, 0, 4)]
            if ks < 5: streams.append((late[3*ks:3*ks+3], 1, 5))
            if ks >= 8:
                k0 = (ks - 8) * 2
                streams.append((w3[k0:k0+2], 2, 5))
            for t in weave(mfq(ks & 1, ks), streams): A(t)
        self.ACQ = ACQ
        self.stamp('p1b_loop')

    def check_zero_done(self):
        A = self.A
        L = A.newlabel('zok')
        A(f"v_accvgpr_read_b32 v2, a{AZERO}")
        A("s_nop 0")
        A(f"v_readfirstlane_b32 {s(sT0)}, v2")
        A(f"s_cmp_ge_u32 {s(sT0)}, {NZERO}")
        A(f"s_cbranch_scc1 {L}")
        self.poll(SRD_DBG, lambda: A("v_mov_b32 v2, 0"), 1, NZERO, 2, barrier=False)
        A.label(L)

    def q_epilogue(self):
        A = self.A
        PQ = self.PQ = 232
        A(f"s_mov_b32 {s(sC2)}, {f32bits(LOG2E)}")
        A(f"s_mov_b32 {s(sC2+1)}, {f32bits(LOG2E)}")
        A(f"s_mov_b32 {s(sC)}, 0x358637bd")
        for j in range(5):
            for t in self.phi_tile(self.ACQ+4*j, PQ+2*j, E=200 + 4*(j & 1)): A(t)
        A(f"v_mov_b32 v{PQ+10}, 0")
        A(f"v_mov_b32 v{PQ+11}, 0")
        if self.dbg:
            A(f"s_lshl_b32 {s(sT0)}, s2, 2")
            A(f"s_add_u32 {s(sT0)}, {s(sT0)}, {s(sW)}")
            A(f"s_mul_i32 {s(sT0)}, {s(sT0)}, {5*512}")
            A("v_lshlrev_b32 v2, 3, v1")
            for j in range(5):
                A(f"buffer_store_dwordx2 {v(PQ+2*j,2)}, v2, {s(SRD_T,4)}, {s(sT0)} offen offset:{j*512}")

    def map_p3(self):
        A = self.A
        A(f"s_lshr_b32 {s(sT0)}, {s(sXCD)}, 1")
        A(f"s_mul_i32 {s(sT1)}, {s(sJ)}, 52")
        A(f"s_lshr_b32 {s(sT1)}, {s(sT1)}, 8")
        A(f"s_mul_i32 {s(sT2)}, {s(sT1)}, 5")
        A(f"s_sub_u32 {s(sT2)}, {s(sJ)}, {s(sT2)}")
        A(f"s_and_b32 {s(sT3)}, {s(sXCD)}, 1")
        A(f"s_mul_i32 {s(sT3)}, {s(sT3)}, 5")
        A(f"s_add_u32 {s(sC3)}, {s(sT2)}, {s(sT3)}")
        A(f"s_mul_i32 {s(sT2)}, {s(sT0)}, 6")
        A(f"s_cmp_eq_u32 {s(sT0)}, 3")
        A(f"s_cselect_b32 {s(sT3)}, 1, 0")
        A(f"s_sub_u32 {s(sT2)}, {s(sT2)}, {s(sT3)}")
        A(f"s_add_u32 {s(sR3)}, {s(sT2)}, {s(sT1)}")
        A(f"s_cmp_ge_u32 {s(sT0)}, 2")
        A(f"s_cselect_b32 {s(sT3)}, 5, 6")
        A(f"s_cmp_lt_u32 {s(sT1)}, {s(sT3)}")
        A(f"s_cselect_b32 {s(sV3)}, 1, 0")
        A(f"s_lshr_b32 {s(sT0)}, {s(sXCD)}, 2")
        A(f"s_lshl_b32 {s(sT0)}, {s(sT0)}, 2")
        A(f"s_and_b32 {s(sT1)}, {s(sJ)}, 3")
        A(f"s_add_u32 {s(sR4)}, {s(sT0)}, {s(sT1)}")
        A(f"s_and_b32 {s(sT0)}, {s(sXCD)}, 3")
        A(f"s_lshr_b32 {s(sT1)}, {s(sJ)}, 2")
        A(f"s_mul_i32 {s(sT2)}, {s(sT0)}, 7")
        A(f"s_add_u32 {s(sS4)}, {s(sT2)}, {s(sT1)}")
        A(f"s_cmp_eq_u32 {s(sT0)}, 3")
        A(f"s_cselect_b32 {s(sT2)}, 6, 7")
        A(f"s_cmp_lt_u32 {s(sT1)}, {s(sT2)}")
        A(f"s_cselect_b32 {s(sV4)}, 1, 0")

    def slab_voffset_l(self, dst, rowstride):
        return ["v_lshrrev_b32 v2, 3, v1", "v_bfe_u32 v3, v1, 4, 2", "v_lshlrev_b32 v3, 1, v3", "v_and_b32 v4, 7, v1",
                "v_xor_b32 v3, v3, v4", "v_lshlrev_b32 v3, 4, v3", f"v_mul_u32_u24 v2, {rowstride}, v2",
                f"v_add_u32 v{dst}, v2, v3"]

    def tr_addrs(self, dst, base, perm_sgpr=None):
        A = self.A
        A("v_bfe_u32 v2, v1, 2, 2")
        A("v_lshrrev_b32 v3, 4, v1")
        A("v_lshl_add_u32 v2, v3, 2, v2")
        A("v_bfe_u32 v3, v2, 1, 2")
        A("v_and_b32 v4, 3, v1")
        A("v_lshlrev_b32 v4, 3, v4")
        A("v_lshl_add_u32 v2, v2, 7, v4")
        A(f"v_add_u32 v2, {base}, v2")
        if perm_sgpr is not None: A(f"v_xor_b32 v3, {s(perm_sgpr)}, v3")
        for ct in range(4):
            A(f"v_xor_b32 v4, {ct}, v3")
            A(f"v_lshl_add_u32 v{dst+ct}, v4, 5, v2")

    def w3_groups(self):
        pre = self.slab_voffset_l(VSLAB, 1280) + self.srd_l(SRD_W2, P_WO, 0, 640 * 1280) + [
            f"s_mul_i32 {s(sK2)}, {s(sW)}, {160*1280}", f"s_lshl_b32 {s(sK3)}, {s(sC3)}, 7",
            f"s_add_u32 {s(sK2)}, {s(sK2)}, {s(sK3)}",
            f"s_cmp_eq_u32 {s(sV3)}, 0", f"s_cselect_b32 {s(sK2)}, {OOB}, {s(sK2)}",
            f"s_add_u32 {s(sK3)}, {s(sW)}, 4", f"s_mul_i32 {s(sK3)}, {s(sK3)}, {STAGE}"]
        gs = []
        for i in range(20):
            g = [f"s_add_u32 m0, {s(sK3)}, {i*1024}", "s_nop 0",
                 f"buffer_load_dwordx4 v{VSLAB}, {s(SRD_W2,4)}, {s(sK2)} offen lds",
                 f"s_add_u32 {s(sK2)}, {s(sK2)}, {8*1280}"]
            gs.append((pre if i == 0 else []) + g)
        gs += [[] for _ in range(4)]
        return gs

    def w4_groups(self, m0, m1):
        pre = [f"s_lshl_b32 {s(sK2)}, {s(sW)}, 3", f"s_add_u32 {s(sK2)}, {s(sK2)}, {32*m0}",
               f"s_mul_i32 {s(sK2)}, {s(sK2)}, 3456", f"s_lshl_b32 {s(sK3)}, {s(sS4)}, 7",
               f"s_add_u32 {s(sK2)}, {s(sK2)}, {s(sK3)}",
               f"s_cmp_eq_u32 {s(sV4)}, 0", f"s_cselect_b32 {s(sK2)}, {OOB}, {s(sK2)}",
               f"s_lshl_b32 {s(sK3)}, {s(sW)}, 10"]
        gs = []
        for m in range(m0, m1):
            gs.append((pre if m == m0 else []) + [f"s_add_u32 m0, {s(sK3)}, {m*8192}", "s_nop 0",
                      f"buffer_load_dwordx4 v{VSLAB4}, {s(SRD_W,4)}, {s(sK2)} offen lds ; @w4"])
            gs.append([f"s_add_u32 m0, {s(sK3)}, {m*8192 + 4096}", "s_nop 0",
                      f"buffer_load_dwordx4 v{VSLAB4}, {s(SRD_W2,4)}, {s(sK2)} offen lds ; @w4",
                      f"s_add_u32 {s(sK2)}, {s(sK2)}, {32*3456}"])
        return gs

    def w5_groups(self, m0, m1, tag):
        base = 81920 if 5 <= m0 < 10 else 0
        pre = []
        if m0 == 0:
            pre += self.srd_l(SRD_W, P_WD, 0, 1728 * 1280)
        pre += [f"s_mul_i32 {s(sK2)}, {s(sW)}, 14", f"s_add_u32 {s(sK2)}, {s(sK2)}, {m0}",
                f"s_mul_i32 {s(sK2)}, {s(sK2)}, {32*1280}", f"s_lshl_b32 {s(sK3)}, {s(sC3)}, 7",
                f"s_add_u32 {s(sK2)}, {s(sK2)}, {s(sK3)}",
                f"s_cmp_eq_u32 {s(sV3)}, 0", f"s_cselect_b32 {s(sK2)}, {OOB}, {s(sK2)}",
                f"s_mul_i32 {s(sK3)}, {s(sW)}, 20480"]
        gs = []
        for mm in range(m0, m1):
            for i in range(4):
                gs.append((pre if (mm == m0 and i == 0) else []) + [f"s_add_u32 m0, {s(sK3)}, {base + (mm-m0)*4096 + i*1024}", "s_nop 0",
                          f"buffer_load_dwordx4 v{VSLAB}, {s(SRD_W,4)}, {s(sK2)} offen lds ; @{tag}",
                          f"s_add_u32 {s(sK2)}, {s(sK2)}, {8*1280}"])
        return gs

    def emit_groups(self, gs):
        for g in gs:
            for t in g: self.A(t)

    def p2(self):
        A = self.A
        half_items = []
        for (j, i0, i1) in [(0,0,1),(1,0,1),(1,2,7),(2,1,2),(2,3,7),(3,2,3),(3,4,7),(4,3,4)]:
            half_items += [(i0, j), (i1, j)]
        ti = sum(h[0] << (3*k) for k, h in enumerate(half_items))
        tj = sum(h[1] << (3*k) for k, h in enumerate(half_items))
        A(f"s_and_b32 {s(sT0)}, {s(sR)}, 15")
        A(f"s_mul_i32 {s(sT0)}, {s(sT0)}, 3")
        A(f"s_mov_b32 {s(sC)}, {ti & 0xffffffff}")
        A(f"s_mov_b32 {s(sC+1)}, {ti >> 32}")
        A(f"s_lshr_b64 {s(sC,2)}, {s(sC,2)}, {s(sT0)}")
        A(f"s_and_b32 {s(sT1)}, {s(sC)}, 7")
        A(f"s_mov_b32 {s(sC)}, {tj & 0xffffffff}")
        A(f"s_mov_b32 {s(sC+1)}, {tj >> 32}")
        A(f"s_lshr_b64 {s(sC,2)}, {s(sC,2)}, {s(sT0)}")
        A(f"s_and_b32 {s(sT2)}, {s(sC)}, 7")
        A(f"s_lshl_b32 {s(sT3)}, {s(sT1)}, 1")
        A(f"s_add_u32 {s(sT3)}, {s(sT3)}, {s(sT2)}")
        A(f"s_add_u32 {s(sT4)}, {s(sT1)}, 13")
        A(f"s_cmp_ge_u32 {s(sR)}, 16")
        A(f"s_cselect_b32 {s(sT3)}, {s(sT4)}, {s(sT3)}")
        A(f"s_cmp_eq_u32 {s(sT1)}, 7")
        A(f"s_cselect_b32 {s(sT3)}, 0, {s(sT3)}")
        self.srd(SRD_A, P_WS, WS_PART, WS_PART_SZ)
        A(f"s_lshl_b32 {s(sT4)}, {s(sG)}, 5")
        A(f"s_lshl_b32 {s(sT0)}, {s(sW)}, 3")
        A(f"s_add_u32 {s(sT4)}, {s(sT4)}, {s(sT0)}")
        A(f"s_mul_i32 {s(sT4)}, {s(sT4)}, 18")
        A(f"s_add_u32 {s(sT4)}, {s(sT4)}, {s(sT3)}")
        A(f"s_lshl_b32 {s(sK)}, {s(sT4)}, 10")
        A(f"s_mov_b32 {s(sC)}, 3277")
        A("v_and_b32 v3, 15, v1")
        A(f"s_lshl_b32 {s(sT0)}, {s(sT2)}, 4")
        A(f"v_add_u32 v3, {s(sT0)}, v3")
        A(f"v_mul_lo_u32 v3, v3, {s(sC)}")
        A("v_lshrrev_b32 v3, 16, v3")
        A("v_lshrrev_b32 v4, 4, v1")
        A(f"s_lshl_b32 {s(sT0)}, {s(sT1)}, 4")
        A(f"v_lshl_add_u32 v4, v4, 2, {s(sT0)}")
        for r in range(4):
            A(f"v_add_u32 v5, {r}, v4")
            A(f"v_mul_lo_u32 v5, v5, {s(sC)}")
            A("v_lshrrev_b32 v5, 16, v5")
            A(f"v_cmp_eq_u32 {s(sMASK+2*r,2)}, v5, v3")
        def setupA():
            A(f"s_add_u32 {s(sT0)}, {s(sG)}, {C_A}")
            A(f"s_lshl_b32 {s(sT0)}, {s(sT0)}, 7")
            A(f"v_mov_b32 v2, {s(sT0)}")
        self.poll(SRD_CNT, setupA, 1, 32, 2)
        self.stamp('cA')
        T = 164
        A("v_lshlrev_b32 v6, 4, v1")
        for k in range(8):
            A(f"buffer_load_dwordx4 {v(T+4*k,4)}, v6, {s(SRD_A,4)}, {s(sK)} offen sc1")
            if k < 7: A(f"s_add_u32 {s(sK)}, {s(sK)}, {18*1024}")
        self.q_epilogue()
        self.stamp('q_epi')
        A("s_waitcnt vmcnt(0)")
        for k in (4, 2, 1):
            for b in range(k):
                for p in range(2):
                    A(f"v_pk_add_f32 {v(T+4*b+2*p,2)}, {v(T+4*b+2*p,2)}, {v(T+4*(b+k)+2*p,2)}")
        A(f"s_lshl_b32 {s(sT0)}, {s(sW)}, 10")
        A(f"s_add_u32 {s(sT0)}, {s(sT0)}, {RED2}")
        A(f"v_add_u32 v3, {s(sT0)}, v6")
        A(f"ds_write_b128 v3, {v(T,4)}")
        A("s_waitcnt lgkmcnt(0)")
        A("s_barrier")
        Lr = A.newlabel('red')
        A(f"s_cmp_lg_u32 {s(sW)}, 0")
        A(f"s_cbranch_scc1 {Lr}")
        A(f"v_add_u32 v3, {RED2}, v6")
        for k in range(4):
            A(f"ds_read_b128 {v(T+4*k,4)}, v3 offset:{k*1024}")
        self.srd(SRD_B, P_WS, WS_KVF, WS_KVF_SZ)
        A(f"s_lshl_b32 {s(sT0)}, {s(sG)}, 14")
        A(f"s_lshr_b32 {s(sT1)}, {s(sR)}, 1")
        A(f"s_lshl_b32 {s(sT1)}, {s(sT1)}, 10")
        A(f"s_add_u32 {s(sT0)}, {s(sT0)}, {s(sT1)}")
        A(f"s_and_b32 {s(sT1)}, {s(sR)}, 1")
        A(f"s_lshl_b32 {s(sT1)}, {s(sT1)}, 3")
        A(f"s_add_u32 {s(sT0)}, {s(sT0)}, {s(sT1)}")
        A("s_waitcnt lgkmcnt(0)")
        for p in range(2):
            A(f"v_pk_add_f32 {v(T+2*p,2)}, {v(T+2*p,2)}, {v(T+4+2*p,2)}")
            A(f"v_pk_add_f32 {v(T+8+2*p,2)}, {v(T+8+2*p,2)}, {v(T+12+2*p,2)}")
        for p in range(2):
            A(f"v_pk_add_f32 {v(T+2*p,2)}, {v(T+2*p,2)}, {v(T+8+2*p,2)}")
        for r in range(4):
            A(f"v_cndmask_b32 v{T+r}, 0, v{T+r}, {s(sMASK+2*r,2)}")
        A(f"v_cvt_pk_bf16_f32 v{T}, v{T}, v{T+1}")
        A(f"v_cvt_pk_bf16_f32 v{T+1}, v{T+2}, v{T+3}")
        A(f"buffer_store_dwordx2 {v(T,2)}, v6, {s(SRD_B,4)}, {s(sT0)} offen sc1")
        A("s_waitcnt vmcnt(0)")
        A(f"s_add_u32 {s(sT0)}, {s(sG)}, {C_B}")
        self.signal(sT0, 4)
        A.label(Lr)
        self.stamp('red_done')
        A(f"s_add_u32 {s(sT0)}, {s(sW)}, 4")
        A(f"s_mul_i32 {s(sT0)}, {s(sT0)}, {STAGE}")
        A(f"s_and_b32 {s(sT1)}, {s(sW)}, 1")
        A(f"s_lshl_b32 {s(sT1)}, {s(sT1)}, 1")
        self.tr_addrs(VTR3, s(sT0), perm_sgpr=sT1)
        for mm in range(5):
            for ct in range(4):
                for sec in range(2):
                    A(f"ds_read_b64_tr_b16 {a(mm*16+ct*4+2*sec,2)}, v{VTR3+ct} offset:{mm*4096+sec*2048}")
        for t in self.slab_voffset_l(VSLAB4, 3456): A(t)
        self.srd(SRD_W, P_WG, 0, 640 * 3456)
        self.srd(SRD_W2, P_WU, 0, 640 * 3456)
        def setupB():
            A(f"s_add_u32 {s(sT0)}, {s(sG)}, {C_B}")
            A(f"s_lshl_b32 {s(sT0)}, {s(sT0)}, 7")
            A(f"v_mov_b32 v2, {s(sT0)}")
        A("s_waitcnt lgkmcnt(0)")
        self.poll(SRD_CNT, setupB, 1, 32, 2)
        self.stamp('cB')
        PQ = self.PQ
        self.srd(SRD_A, P_WS, WS_KVF, WS_KVF_SZ)
        A("v_lshlrev_b32 v6, 4, v1")
        A(f"s_lshl_b32 {s(sT0)}, {s(sG)}, 14")
        KV = 164
        order = [0, 8, 1, 2, 9, 10, 3, 4, 11, 12, 5, 6, 13, 14, 7, 15]
        A(f"s_add_u32 {s(sT1)}, {s(sT0)}, 4096")
        A(f"s_add_u32 {s(sT2)}, {s(sT0)}, 8192")
        A(f"s_add_u32 {s(sT3)}, {s(sT0)}, 12288")
        for f in order:
            A(f"buffer_load_dwordx4 {v(KV+4*f,4)}, v6, {s(SRD_A,4)}, {s([sT0,sT1,sT2,sT3][f >> 2])} offen offset:{(f & 3)*1024} sc1")
        NUM, DEN = 96, 116
        plan = [(0, 0, True), (1, 0, True), (1, 4, False), (2, 2, True), (2, 6, False), (3, 4, True), (3, 8, False), (4, 6, True)]
        self.srd(SRD_B, P_WS, WS_O, WS_O_SZ)
        A(f"s_lshl_b32 {s(sT0)}, {s(sR)}, 2")
        A(f"s_add_u32 {s(sT0)}, {s(sT0)}, {s(sW)}")
        A(f"s_mul_i32 {s(sT0)}, {s(sT0)}, {20*1024}")
        A(f"s_mul_i32 {s(sT1)}, {s(sG)}, 5")
        A(f"s_mov_b32 {s(sC)}, 0x358637bd")
        A(f"s_mov_b32 {s(sC+1)}, 0x358637bd")
        done = 0
        for j in range(5):
            fs = [f for f, pl in enumerate(plan) if pl[0] == j]
            done += 2 * len(fs)
            A(f"s_waitcnt vmcnt({16 - done})")
            for f in fs:
                _, boff, first = plan[f]
                A(f"{MF} {v(NUM+4*j,4)}, {v(KV+4*f,4)}, {v(PQ+boff,4)}, {'0' if first else v(NUM+4*j,4)}")
                A(f"{MF} {v(DEN+4*j,4)}, {v(KV+32+4*f,4)}, {v(PQ+boff,4)}, {'0' if first else v(DEN+4*j,4)}")
        for j in range(5):
            for p in range(2):
                A(f"v_pk_add_f32 {v(DEN+4*j+2*p,2)}, {v(DEN+4*j+2*p,2)}, {s(sC,2)}")
            for r in range(4):
                A(f"v_rcp_f32 v{DEN+4*j+r}, v{DEN+4*j+r}")
            A(f"s_add_u32 {s(sT2)}, {s(sT1)}, {j}")
            A(f"s_lshr_b32 {s(sT3)}, {s(sT2)}, 1")
            A(f"s_lshl_b32 {s(sT3)}, {s(sT3)}, 10")
            A(f"s_and_b32 {s(sT2)}, {s(sT2)}, 1")
            A(f"s_lshl_b32 {s(sT2)}, {s(sT2)}, 3")
            A(f"s_add_u32 {s(sT2)}, {s(sT2)}, {s(sT3)}")
            A(f"s_add_u32 {s(sT2)}, {s(sT2)}, {s(sT0)}")
            for p in range(2):
                A(f"v_pk_mul_f32 {v(NUM+4*j+2*p,2)}, {v(NUM+4*j+2*p,2)}, {v(DEN+4*j+2*p,2)}")
            A(f"v_cvt_pk_bf16_f32 v{NUM+4*j}, v{NUM+4*j}, v{NUM+4*j+1}")
            A(f"v_cvt_pk_bf16_f32 v{NUM+4*j+1}, v{NUM+4*j+2}, v{NUM+4*j+3}")
            A(f"buffer_store_dwordx2 {v(NUM+4*j,2)}, v6, {s(SRD_B,4)}, {s(sT2)} offen sc1")
        A("s_waitcnt vmcnt(0)")
        A("s_barrier")
        A(f"s_add_u32 {s(sT0)}, {s(sR)}, {C_O}")
        self.signal(sT0, 4)
        self.stamp('o_sig')
        self.emit_groups(self.w4_groups(0, W4_EARLY))

    def slot_tile(self, a_, b_): return (a_*4 + b_)
    def reduce_writes(self, ACC, rels):
        out = []
        for a_ in range(6):
            for b_ in range(4):
                rel = (a_ // 3) * 2 + (b_ >> 1)
                if rel in rels:
                    idx = (a_ % 3) * 2 + (b_ & 1)
                    out.append(f"ds_write_b128 v{self.VRW+rel-1}, {v(ACC + (a_*4+b_)*4, 4)} offset:{idx*1024}")
        return out
    def reduce_setup(self, VRW, VRR):
        A = self.A
        self.VRW, self.VRR = VRW, VRR
        for rel in range(1, 4):
            A(f"s_xor_b32 {s(sT0)}, {s(sW)}, {rel}")
            A(f"s_mul_i32 {s(sT0)}, {s(sT0)}, {3*6144}")
            A(f"s_add_u32 {s(sT0)}, {s(sT0)}, {RED3 + (rel-1)*6144}")
            A(f"v_lshl_add_u32 v{VRW+rel-1}, v1, 4, {s(sT0)}")
        A(f"s_mul_i32 {s(sT0)}, {s(sW)}, {3*6144}")
        A(f"s_add_u32 {s(sT0)}, {s(sT0)}, {RED3}")
        A(f"v_lshl_add_u32 v{VRR}, v1, 4, {s(sT0)}")
    def reduce_finish(self, ACC, TMP):
        A = self.A
        for rel in range(1, 4):
            for idx in range(6):
                A(f"ds_read_b128 {v(TMP + ((rel-1)*6+idx)*4, 4)}, v{self.VRR} offset:{(rel-1)*6144 + idx*1024}")
        for rel in range(1, 4):
            A(f"s_waitcnt lgkmcnt({min(15, 6*(3-rel))})")
            for idx in range(6):
                d = ACC + ((idx // 2)*4 + (idx & 1))*4; t = TMP + ((rel-1)*6+idx)*4
                for p in range(2):
                    A(f"v_pk_add_f32 {v(d+2*p,2)}, {v(d+2*p,2)}, {v(t+2*p,2)}")

    def p3(self):
        A = self.A
        Lend = A.newlabel('p3end')
        A(f"s_cmp_eq_u32 {s(sV3)}, 0")
        A(f"s_cbranch_scc1 {Lend}")
        ACC, XR = 16, 112
        A("v_and_b32 v2, 15, v1")
        A("v_mul_u32_u24 v2, 1280, v2")
        A("v_lshrrev_b32 v3, 4, v1")
        A(f"v_lshl_add_u32 v{VXR}, v3, 3, v2")
        A(f"s_lshr_b32 {s(sT0)}, {s(sW)}, 1")
        A(f"s_mul_i32 {s(sT0)}, {s(sT0)}, 3")
        A(f"s_mul_i32 {s(sT1)}, {s(sR3)}, 6")
        A(f"s_add_u32 {s(sTT)}, {s(sT0)}, {s(sT1)}")
        A(f"s_mul_i32 {s(sT0)}, {s(sTT)}, {16*1280}")
        A(f"s_lshl_b32 {s(sT1)}, {s(sC3)}, 7")
        A(f"s_add_u32 {s(sT0)}, {s(sT0)}, {s(sT1)}")
        A(f"s_and_b32 {s(sT1)}, {s(sW)}, 1")
        A(f"s_lshl_b32 {s(sT1)}, {s(sT1)}, 6")
        A(f"s_add_u32 {s(sXO)}, {s(sT0)}, {s(sT1)}")
        A(f"s_mov_b32 {s(sT0)}, {s(sXO)}")
        for i in range(3):
            for c in range(2):
                A(f"buffer_load_dwordx2 {v(XR+4*i+2*c,2)}, v{VXR}, {s(SRD_X,4)}, {s(sT0)} offen offset:{32*c}")
            if i < 2: A(f"s_add_u32 {s(sT0)}, {s(sT0)}, {16*1280}")
        self.reduce_setup(124, 127)
        self.srd(SRD_A, P_WS, WS_O, WS_O_SZ)
        VA = 128
        A("v_lshlrev_b32 v2, 4, v1")
        A(f"s_lshr_b32 {s(sT0)}, {s(sW)}, 1")
        A(f"s_mul_i32 {s(sT0)}, {s(sT0)}, {3*20*1024}")
        for a_ in range(6):
            if a_ < 3:
                A(f"s_add_u32 {s(sT1)}, {s(sT0)}, {a_*20*1024}")
            else:
                A(f"s_sub_u32 {s(sT1)}, {a_*20*1024}, {s(sT0)}")
                A(f"s_cmp_ge_u32 {s(sT1)}, {3*20*1024}")
            A(f"v_add_u32 v{VA+a_}, {s(sT1)}, v2")
        A(f"s_mul_i32 {s(sK)}, {s(sR3)}, {6*20*1024}")
        A(f"s_mul_i32 {s(sT1)}, {s(sW)}, {5*1024}")
        A(f"s_add_u32 {s(sK)}, {s(sK)}, {s(sT1)}")
        def setup():
            A(f"s_mul_i32 {s(sT0)}, {s(sR3)}, 3")
            A(f"s_lshr_b32 {s(sT0)}, {s(sT0)}, 1")
            A(f"v_add_u32 v2, {s(sT0)}, v1")
            A("v_min_u32 v2, 31, v2")
            A(f"v_add_u32 v2, {C_O}, v2")
            A("v_lshlrev_b32 v2, 7, v2")
        self.poll(SRD_CNT, setup, 2, 8, 2)
        self.stamp('cO')
        OF = 80
        order = [3, 4, 5, 0, 1, 2]
        for a_ in order:
            for mm in range(5):
                A(f"buffer_load_dwordx4 {a(OF+(a_*5+mm)*4,4)}, v{VA+a_}, {s(SRD_A,4)}, {s(sK)} offen offset:{mm*1024 if mm < 4 else 0} sc1"
                  if mm < 4 else
                  f"buffer_load_dwordx4 {a(OF+(a_*5+mm)*4,4)}, v{VA+a_}, {s(SRD_A,4)}, {s(sK3)} offen sc1")
                if a_ == order[0] and mm == 0: A(f"s_add_u32 {s(sK3)}, {s(sK)}, 4096")
        def mm_tile(a_, b_, mm):
            d = ACC + (a_*4+b_)*4
            return f"{MF} {v(d,4)}, {a(mm*16+b_*4,4)}, {a(OF+(a_*5+mm)*4,4)}, {'0' if mm == 0 else v(d,4)}"
        for n, a_ in enumerate((3, 4, 5)):
            A(f"s_waitcnt vmcnt({25 - 5*n})")
            for mm in range(5):
                for b_ in range(4): A(mm_tile(a_, b_, mm))
        main = []
        for n, a_ in enumerate((0, 1, 2)):
            blk = [mm_tile(a_, b_, mm) for mm in range(5) for b_ in (2, 3)]
            main += [f"s_waitcnt vmcnt({10 - 5*n})"] + blk
        wr = self.reduce_writes(ACC, (2, 3))
        for t in weave(main, [([[x] for x in wr], 8, len(main))]): A(t)
        main = [mm_tile(a_, b_, mm) for a_ in range(3) for mm in range(5) for b_ in (0, 1)]
        wr = self.reduce_writes(ACC, (1,))
        for t in weave(main, [([[x] for x in wr], 6, 24)]): A(t)
        self.stamp('p3_mfma')
        A("s_waitcnt lgkmcnt(0)")
        A("s_barrier")
        self.reduce_finish(ACC, 136)
        self.stamp('p3_red')
        T = 136; HR = 148
        self.srd(SRD_B, P_WS, WS_H, WS_H_SZ)
        self.srd(SRD_A, P_WS, WS_HST, WS_HST_SZ)
        A(f"s_mul_i32 {s(sT0)}, {s(sTT)}, 20")
        A(f"s_lshl_b32 {s(sT1)}, {s(sC3)}, 1")
        A(f"s_add_u32 {s(sT0)}, {s(sT0)}, {s(sT1)}")
        A(f"s_and_b32 {s(sT1)}, {s(sW)}, 1")
        A(f"s_add_u32 {s(sT0)}, {s(sT0)}, {s(sT1)}")
        A(f"s_lshl_b32 {s(sT1)}, {s(sT0)}, 10")
        A(f"s_lshl_b32 {s(sT2)}, {s(sT0)}, 7")
        A("v_lshlrev_b32 v4, 4, v1")
        A("v_and_b32 v5, 15, v1")
        A("v_lshlrev_b32 v5, 3, v5")
        for i in range(3):
            for c in range(2):
                o = ACC + (i*4+c)*4
                for hreg in range(2):
                    x = XR + 4*i + 2*c + hreg
                    A(f"v_lshlrev_b32 v{T}, 16, v{x}")
                    A(f"v_and_b32 v{T+1}, 0xffff0000, v{x}")
                    A(f"v_pk_add_f32 {v(o+2*hreg,2)}, {v(o+2*hreg,2)}, {v(T,2)}")
            o = ACC + i*16
            for k in range(4):
                A(f"v_cvt_pk_bf16_f32 v{HR+4*i+k}, v{o+2*k}, v{o+2*k+1}")
            A(f"buffer_store_dwordx4 {v(HR+4*i,4)}, v4, {s(SRD_B,4)}, {s(sT1)} offen sc1")
            if i < 2: A(f"s_add_u32 {s(sT1)}, {s(sT1)}, {20*1024}")
        for i in range(3):
            o = ACC + i*16
            A(f"v_pk_mul_f32 {v(T+2,2)}, {v(o,2)}, {v(o,2)}")
            A(f"v_pk_add_f32 {v(T,2)}, {v(o,2)}, {v(o+2,2)}")
            A(f"v_pk_fma_f32 {v(T+2,2)}, {v(o+2,2)}, {v(o+2,2)}, {v(T+2,2)}")
            for k in (4, 6):
                A(f"v_pk_add_f32 {v(T,2)}, {v(T,2)}, {v(o+k,2)}")
                A(f"v_pk_fma_f32 {v(T+2,2)}, {v(o+k,2)}, {v(o+k,2)}, {v(T+2,2)}")
            A(f"v_add_f32 v{T}, v{T}, v{T+1}")
            A(f"v_add_f32 v{T+1}, v{T+2}, v{T+3}")
            for sw in ('v_permlane16_swap_b32', 'v_permlane32_swap_b32'):
                A(f"v_mov_b32 v{T+2}, v{T}")
                A(f"v_mov_b32 v{T+3}, v{T+1}")
                A(f"{sw} v{T}, v{T+2}")
                A(f"{sw} v{T+1}, v{T+3}")
                A(f"v_pk_add_f32 {v(T,2)}, {v(T,2)}, {v(T+2,2)}")
            A(f"v_mov_b32 v{T+4+2*i}, v{T}")
            A(f"v_mov_b32 v{T+5+2*i}, v{T+1}")
            A("s_mov_b64 exec, 0xffff")
            A(f"buffer_store_dwordx2 {v(T+4+2*i,2)}, v5, {s(SRD_A,4)}, {s(sT2)} offen sc1")
            A("s_mov_b64 exec, -1")
            if i < 2: A(f"s_add_u32 {s(sT2)}, {s(sT2)}, {20*128}")
        for k in range(12):
            A(f"v_accvgpr_write_b32 a{AHRES+k}, v{HR+k}")
        A("s_waitcnt vmcnt(0)")
        A("s_barrier")
        A(f"s_add_u32 {s(sT0)}, {s(sR3)}, {C_H}")
        self.signal(sT0, 4)
        A.label(Lend)
        self.stamp('h_sig')

    def p4(self):
        A = self.A
        Lend = A.newlabel('p4end')
        A(f"s_cmp_eq_u32 {s(sV4)}, 0")
        A(f"s_cbranch_scc1 {Lend}")
        ACC = 16; CSR = 160; T = 208
        WF = 0; AF = 64; D = 8
        self.emit_groups(self.w4_groups(W4_EARLY, 20))
        self.tr_addrs(VTR4, "0")
        for i in range(4): A(f"v_mov_b32 v{T+i}, 0x3f803f80")
        A(f"v_mov_b32 v{T+8}, v{VTR4}")
        for ct in range(1, 4):
            A(f"s_cmp_eq_u32 {s(sW)}, {ct}")
            A(f"s_cselect_b64 vcc, -1, 0")
            A(f"v_cndmask_b32 v{T+8}, v{T+8}, v{VTR4+ct}, vcc")
        self.srd(SRD_A, P_WS, WS_H, WS_H_SZ)
        self.srd(SRD_B, P_WS, WS_HST, WS_HST_SZ)
        VA = T + 20
        A("v_lshlrev_b32 v4, 4, v1")
        for i in range(4): A(f"v_add_u32 v{VA+i}, {i*20*1024}, v4")
        A(f"s_lshl_b32 {s(sT0)}, {s(sR4)}, 4")
        A(f"s_lshl_b32 {s(sT1)}, {s(sW)}, 2")
        A(f"s_add_u32 {s(sTT4)}, {s(sT0)}, {s(sT1)}")
        A(f"s_mul_i32 {s(sK)}, {s(sTT4)}, {20*1024}")
        A("v_and_b32 v3, 15, v1")
        A("v_lshlrev_b32 v3, 3, v3")
        A("v_lshrrev_b32 v4, 4, v1")
        A("v_mul_u32_u24 v4, 640, v4")
        A(f"v_add_u32 v{VA+4}, v3, v4")
        def setup():
            A(f"s_lshl_b32 {s(sT0)}, {s(sR4)}, 4")
            A(f"s_mul_i32 {s(sT1)}, {s(sT0)}, 43")
            A(f"s_lshr_b32 {s(sT1)}, {s(sT1)}, 8")
            A(f"s_add_u32 {s(sT0)}, {s(sT0)}, 15")
            A(f"s_mul_i32 {s(sT0)}, {s(sT0)}, 43")
            A(f"s_lshr_b32 {s(sT0)}, {s(sT0)}, 8")
            A(f"v_add_u32 v2, {s(sT1)}, v1")
            A(f"v_min_u32 v2, {s(sT0)}, v2")
            A(f"v_add_u32 v2, {C_H}, v2")
            A("v_lshlrev_b32 v2, 7, v2")
        self.poll(SRD_CNT, setup, 4, 10, 2)
        self.stamp('cH')
        def aload_groups(m):
            gs = [[f"buffer_load_dwordx4 {a(AF+(m % D)*16+4*i,4)}, v{VA+i}, {s(SRD_A,4)}, {s(sK)} offen sc1 ; @a{m}"] for i in range(4)]
            gs[-1].append(f"s_add_u32 {s(sK)}, {s(sK)}, 1024")
            return gs
        NPRE = 6
        for m in range(NPRE): self.emit_groups(aload_groups(m))
        A(f"s_mul_i32 {s(sT0)}, {s(sTT4)}, 2560")
        for i in range(4):
            for k in range(5):
                A(f"buffer_load_dwordx2 {a(192+(i*5+k)*2,2)}, v{VA+4}, {s(SRD_B,4)}, {s(sT0)} offen offset:{k*128} sc1 ; @stat")
            if i < 3: A(f"s_add_u32 {s(sT0)}, {s(sT0)}, 2560")
        A("WAITVM w4")
        A("s_barrier")
        self.stamp('w4_landed')
        def wreads(buf, m):
            return [f"ds_read_b64_tr_b16 {a(WF+buf*32+(sec*4+ct)*4+2*h,2)}, v{VTR4+ct} offset:{(m % 8)*8192 + sec*4096 + h*2048}"
                    for sec in range(2) for ct in range(4) for h in range(2)]
        def csreads(m):
            b = 16 + (m & 3) * 8
            pre = [f"v_add_u32 v{T+8}, 65536, v{T+8}"] if m in (8, 16) else []
            return pre + [f"ds_read_b64_tr_b16 {v(b+sec*4+2*h,2)}, v{T+8} offset:{(m % 8)*8192 + sec*4096 + h*2048}" for sec in range(2) for h in range(2)]
        for m in range(3):
            for t in csreads(m): A(t)
        for m in range(20):
            if m + 3 < 20:
                for t in csreads(m + 3): A(t)
            A(f"s_waitcnt lgkmcnt({4*min(3, 19-m)})")
            for sec in range(2):
                A(f"{MF} {v(T+12+4*sec,4)}, {v(16+(m & 3)*8+sec*4,4)}, {v(T,4)}, {'0' if m == 0 else v(T+12+4*sec,4)}")
        for t in wreads(0, 0): A(t)
        A("s_waitcnt lgkmcnt(0)")
        A("s_barrier")
        A("v_lshrrev_b32 v2, 4, v1")
        A("v_lshlrev_b32 v2, 4, v2")
        A(f"s_lshl_b32 {s(sT0)}, {s(sW)}, 6")
        A(f"v_add_u32 v3, {s(sT0)}, v2")
        A(f"ds_write_b128 v3, {v(T+12,4)}")
        A(f"ds_write_b128 v3, {v(T+16,4)} offset:256")
        MEAN, RS2 = 192, 200
        A("WAITVM stat")
        for i in range(4):
            U = 48
            for k in range(10): A(f"v_accvgpr_read_b32 v{U+k}, a{192+i*10+k}")
            A(f"v_pk_add_f32 {v(U,2)}, {v(U,2)}, {v(U+2,2)}")
            A(f"v_pk_add_f32 {v(U+4,2)}, {v(U+4,2)}, {v(U+6,2)}")
            A(f"v_pk_add_f32 {v(U,2)}, {v(U,2)}, {v(U+8,2)}")
            A(f"v_pk_add_f32 {v(U,2)}, {v(U,2)}, {v(U+4,2)}")
            for sw in ('v_permlane16_swap_b32', 'v_permlane32_swap_b32'):
                A(f"v_mov_b32 v{U+2}, v{U}")
                A(f"v_mov_b32 v{U+3}, v{U+1}")
                A(f"{sw} v{U}, v{U+2}")
                A(f"{sw} v{U+1}, v{U+3}")
                A(f"v_pk_add_f32 {v(U,2)}, {v(U,2)}, {v(U+2,2)}")
            A(f"v_mul_f32 v{MEAN+2*i}, {1.0/640!r}, v{U}")
            A(f"v_mul_f32 v{U+1}, {1.0/640!r}, v{U+1}")
            A(f"v_fma_f32 v{U+1}, -v{MEAN+2*i}, v{MEAN+2*i}, v{U+1}")
            A(f"v_max_f32 v{U+1}, 0, v{U+1}")
            A(f"v_add_f32 v{U+1}, 0x3727c5ac, v{U+1}")
            A(f"v_rcp_f32 v{RS2+2*i}, v{U+1}")
            if i == 0:
                A("s_waitcnt lgkmcnt(0)")
                A("s_barrier")
                for k in range(8):
                    A(f"ds_read_b128 {v(CSR+4*k,4)}, v2 offset:{k*64}")
        self.stamp('colsum')
        nxt = NPRE
        w5a = self.w5_groups(0, 5, 'w5a')
        for m in range(20):
            buf = m & 1
            self.lstamp_pre(f'p4k{m}')
            A(f"WAITVM a{m} lgkmcnt(0)")
            self.lstamp_post()
            if m == 10: A("s_barrier")
            mf = []
            for i in range(4):
                for sec in range(2):
                    for ct in range(4):
                        d = ACC + (i*8 + sec*4 + ct)*4
                        mf.append(f"{MF} {v(d,4)}, {a(WF+buf*32+(sec*4+ct)*4,4)}, {a(AF+(m % D)*16+4*i,4)}, {'0' if m == 0 else v(d,4)}")
            fill = []
            if m + 1 < 20:
                if (m + 1) in (8, 16):
                    fill.append([f"v_add_u32 v{VTR4+ct}, 65536, v{VTR4+ct}" for ct in range(4)])
                fill += [[x] for x in wreads(buf ^ 1, m + 1)]
            loads = []
            nsteps = 0
            while nxt < 20 and nxt - m < D and nsteps < (2 if nxt - m < D - 1 else 1):
                loads += aload_groups(nxt); nxt += 1; nsteps += 1
            if m >= 10: loads += w5a[(m-10)*2:(m-9)*2]
            for t in weave(mf, [(fill, 0, 20), (loads, 1, 32)]): A(t)
        self.stamp('p4_loop')
        self.srd(SRD_B, P_WS, WS_HH, WS_HH_SZ)
        A(f"s_mul_i32 {s(sT0)}, {s(sTT4)}, 54")
        A(f"s_lshl_b32 {s(sT1)}, {s(sS4)}, 1")
        A(f"s_add_u32 {s(sT0)}, {s(sT0)}, {s(sT1)}")
        A(f"s_lshl_b32 {s(sT0)}, {s(sT0)}, 10")
        A("v_lshlrev_b32 v6, 4, v1")
        for i in range(4):
            for pair in range(2):
                P = T + 8 + ((i*2+pair) & 1) * 4
                for c in range(2):
                    ct = 2*pair + c
                    g = ACC + (i*8 + ct)*4; u = ACC + (i*8 + 4 + ct)*4
                    for p in range(2):
                        A(f"v_pk_fma_f32 {v(g+2*p,2)}, {v(CSR+4*ct+2*p,2)}, {v(MEAN+2*i,2)}, {v(g+2*p,2)} op_sel_hi:[1,0,1] neg_lo:[1,0,0] neg_hi:[1,0,0]")
                        A(f"v_pk_fma_f32 {v(u+2*p,2)}, {v(CSR+16+4*ct+2*p,2)}, {v(MEAN+2*i,2)}, {v(u+2*p,2)} op_sel_hi:[1,0,1] neg_lo:[1,0,0] neg_hi:[1,0,0]")
                    for r in range(4):
                        A(f"v_max_f32 v{g+r}, 0, v{g+r}")
                    for p in range(2):
                        A(f"v_pk_mul_f32 {v(u+2*p,2)}, {v(u+2*p,2)}, {v(RS2+2*i,2)} op_sel_hi:[1,0]")
                    for p in range(2):
                        A(f"v_pk_mul_f32 {v(g+2*p,2)}, {v(g+2*p,2)}, {v(u+2*p,2)}")
                    A(f"v_cvt_pk_bf16_f32 v{P+2*c}, v{g}, v{g+1}")
                    A(f"v_cvt_pk_bf16_f32 v{P+2*c+1}, v{g+2}, v{g+3}")
                A(f"buffer_store_dwordx4 {v(P,4)}, v6, {s(SRD_B,4)}, {s(sT0)} offen offset:{pair*1024} sc1 ; @hh")
            if i < 3: A(f"s_add_u32 {s(sT0)}, {s(sT0)}, {54*1024}")
        A("s_waitcnt vmcnt(0)")
        A("s_barrier")
        A(f"s_add_u32 {s(sT0)}, {s(sR4)}, {C_HH}")
        self.signal(sT0, 4)
        self.stamp('hh_sig')
        Lj = A.newlabel('p4join')
        A(f"s_branch {Lj}")
        A.label(Lend)
        A("s_waitcnt vmcnt(0)")
        A("s_barrier")
        self.emit_groups(self.w5_groups(0, 5, 'w5a'))
        A("s_waitcnt vmcnt(0)")
        A.label(Lj)

    def p5(self):
        A = self.A
        Lend = A.newlabel('p5end')
        A(f"s_cmp_eq_u32 {s(sV3)}, 0")
        A(f"s_cbranch_scc1 {Lend}")
        ACC = 16
        AF = 112; D = 8
        self.emit_groups(self.w5_groups(5, 10, 'w5b'))
        A(f"s_mul_i32 {s(sT0)}, {s(sW)}, 20480")
        A(f"s_and_b32 {s(sT1)}, {s(sW)}, 1")
        A(f"s_lshl_b32 {s(sT1)}, {s(sT1)}, 1")
        self.tr_addrs(VTR3, s(sT0), perm_sgpr=sT1)
        for ct in range(4): A(f"v_add_u32 v{VTR4+ct}, 81920, v{VTR3+ct}")
        def w5reads(m0, m1):
            base = VTR4 if 5 <= m0 < 10 else VTR3
            for mm in range(m0, m1):
                for ct in range(4):
                    for h in range(2):
                        A(f"ds_read_b64_tr_b16 {a(mm*16+ct*4+2*h,2)}, v{base+ct} offset:{(mm-m0)*4096 + h*2048}")
        w5reads(0, 5)
        A("s_waitcnt lgkmcnt(0)")
        self.emit_groups(self.w5_groups(10, 14, 'w5c'))
        self.reduce_setup(232, 235)
        self.srd(SRD_A, P_WS, WS_HH, WS_HH_SZ)
        VA = 236
        A("v_lshlrev_b32 v2, 4, v1")
        A(f"s_lshr_b32 {s(sT0)}, {s(sW)}, 1")
        A(f"s_mul_i32 {s(sT0)}, {s(sT0)}, {3*54*1024}")
        for a_ in range(6):
            if a_ < 3: A(f"s_add_u32 {s(sT1)}, {s(sT0)}, {a_*54*1024}")
            else: A(f"s_sub_u32 {s(sT1)}, {a_*54*1024}, {s(sT0)}")
            A(f"v_add_u32 v{VA+a_}, {s(sT1)}, v2")
        A(f"s_mul_i32 {s(sT0)}, {s(sR3)}, {6*54}")
        A(f"s_mul_i32 {s(sT2)}, {s(sW)}, 14")
        A(f"s_add_u32 {s(sT0)}, {s(sT0)}, {s(sT2)}")
        A(f"s_lshl_b32 {s(sWA)}, {s(sT0)}, 10")
        A("WAITVM w5b")
        w5reads(5, 10)
        A("WAITVM w5c")
        w5reads(10, 14)
        A("s_waitcnt lgkmcnt(0)")
        def setup():
            A(f"s_mul_i32 {s(sT0)}, {s(sR3)}, 6")
            A(f"s_lshr_b32 {s(sT1)}, {s(sT0)}, 4")
            A(f"s_add_u32 {s(sT0)}, {s(sT0)}, 5")
            A(f"s_min_u32 {s(sT0)}, {s(sT0)}, 127")
            A(f"s_lshr_b32 {s(sT0)}, {s(sT0)}, 4")
            A(f"v_add_u32 v2, {s(sT1)}, v1")
            A(f"v_min_u32 v2, {s(sT0)}, v2")
            A(f"v_add_u32 v2, {C_HH}, v2")
            A("v_lshlrev_b32 v2, 7, v2")
        self.stamp('w5_regs')
        self.poll(SRD_CNT, setup, 2, 27, 2)
        self.stamp('cHH')
        A(f"s_mul_i32 {s(sWB)}, {s(sW)}, 14")
        def aload_groups(n):
            ps, mm = divmod(n, 14)
            a0 = 3 if ps == 0 else 0
            pre = []
            if mm == 0: pre.append(f"s_mov_b32 {s(sK)}, {s(sWA)}")
            so = sK
            if mm >= 12:
                pre += [f"s_add_u32 {s(sK2)}, {s(sWB)}, {mm}", f"s_cmp_lt_u32 {s(sK2)}, 54",
                        f"s_cselect_b32 {s(sK2)}, {s(sK)}, {OOB}"]
                so = sK2
            gs = [[f"buffer_load_dwordx4 {v(AF+(n % D)*12+4*i,4)}, v{VA+a0+i}, {s(SRD_A,4)}, {s(so)} offen sc1"] for i in range(3)]
            gs[0] = pre + gs[0]
            gs[-1].append(f"s_add_u32 {s(sK)}, {s(sK)}, 1024")
            return gs
        NPRE = 6
        for n in range(NPRE): self.emit_groups(aload_groups(n))
        nxt = NPRE
        wr1 = self.reduce_writes(ACC, (2, 3))
        for n in range(28):
            ps, mm = divmod(n, 14)
            a0 = 3 if ps == 0 else 0
            if n % 2 == 0: self.lstamp_pre(f'p5k{n}')
            A(f"s_waitcnt vmcnt({3*(nxt - n - 1)})" + (" lgkmcnt(0)" if (self.prof and 'fine' in self.exp and n % 2 == 0) else ""))
            if n % 2 == 0: self.lstamp_post()
            mf = []
            bs = (2, 3, 0, 1)
            for i in range(3):
                for b_ in bs:
                    d = ACC + ((a0+i)*4+b_)*4
                    mf.append(f"{MF} {v(d,4)}, {a(mm*16+b_*4,4)}, {v(AF+(n % D)*12+4*i,4)}, {'0' if mm == 0 else v(d,4)}")
            loads = []
            nsteps = 0
            while nxt < 28 and nxt - n < D and nsteps < (2 if nxt - n < D - 1 else 1):
                loads += aload_groups(nxt); nxt += 1; nsteps += 1
            streams = [(loads, 0, 12)]
            if ps == 1 and 1 <= mm <= 12:
                streams.append(([[x] for x in wr1[mm-1:mm]], 4, 8))
            for t in weave(mf, streams): A(t)
        self.stamp('p5_mfma')
        for t in self.reduce_writes(ACC, (1,)): A(t)
        self.srd(SRD_B, P_OUT, 0, 2048 * 1280)
        A("s_waitcnt lgkmcnt(0)")
        A("s_barrier")
        self.reduce_finish(ACC, 112)
        self.stamp('p5_red')
        T = 200
        A(f"s_mov_b32 {s(sT0)}, {s(sXO)}")
        for i in range(3):
            for c in range(2):
                o = ACC + (i*4+c)*4
                for hreg in range(2):
                    A(f"v_accvgpr_read_b32 v{T+2}, a{AHRES + 4*i + 2*c + hreg}")
                    A(f"v_lshlrev_b32 v{T}, 16, v{T+2}")
                    A(f"v_and_b32 v{T+1}, 0xffff0000, v{T+2}")
                    A(f"v_pk_add_f32 {v(o+2*hreg,2)}, {v(o+2*hreg,2)}, {v(T,2)}")
                A(f"v_cvt_pk_bf16_f32 v{o}, v{o}, v{o+1}")
                A(f"v_cvt_pk_bf16_f32 v{o+1}, v{o+2}, v{o+3}")
                A(f"buffer_store_dwordx2 {v(o,2)}, v{VXR}, {s(SRD_B,4)}, {s(sT0)} offen offset:{32*c}")
            if i < 2: A(f"s_add_u32 {s(sT0)}, {s(sT0)}, {16*1280}")
        A.label(Lend)

    def finish(self):
        A = self.A
        if self.prof:
            A("s_waitcnt vmcnt(0)")
            self.stamp('end')
            self.dump_stamps()
        A.label("L_end")
        A("s_endpgm")

    def build(self):
        self.prologue()
        self.p1()
        self.p2()
        self.p3()
        self.p4()
        self.p5()
        self.finish()
        n = self.A.fix_hazards()
        hdr = open('cdna_kernels/' + NAME + '.s.ref').read().split('; Override launch')[0]
        out = hdr
        out += "; Override launch geometry by editing the next line.\n"
        out += f"; @launch grid=(256,1,1) block=(256,1,1) lds={LDS_BYTES}\n"
        out += '.amdgcn_target "amdgcn-amd-amdhsa--gfx950"\n.text\n'
        out += f".globl {KNAME}\n.p2align 8\n.type {KNAME},@function\n{KNAME}:\n"
        out += self.A.text()
        out += f""".section .rodata,"a"
.p2align 6
.amdhsa_kernel {KNAME}
  .amdhsa_next_free_vgpr 512
  .amdhsa_next_free_sgpr 102
  .amdhsa_accum_offset 256
  .amdhsa_group_segment_fixed_size 0
  .amdhsa_kernarg_size 80
  .amdhsa_user_sgpr_count 2
  .amdhsa_user_sgpr_kernarg_segment_ptr 1
  .amdhsa_system_sgpr_workgroup_id_x 1
.end_amdhsa_kernel
"""
        return out, n

sTT4 = 81

def issued_at_zero(sig):
    return 99

if __name__ == '__main__':
    dbg = '--dbg' in sys.argv
    out = [a for a in sys.argv[1:] if not a.startswith('--')]
    g = G(dbg=dbg, prof='--prof' in sys.argv, exp=next((a.split('=')[1] for a in sys.argv if a.startswith('--exp=')), ''))
    txt, n = g.build()
    path = out[0] if out else 'k.s'
    open(path, 'w').write(txt)
    if g.prof: json.dump(g.stamps, open(path + '.stamps', 'w'))
    print('wrote', path, 'nops inserted', n, 'lines', txt.count('\n'))
```

```python
import sys, json
from asmlib import *

NAME = 'sequential_preLN__linear_attn_block__glu_gated_reglu__prompt'
KNAME = NAME + '_kernel'

WS_CNT, WS_CNT_SZ = 0x0, 0x4000
WS_KVF, WS_KVF_SZ = 0x10000, 8 * 16384
WS_HST, WS_HST_SZ = 0x40000, 128 * 20 * 128
WS_PART, WS_PART_SZ = 0x100000, 8 * 32 * 18 * 1024
WS_O, WS_O_SZ = 0x600000, 128 * 20 * 1024
WS_H, WS_H_SZ = 0x900000, 128 * 20 * 1024
WS_HH, WS_HH_SZ = 0xC00000, 128 * 54 * 1024
WS_DBG, WS_DBG_SZ = 0x1400000, 0x1000000
C_A, C_B, C_O, C_H, C_HH = 0, 8, 16, 48, 72
NZERO = 16
OOB = 0x7ff00000

JOBS = [(0,0),(0,1),(1,0),(1,1),(1,2),(2,1),(2,2),(2,3),(3,2),(3,3),(3,4),(4,3),(4,4)] + [(i,5) for i in range(5)]

SRD_X, SRD_W, SRD_W2, SRD_A, SRD_B, SRD_CNT, SRD_T, SRD_DBG = 4, 8, 12, 16, 20, 24, 28, 32
P_X, P_WQKV, P_WO, P_WG, P_WU, P_WD, P_OUT, P_DBG, P_WS = 40, 42, 44, 48, 50, 52, 54, 56, 58
sK2, sK3 = 46, 47
sW, sR, sG, sRHO, sXCD, sJ = 60, 61, 62, 63, 64, 65
sT0, sT1, sT2, sT3, sT4, sT5 = 66, 67, 68, 69, 70, 71
sWA, sWB, sK, sLD = 72, 73, 74, 75
sROT = 76
sMASK = 82
sC = 92
sC2 = 90
sC3, sR3, sV3, sR4, sS4, sV4, sTT, sXO = 94, 95, 96, 97, 98, 99, 100, 101
VSLAB, VSLAB4, VXR = 8, 9, 15
VTR3, VTR4 = 244, 248
AHRES = 240
AZERO = 253

LDS_BYTES = 163840
STAGE = 20480
def slot_of(sig): return (sig + 4) % 8
FR = 3 * STAGE
CS = FR + 22528
ST = CS + 1024
RED2 = 73728
RED3 = 90112
W4_E1, W4_E2 = 9, 11
ACS = 232
MF = "v_mfma_f32_16x16x32_bf16"
LOG2E = 1.4426950408889634

def f32bits(x):
    import struct
    return struct.unpack('<I', struct.pack('<f', x))[0]

class G:
    def __init__(self, stop=None, dbg=False, prof=False, exp=''):
        self.exp = exp
        self.A = Asm(); self.stop = stop; self.dbg = dbg; self.prof = prof
        self.stamps = []

    def stamp(self, name):
        if not self.prof: return
        A = self.A
        i = len(self.stamps); self.stamps.append(name)
        A("s_memrealtime s[36:37]")
        A("s_memtime s[38:39]")
        A("v_accvgpr_read_b32 v7, a252" if i else "v_mov_b32 v7, 0")
        A("s_waitcnt lgkmcnt(0)")
        A(f"v_writelane_b32 v7, s36, {i}")
        A("v_accvgpr_write_b32 a252, v7")
        A("v_accvgpr_read_b32 v7, a254" if i else "v_mov_b32 v7, 0")
        A(f"v_writelane_b32 v7, s38, {i}")
        A("v_accvgpr_write_b32 a254, v7")

    def lstamp_pre(self, name):
        if not (self.prof and 'fine' in self.exp): return
        self.A("s_memrealtime s[36:37]")
        self._ls = name
    def lstamp_post(self):
        if not (self.prof and 'fine' in self.exp): return
        i = len(self.stamps); self.stamps.append(self._ls)
        self.A("v_accvgpr_read_b32 v7, a252")
        self.A(f"v_writelane_b32 v7, s36, {i}")
        self.A("v_accvgpr_write_b32 a252, v7")

    def dump_stamps(self):
        A = self.A
        L = A.newlabel('nost')
        A(f"s_cmp_lg_u32 {s(sW)}, 0")
        A(f"s_cbranch_scc1 {L}")
        self.srd(SRD_T, P_WS, WS_DBG + 0x800000, 0x20000)
        A("v_accvgpr_read_b32 v7, a252")
        A("v_lshlrev_b32 v2, 2, v1")
        A(f"s_lshl_b32 {s(sT0)}, s2, 8")
        A(f"buffer_store_dword v7, v2, {s(SRD_T,4)}, {s(sT0)} offen")
        A("v_accvgpr_read_b32 v6, a254")
        A(f"s_add_u32 {s(sT0)}, {s(sT0)}, 0x10000")
        A(f"buffer_store_dword v6, v2, {s(SRD_T,4)}, {s(sT0)} offen")
        A.label(L)

    def srd_l(self, dst, ptr, off, size):
        out = []
        if off:
            out += [f"s_add_u32 {s(dst)}, {s(ptr)}, {off}", f"s_addc_u32 {s(dst+1)}, {s(ptr+1)}, 0"]
        else:
            out += [f"s_mov_b32 {s(dst)}, {s(ptr)}", f"s_mov_b32 {s(dst+1)}, {s(ptr+1)}"]
        out += [f"s_mov_b32 {s(dst+2)}, {size}", f"s_mov_b32 {s(dst+3)}, 0x20000"]
        return out
    def srd(self, dst, ptr, off, size):
        for t in self.srd_l(dst, ptr, off, size): self.A(t)

    def prologue(self):
        A = self.A
        A("s_cmp_ge_u32 s2, 256")
        A("s_cbranch_scc1 L_end")
        A("s_load_dwordx16 s[40:55], s[0:1], 0")
        A("s_load_dwordx4 s[56:59], s[0:1], 64")
        A("v_and_b32 v1, 63, v0")
        self.stamp('start')
        A("v_lshrrev_b32 v2, 6, v0")
        A(f"s_and_b32 {s(sXCD)}, s2, 7")
        A(f"v_readfirstlane_b32 {s(sW)}, v2")
        A(f"s_lshr_b32 {s(sJ)}, s2, 3")
        A(f"s_and_b32 {s(sRHO)}, {s(sJ)}, 7")
        A(f"s_lshr_b32 {s(sT0)}, {s(sXCD)}, 1")
        A(f"s_lshl_b32 {s(sT0)}, {s(sT0)}, 3")
        A(f"s_add_u32 {s(sR)}, {s(sT0)}, {s(sRHO)}")
        A(f"s_and_b32 {s(sT0)}, {s(sXCD)}, 1")
        A(f"s_lshl_b32 {s(sT0)}, {s(sT0)}, 2")
        A(f"s_lshr_b32 {s(sT1)}, {s(sJ)}, 3")
        A(f"s_add_u32 {s(sG)}, {s(sT0)}, {s(sT1)}")

    def code_prefetch(self):
        A = self.A
        A("s_getpc_b64 s[36:37]")
        A.label("L_pc0")
        A(f"s_lshl_b32 {s(sT0)}, {s(sJ)}, 2")
        A(f"s_add_u32 {s(sT0)}, {s(sT0)}, {s(sW)}")
        A(f"s_lshl_b32 {s(sT0)}, {s(sT0)}, 10")
        A(f"s_min_u32 {s(sT0)}, {s(sT0)}, L_end-L_pc0-1024")
        A(f"v_lshl_add_u32 v6, v1, 4, {s(sT0)}")
        A("global_load_dwordx4 a[244:247], v6, s[36:37]")

    def weight_prefetch(self, late=False):
        A = self.A
        if late:
            L = A.newlabel('nopf')
            A(f"s_cmp_eq_u32 {s(sW)}, 0")
            A(f"s_cbranch_scc1 {L}")
            for rep in range(2):
                A(f"s_mul_i32 {s(sT0)}, s2, 3")
                A(f"s_add_u32 {s(sT0)}, {s(sT0)}, {s(sW)}")
                A(f"s_add_u32 {s(sT0)}, {s(sT0)}, {768*rep - 1}" if rep else f"s_sub_u32 {s(sT0)}, {s(sT0)}, 1")
                self._pf_one(nocount=True)
            A.label(L)
            return
        A(f"s_lshl_b32 {s(sT0)}, s2, 2")
        A(f"s_add_u32 {s(sT0)}, {s(sT0)}, {s(sW)}")
        self._pf_one()

    def _pf_one(self, nocount=False):
        A = self.A
        A(f"s_mov_b32 s36, {s(P_WO)}")
        A(f"s_mov_b32 s37, {s(P_WO+1)}")
        A(f"s_mov_b32 {s(sT1)}, {640*1280 - 128}")
        for lo, ptr, size in ((100, P_WG, 640*3456), (370, P_WU, 640*3456), (640, P_WD, 1728*1280)):
            A(f"s_cmp_ge_u32 {s(sT0)}, {lo}")
            A(f"s_cselect_b32 s36, {s(ptr)}, s36")
            A(f"s_cselect_b32 s37, {s(ptr+1)}, s37")
            A(f"s_cselect_b32 {s(sT1)}, {size - 128}, {s(sT1)}")
        A(f"s_mov_b32 {s(sT2)}, 0")
        for lo in (100, 370, 640):
            A(f"s_cmp_ge_u32 {s(sT0)}, {lo}")
            A(f"s_cselect_b32 {s(sT2)}, {lo}, {s(sT2)}")
        A(f"s_sub_u32 {s(sT0)}, {s(sT0)}, {s(sT2)}")
        A(f"s_lshl_b32 {s(sT0)}, {s(sT0)}, 13")
        A(f"v_lshl_add_u32 v6, v1, 7, {s(sT0)}")
        A(f"v_min_u32 v6, {s(sT1)}, v6")
        A("global_load_dword a248, v6, s[36:37]" + (" ; @nocount" if nocount else ""))

    def zero_counters(self):
        A = self.A
        L = A.newlabel('nz')
        A(f"s_cmp_ge_u32 s2, {NZERO}")
        A(f"s_cbranch_scc1 {L}")
        A(f"s_cmp_lg_u32 {s(sW)}, 3")
        A(f"s_cbranch_scc1 {L}")
        A("v_lshlrev_b32 v2, 4, v1")
        A(f"s_lshl_b32 {s(sT0)}, s2, 10")
        for i in range(4): A(f"v_mov_b32 v{4+i}, 0")
        A(f"buffer_store_dwordx4 v[4:7], v2, {s(SRD_CNT,4)}, {s(sT0)} offen sc1 ; @nocount")
        A("s_waitcnt vmcnt(0)")
        A("v_mov_b32 v4, 1")
        A("v_mov_b32 v2, 0")
        A("s_mov_b64 exec, 1")
        A(f"buffer_atomic_add v4, v2, {s(SRD_DBG,4)}, 0 offen sc1 ; @nocount")
        A("s_mov_b64 exec, -1")
        A.label(L)

    def poll(self, srd, voff_setup, nlanes, target, tmp, barrier=True):
        A = self.A
        Lskip, Lp, Lgot = A.newlabel('pskip'), A.newlabel('poll'), A.newlabel('got')
        A(f"s_cmp_lg_u32 {s(sW)}, 0")
        A(f"s_cbranch_scc1 {Lskip}")
        voff_setup()
        A(f"s_mov_b64 exec, {(1 << nlanes) - 1}")
        A(f"s_mov_b32 {s(sT5)}, 0")
        A.label(Lp)
        A(f"buffer_load_dword v{tmp+1}, v{tmp}, {s(srd,4)}, 0 offen sc1 ; @nocount")
        A(f"s_add_u32 {s(sT5)}, {s(sT5)}, 1")
        A("s_waitcnt vmcnt(0)")
        A(f"v_cmp_gt_u32 vcc, {target}, v{tmp+1}")
        A(f"s_cbranch_vccz {Lgot}")
        A(f"s_cmp_lt_u32 {s(sT5)}, 0x40000")
        A(f"s_cbranch_scc1 {Lp}")
        A.label(Lgot)
        A("s_mov_b64 exec, -1")
        A.label(Lskip)
        if barrier: A("s_barrier")

    def signal(self, cidx_sgpr, tmp, wave=0):
        A = self.A
        L = A.newlabel('sig')
        A(f"s_cmp_lg_u32 {s(sW)}, {wave}")
        A(f"s_cbranch_scc1 {L}")
        A(f"s_lshl_b32 {s(sT5)}, {s(cidx_sgpr)}, 7")
        A(f"v_mov_b32 v{tmp}, {s(sT5)}")
        A(f"v_mov_b32 v{tmp+1}, 1")
        A("s_mov_b64 exec, 1")
        A(f"buffer_atomic_add v{tmp+1}, v{tmp}, {s(SRD_CNT,4)}, 0 offen sc1 ; @nocount")
        A("s_mov_b64 exec, -1")
        A.label(L)

    def p1(self):
        A = self.A
        XF = 16
        ACK, ACV = 96, 116
        INIT, SUM, GRAM, ONES = 136, 140, 144, 148
        KF = 152
        VTRW = 232
        VOW = 250; VOX = 255; VXA = 10
        A("v_lshrrev_b32 v2, 3, v1")
        A("v_and_b32 v3, 6, v2")
        A("v_and_b32 v4, 7, v1")
        A("v_xor_b32 v3, v3, v4")
        A("v_lshlrev_b32 v3, 4, v3")
        A("v_mul_u32_u24 v2, 1280, v2")
        A(f"v_add_u32 v{VOX}, v2, v3")
        A(f"s_lshl_b32 {s(sT0)}, {s(sR)}, 6")
        A(f"s_lshl_b32 {s(sT1)}, {s(sW)}, 4")
        A(f"s_add_u32 {s(sT0)}, {s(sT0)}, {s(sT1)}")
        A(f"s_mul_i32 {s(sT0)}, {s(sT0)}, 1280")
        A(f"s_lshl_b32 {s(sT1)}, {s(sRHO)}, 7")
        A(f"s_mul_i32 {s(sLD)}, {s(sW)}, {STAGE}")
        A(f"s_add_u32 {s(sT3)}, {s(sT0)}, {s(sT1)}")
        A(f"s_add_u32 {s(sT4)}, {s(sT0)}, 1280")
        A(f"s_mov_b32 {s(sC)}, 6554")
        A(f"s_mov_b32 {s(sC+1)}, 3840")
        A("s_waitcnt lgkmcnt(0)")
        self.srd(SRD_X, P_X, 0, 2048 * 1280)
        wv = []
        for i in range(5):
            wv += [f"v_add_u32 v2, {64*i}, v1", f"v_mul_lo_u32 v3, v2, {s(sC)}", "v_lshrrev_b32 v3, 16, v3",
                   "v_mul_u32_u24 v4, 10, v3", "v_sub_u32 v4, v2, v4", "v_and_b32 v5, 0x13, v3", "v_and_b32 v6, 4, v3",
                   "v_lshlrev_b32 v6, 1, v6", "v_and_b32 v7, 8, v3", "v_lshrrev_b32 v7, 1, v7", "v_or3_b32 v5, v5, v6, v7",
                   f"v_mul_lo_u32 v5, v5, {s(sC+1)}", f"v_lshl_add_u32 v{VOW+i}, v4, 4, v5"]
        wv += self.srd_l(SRD_W, P_WQKV, 0, 640 * 3840)
        wv += [f"s_and_b32 {s(sT0)}, {s(sW)}, 1", f"s_mul_i32 {s(sT0)}, {s(sT0)}, {32*3840}", f"s_mul_i32 {s(sT1)}, {s(sG)}, 160",
               f"s_add_u32 {s(sWB)}, {s(sT0)}, {s(sT1)}", f"s_lshr_b32 {s(sT0)}, {s(sW)}, 1", f"s_add_u32 {s(sT0)}, {s(sT0)}, 1",
               f"s_mul_i32 {s(sT0)}, {s(sT0)}, 1280", f"s_add_u32 {s(sWA)}, {s(sWB)}, {s(sT0)}"]
        xg = []
        for sl in range(10):
            xg.append([f"s_add_u32 m0, {s(sLD)}, {sl*1024}", f"s_add_u32 {s(sT2)}, {s(sT3)}, {8*1280}",
                       f"buffer_load_dwordx4 v{VOX}, {s(SRD_X,4)}, {s(sT3)} offen lds ; @x"])
            g = [f"s_add_u32 m0, {s(sLD)}, {(10+sl)*1024}", f"s_add_u32 {s(sT3)}, {s(sT3)}, 128",
                 f"buffer_load_dwordx4 v{VOX}, {s(SRD_X,4)}, {s(sT2)} offen lds ; @x"]
            if sl < 9:
                g += [f"s_cmp_ge_u32 {s(sT3)}, {s(sT4)}", f"s_cselect_b32 {s(sK2)}, 1280, 0", f"s_sub_u32 {s(sT3)}, {s(sT3)}, {s(sK2)}"]
            xg.append(g)
        per = -(-len(wv) // 20)
        for k, g in enumerate(xg):
            for t in g: A(t)
            for t in wv[k*per:(k+1)*per]: A(t)
        A(f"s_mul_i32 {s(sLD)}, {s(sW)}, 5120")
        if 'pfstart' in self.exp: self.weight_prefetch()

        def stage_groups(sig):
            pre = []
            if sig < 10:
                pre.append(f"s_add_u32 {s(sK)}, {s(sRHO)}, {sig}")
                base = sWA
            else:
                pre.append(f"s_lshr_b32 {s(sK)}, {s(sW)}, 1")
                pre.append(f"s_add_u32 {s(sK)}, {s(sK)}, {s(sRHO)}")
                pre.append(f"s_add_u32 {s(sK)}, {s(sK)}, {2*(sig-10)}")
                base = sWB
            pre += [f"s_cmp_ge_u32 {s(sK)}, 10", f"s_cselect_b32 {s(sK2)}, 10, 0", f"s_sub_u32 {s(sK)}, {s(sK)}, {s(sK2)}",
                    f"s_mul_i32 {s(sK)}, {s(sK)}, {64*3840}", f"s_add_u32 {s(sK)}, {s(sK)}, {s(base)}"]
            gs = []
            for i in range(5):
                g = [f"s_add_u32 m0, {s(sLD)}, {slot_of(sig)*STAGE + i*1024}", "s_nop 0",
                     f"buffer_load_dwordx4 v{VOW+i}, {s(SRD_W,4)}, {s(sK)} offen lds ; @st{sig}"]
                gs.append((pre if i == 0 else []) + g)
            return gs
        for sig in range(2): self.emit_groups(stage_groups(sig))
        self.code_prefetch()
        self.srd(SRD_CNT, P_WS, WS_CNT, WS_CNT_SZ)
        self.srd(SRD_DBG, P_DBG, 0, 256)
        self.srd(SRD_T, P_WS, WS_DBG, WS_DBG_SZ)
        A("v_bfe_u32 v2, v1, 2, 2")
        A("v_bfe_u32 v3, v1, 4, 1")
        A("v_lshl_add_u32 v2, v3, 2, v2")
        A("v_bfe_u32 v3, v1, 5, 1")
        A("v_lshl_add_u32 v2, v3, 4, v2")
        A("v_mul_u32_u24 v2, 160, v2")
        A("v_and_b32 v3, 3, v1")
        A(f"v_lshl_add_u32 v{VTRW}, v3, 3, v2")
        A(f"v_add_u32 v{VTRW+1}, {3*STAGE}, v{VTRW}")
        A(f"v_add_u32 v{VTRW+2}, {6*STAGE}, v{VTRW}")
        A("v_and_b32 v2, 15, v1")
        A("v_lshrrev_b32 v3, 3, v2")
        A("v_mul_u32_u24 v3, 10240, v3")
        A("v_and_b32 v4, 7, v2")
        A("v_lshl_add_u32 v3, v4, 7, v3")
        A(f"s_mul_i32 {s(sT0)}, {s(sW)}, {STAGE}")
        A(f"v_add_u32 v3, {s(sT0)}, v3")
        A("v_and_b32 v4, 6, v2")
        A("v_lshrrev_b32 v5, 4, v1")
        A("v_xor_b32 v6, v5, v4")
        A(f"v_lshl_add_u32 v{VXA}, v6, 4, v3")
        A("v_or_b32 v5, 4, v5")
        A("v_xor_b32 v6, v5, v4")
        A(f"v_lshl_add_u32 v{VXA+1}, v6, 4, v3")
        for i in range(4):
            A(f"v_mov_b32 v{ONES+i}, 0x3f803f80")
            A(f"v_mov_b32 v{INIT+i}, 0x358637bd")
        self.stamp('issued')
        A("WAITVM x")
        self.stamp('x_landed')
        for m in range(20):
            A(f"ds_read_b128 {v(XF+4*m,4)}, v{VXA+(m&1)} offset:{(m>>1)*1024}")
        self.map_p3()
        A("v_and_b32 v3, 3, v1")
        A(f"v_cmp_eq_u32 {s(sMASK,2)}, 1, v3")
        A(f"v_cmp_eq_u32 {s(sMASK+2,2)}, 2, v3")
        A(f"v_cmp_eq_u32 {s(sMASK+4,2)}, 3, v3")
        A("v_bfe_u32 v3, v1, 2, 2")
        A("v_lshrrev_b32 v4, 4, v1")
        A(f"v_cmp_eq_u32 {s(sMASK+6,2)}, v3, v4")
        A("s_waitcnt lgkmcnt(0)")
        A("s_barrier")
        mf = []
        for m in range(20):
            xf = v(XF+4*m,4)
            mf.append(f"{MF} {v(SUM,4)}, {v(ONES,4)}, {xf}, {'0' if m == 0 else v(SUM,4)}")
            mf.append(f"{MF} {v(GRAM,4)}, {xf}, {xf}, {'0' if m == 0 else v(GRAM,4)}")
        for t in weave(mf, [(stage_groups(2) + stage_groups(3), 0, 40)]): A(t)
        T = KF
        A(f"v_cndmask_b32 v{T}, v{GRAM}, v{GRAM+1}, {s(sMASK,2)}")
        A(f"v_cndmask_b32 v{T}, v{T}, v{GRAM+2}, {s(sMASK+2,2)}")
        A(f"v_cndmask_b32 v{T}, v{T}, v{GRAM+3}, {s(sMASK+4,2)}")
        A(f"v_cndmask_b32 v{T}, 0, v{T}, {s(sMASK+6,2)}")
        A(f"v_mov_b32 v{T+1}, v{T}")
        A(f"v_mul_f32 v{T+2}, {1.0/640!r}, v{SUM}")
        A(f"v_permlane16_swap_b32 v{T}, v{T+1}")
        A(f"v_add_f32 v{T}, v{T}, v{T+1}")
        A(f"v_mov_b32 v{T+1}, v{T}")
        A(f"s_mov_b32 {s(sC)}, 0xffff0000")
        A(f"v_permlane32_swap_b32 v{T}, v{T+1}")
        A(f"v_add_f32 v{T}, v{T}, v{T+1}")
        A(f"v_mul_f32 v{T}, {1.0/640!r}, v{T}")
        A(f"v_fma_f32 v{T}, -v{T+2}, v{T+2}, v{T}")
        A(f"v_max_f32 v{T}, 0, v{T}")
        A(f"v_add_f32 v{T}, 0x3727c5ac, v{T}")
        A(f"v_rsq_f32 v{T+4}, v{T}")
        A(f"v_mul_f32 v{T+6}, v{T+2}, v{T+4}")
        norm = []
        for r in range(80):
            x = XF + r; u = T + 8 + 2*(r & 3)
            norm.append([f"v_lshlrev_b32 v{u}, 16, v{x}", f"v_and_b32 v{u+1}, {s(sC)}, v{x}",
                         f"v_pk_fma_f32 {v(u,2)}, {v(u,2)}, {v(T+4,2)}, {v(T+6,2)} op_sel_hi:[1,0,0] neg_lo:[0,0,1] neg_hi:[0,0,1]",
                         f"v_cvt_pk_bf16_f32 v{x}, v{u}, v{u+1}"])
        nl = []
        for b in range(0, 80, 4):
            for k in range(4):
                for r in range(4): nl.append(norm[b+r][k])
        if 'pfnorm' in self.exp: self.weight_prefetch()
        for t in weave(nl, [(stage_groups(4) + stage_groups(5), 8, 310)]): A(t)
        self.zero_counters()
        self.stamp('normed')

        def rd(buf, sec, j, sig, h, second):
            sl = slot_of(sig)
            dst = KF + buf*40 + sec*20 + j*4 + 2*second
            return f"ds_read_b64_tr_b16 {v(dst,2)}, v{VTRW + sl // 3} offset:{(sl % 3)*STAGE + (sec*2+h)*5120 + j*32 + second*1280}"
        def reads(buf, sig, h):
            return [rd(buf, sec, j, sig, h, sec2) for j in range(5) for sec in range(2) for sec2 in range(2)]
        def mfmas(buf, m):
            first = (m == 0)
            xf = v(XF+4*m,4)
            out = []
            for j in range(5):
                kf = v(KF+buf*40+j*4,4); vf = v(KF+buf*40+20+j*4,4)
                out.append(f"{MF} {v(ACK+4*j,4)}, {xf}, {kf}, {v(INIT,4) if first else v(ACK+4*j,4)}")
                out.append(f"{MF} {v(ACV+4*j,4)}, {xf}, {vf}, {'0' if first else v(ACV+4*j,4)}")
            return out

        A("WAITVM st0")
        A("s_barrier")
        for t in reads(0, 0, 0): A(t)
        pend = []
        for sig in range(10):
            A("s_waitcnt lgkmcnt(0)")
            for t in weave(mfmas(0, 2*sig), [([[x] for x in reads(1, sig, 1)], 0, 8), (pend, 6, 10)]): A(t)
            if sig == 3:
                A("v_mov_b32 v2, 0")
                A(f"buffer_load_dword a{AZERO}, v2, {s(SRD_DBG,4)}, 0 offen sc1 ; @zero")
            if sig < 9: A(f"WAITVM st{sig+1} lgkmcnt(0)")
            else: A("s_waitcnt lgkmcnt(0)")
            A("s_barrier")
            gs = stage_groups(sig + 6) if sig + 6 <= 11 else []
            nxt = [[x] for x in reads(0, sig + 1, 0)] if sig < 9 else []
            for t in weave(mfmas(1, 2*sig+1), [(nxt, 0, 8), (gs[:3], 5, 10)]): A(t)
            pend = gs[3:]
        self.stamp('p1a_loop')

        T = KF
        VFR = T
        Y, E, PK = T + 4, T + 8, T + 12
        A(f"s_lshr_b32 {s(sT1)}, {s(sW)}, 1")
        A(f"s_lshl_b32 {s(sT1)}, {s(sT1)}, 10")
        A(f"s_add_u32 {s(sT0)}, {s(sT1)}, {FR + 20*1024}")
        A(f"v_lshl_add_u32 v5, v1, 4, {s(sT0)}")
        A(f"ds_write_b128 v5, {v(ONES,4)}")
        A(f"s_and_b32 {s(sT2)}, {s(sW)}, 1")
        A(f"s_lshl_b32 {s(sT2)}, {s(sT2)}, 3")
        A(f"s_add_u32 {s(sT1)}, {s(sT1)}, {s(sT2)}")
        A(f"s_add_u32 {s(sT1)}, {s(sT1)}, {FR}")
        A(f"v_lshl_add_u32 v{VFR}, v1, 4, {s(sT1)}")
        A(f"s_mov_b32 {s(sC2)}, {f32bits(LOG2E)}")
        A(f"s_mov_b32 {s(sC2+1)}, {f32bits(LOG2E)}")
        A(f"s_mov_b32 {s(sC)}, 0x358637bd")
        def phi_tile(acc, dst, E=E):
            out = []
            for p in range(2): out.append(f"v_pk_mul_f32 {v(E+2*p,2)}, {v(acc+2*p,2)}, {s(sC2,2)}")
            for r in range(4): out.append(f"v_exp_f32 v{E+r}, v{E+r} clamp")
            for r in range(4): out.append(f"v_max_f32 v{acc+r}, {s(sC)}, v{acc+r}")
            for p in range(2): out.append(f"v_pk_add_f32 {v(acc+2*p,2)}, {v(acc+2*p,2)}, {v(E+2*p,2)}")
            out.append(f"v_cvt_pk_bf16_f32 v{dst}, v{acc}, v{acc+1}")
            out.append(f"v_cvt_pk_bf16_f32 v{dst+1}, v{acc+2}, v{acc+3}")
            return out
        self.phi_tile = phi_tile
        for j in range(5):
            b = PK + 4*(j & 1)
            A(f"v_cvt_pk_bf16_f32 v{b+2}, v{ACV+4*j}, v{ACV+4*j+1}")
            A(f"v_cvt_pk_bf16_f32 v{b+3}, v{ACV+4*j+2}, v{ACV+4*j+3}")
            A(f"ds_write_b64 v{VFR}, {v(b+2,2)} offset:{5*2048 + j*2048}")
            for t in phi_tile(ACK+4*j, b): A(t)
            A(f"ds_write_b64 v{VFR}, {v(b,2)} offset:{j*2048}")
        ia = sum(JOBS[k][0] << (3*k) for k in range(18))
        ib = sum(JOBS[k][1] << (3*k) for k in range(18))
        self.srd(SRD_B, P_WS, WS_PART, WS_PART_SZ)
        A(f"s_lshl_b32 {s(sT4)}, {s(sG)}, 5")
        A(f"s_add_u32 {s(sT4)}, {s(sT4)}, {s(sR)}")
        A(f"s_mul_i32 {s(sT4)}, {s(sT4)}, {18*1024}")
        A("v_lshlrev_b32 v2, 4, v1")
        JADDR = T + 20
        A(f"s_mul_i32 {s(sT1)}, {s(sW)}, 3")
        A(f"s_mov_b32 {s(sC)}, {ia & 0xffffffff}")
        A(f"s_mov_b32 {s(sC+1)}, {ia >> 32}")
        A(f"s_lshr_b64 {s(sC,2)}, {s(sC,2)}, {s(sT1)}")
        A(f"s_mov_b32 {s(sC2)}, {ib & 0xffffffff}")
        A(f"s_mov_b32 {s(sC2+1)}, {ib >> 32}")
        A(f"s_lshr_b64 {s(sC2,2)}, {s(sC2,2)}, {s(sT1)}")
        for q in range(5):
            A(f"s_and_b32 {s(sT2)}, {s(sC)}, 7")
            A(f"s_and_b32 {s(sT3)}, {s(sC2)}, 7")
            A(f"s_lshl_b32 {s(sT2)}, {s(sT2)}, 11")
            A(f"s_lshl_b32 {s(sT3)}, {s(sT3)}, 11")
            A(f"s_add_u32 {s(sT2)}, {s(sT2)}, {FR}")
            A(f"s_add_u32 {s(sT3)}, {s(sT3)}, {FR + 5*2048}")
            A(f"v_add_u32 v{JADDR+2*q}, {s(sT2)}, v2")
            A(f"v_add_u32 v{JADDR+2*q+1}, {s(sT3)}, v2")
            if q < 4:
                A(f"s_lshr_b64 {s(sC,2)}, {s(sC,2)}, 12")
                A(f"s_lshr_b64 {s(sC2,2)}, {s(sC2,2)}, 12")
        A("s_waitcnt lgkmcnt(0)")
        A("s_barrier")
        JF = T + 32
        JD = 96
        def jreads(q, base):
            return [f"ds_read_b128 {v(base,4)}, v{JADDR+2*q}", f"ds_read_b128 {v(base+4,4)}, v{JADDR+2*q+1}",
                    f"ds_read_b128 {v(base+8,4)}, v{JADDR+2*q} offset:1024", f"ds_read_b128 {v(base+12,4)}, v{JADDR+2*q+1} offset:1024"]
        for q in range(3):
            for t in jreads(q, JF + 16*q): A(t)
        A(f"s_lshl_b32 {s(sT0)}, {s(sW)}, 10")
        A(f"s_add_u32 {s(sT0)}, {s(sT0)}, {s(sT4)}")
        for q in range(5):
            b = JF + 16*(q % 3)
            A(f"s_waitcnt lgkmcnt({min(8, 4*(min(q+3,5)-q-1))})")
            A(f"{MF} {v(JD+4*q,4)}, {v(b,4)}, {v(b+4,4)}, 0")
            A(f"{MF} {v(JD+4*q,4)}, {v(b+8,4)}, {v(b+12,4)}, {v(JD+4*q,4)}")
            if q + 3 < 5:
                for t in jreads(q + 3, b): A(t)
        for q in range(5):
            if q == 4:
                A(f"s_cmp_lt_u32 {s(sW)}, 2")
                A(f"s_cselect_b32 {s(sT0)}, {s(sT0)}, {OOB}")
            A(f"buffer_store_dwordx4 {v(JD+4*q,4)}, v2, {s(SRD_B,4)}, {s(sT0)} offen sc1 ; @part")
            if q < 4: A(f"s_add_u32 {s(sT0)}, {s(sT0)}, 4096")
        self.stamp('p1a_epi')

        ACQ = 116
        QF = KF
        def rdq(buf, j, ks, second):
            sl = slot_of(10 + ks // 4)
            return f"ds_read_b64_tr_b16 {v(QF+buf*20+j*4+2*second,2)}, v{VTRW + sl // 3} offset:{(sl % 3)*STAGE + (ks % 4)*5120 + j*32 + second*1280}"
        def readsq(buf, ks): return [rdq(buf, j, ks, sec2) for j in range(5) for sec2 in range(2)]
        def mfq(buf, m):
            return [f"{MF} {v(ACQ+4*j,4)}, {v(QF+buf*20+j*4,4)}, {v(XF+4*m,4)}, {v(INIT,4) if m == 0 else v(ACQ+4*j,4)}" for j in range(5)]
        A("WAITVM st11")
        A("s_barrier")
        for t in readsq(0, 0): A(t)
        late = stage_groups(12) + stage_groups(13) + stage_groups(14)
        w3 = self.w3_groups()
        for ks in range(20):
            if ks in (7, 11, 15):
                A(f"WAITVM st{12 + (ks - 7)//4} lgkmcnt(0)")
                A("s_barrier")
            else:
                A("s_waitcnt lgkmcnt(0)")
            if ks == 5:
                A("WAITVM part")
                A("s_barrier")
                self.check_zero_done()
                A(f"s_add_u32 {s(sT0)}, {s(sG)}, {C_A}")
                self.signal(sT0, 2)
            if ks == 6 and 'pflate' in self.exp: self.weight_prefetch(late=True)
            side = [[x] for x in readsq((ks+1) & 1, ks+1)] if ks < 19 else []
            streams = [(side, 0, 4)]
            if ks < 5: streams.append((late[3*ks:3*ks+3], 1, 5))
            if ks >= 8:
                k0 = (ks - 8) * 2
                streams.append((w3[k0:k0+2], 2, 5))
            for t in weave(mfq(ks & 1, ks), streams): A(t)
        self.ACQ = ACQ
        self.stamp('p1b_loop')

    def check_zero_done(self):
        A = self.A
        L = A.newlabel('zok')
        A(f"v_accvgpr_read_b32 v2, a{AZERO}")
        A("s_nop 0")
        A(f"v_readfirstlane_b32 {s(sT0)}, v2")
        A(f"s_cmp_ge_u32 {s(sT0)}, {NZERO}")
        A(f"s_cbranch_scc1 {L}")
        self.poll(SRD_DBG, lambda: A("v_mov_b32 v2, 0"), 1, NZERO, 2, barrier=False)
        A.label(L)

    def q_epilogue(self):
        A = self.A
        PQ = self.PQ = 232
        A(f"s_mov_b32 {s(sC2)}, {f32bits(LOG2E)}")
        A(f"s_mov_b32 {s(sC2+1)}, {f32bits(LOG2E)}")
        A(f"s_mov_b32 {s(sC)}, 0x358637bd")
        for j in range(5):
            for t in self.phi_tile(self.ACQ+4*j, PQ+2*j, E=200 + 4*(j & 1)): A(t)
        A(f"v_mov_b32 v{PQ+10}, 0")
        A(f"v_mov_b32 v{PQ+11}, 0")
        if self.dbg:
            A(f"s_lshl_b32 {s(sT0)}, s2, 2")
            A(f"s_add_u32 {s(sT0)}, {s(sT0)}, {s(sW)}")
            A(f"s_mul_i32 {s(sT0)}, {s(sT0)}, {5*512}")
            A("v_lshlrev_b32 v2, 3, v1")
            for j in range(5):
                A(f"buffer_store_dwordx2 {v(PQ+2*j,2)}, v2, {s(SRD_T,4)}, {s(sT0)} offen offset:{j*512}")

    def map_p3(self):
        A = self.A
        A(f"s_lshr_b32 {s(sT0)}, {s(sXCD)}, 1")
        A(f"s_mul_i32 {s(sT1)}, {s(sJ)}, 52")
        A(f"s_lshr_b32 {s(sT1)}, {s(sT1)}, 8")
        A(f"s_mul_i32 {s(sT2)}, {s(sT1)}, 5")
        A(f"s_sub_u32 {s(sT2)}, {s(sJ)}, {s(sT2)}")
        A(f"s_and_b32 {s(sT3)}, {s(sXCD)}, 1")
        A(f"s_mul_i32 {s(sT3)}, {s(sT3)}, 5")
        A(f"s_add_u32 {s(sC3)}, {s(sT2)}, {s(sT3)}")
        A(f"s_mul_i32 {s(sT2)}, {s(sT0)}, 6")
        A(f"s_cmp_eq_u32 {s(sT0)}, 3")
        A(f"s_cselect_b32 {s(sT3)}, 1, 0")
        A(f"s_sub_u32 {s(sT2)}, {s(sT2)}, {s(sT3)}")
        A(f"s_add_u32 {s(sR3)}, {s(sT2)}, {s(sT1)}")
        A(f"s_cmp_ge_u32 {s(sT0)}, 2")
        A(f"s_cselect_b32 {s(sT3)}, 5, 6")
        A(f"s_cmp_lt_u32 {s(sT1)}, {s(sT3)}")
        A(f"s_cselect_b32 {s(sV3)}, 1, 0")
        A(f"s_lshr_b32 {s(sT0)}, {s(sXCD)}, 2")
        A(f"s_lshl_b32 {s(sT0)}, {s(sT0)}, 2")
        A(f"s_and_b32 {s(sT1)}, {s(sJ)}, 3")
        A(f"s_add_u32 {s(sR4)}, {s(sT0)}, {s(sT1)}")
        A(f"s_and_b32 {s(sT0)}, {s(sXCD)}, 3")
        A(f"s_lshr_b32 {s(sT1)}, {s(sJ)}, 2")
        A(f"s_mul_i32 {s(sT2)}, {s(sT0)}, 7")
        A(f"s_add_u32 {s(sS4)}, {s(sT2)}, {s(sT1)}")
        A(f"s_cmp_eq_u32 {s(sT0)}, 3")
        A(f"s_cselect_b32 {s(sT2)}, 6, 7")
        A(f"s_cmp_lt_u32 {s(sT1)}, {s(sT2)}")
        A(f"s_cselect_b32 {s(sV4)}, 1, 0")

    def slab_voffset_l(self, dst, rowstride):
        return ["v_lshrrev_b32 v2, 3, v1", "v_bfe_u32 v3, v1, 4, 2", "v_lshlrev_b32 v3, 1, v3", "v_and_b32 v4, 7, v1",
                "v_xor_b32 v3, v3, v4", "v_lshlrev_b32 v3, 4, v3", f"v_mul_u32_u24 v2, {rowstride}, v2",
                f"v_add_u32 v{dst}, v2, v3"]

    def tr_addrs(self, dst, base, perm_sgpr=None):
        A = self.A
        A("v_bfe_u32 v2, v1, 2, 2")
        A("v_lshrrev_b32 v3, 4, v1")
        A("v_lshl_add_u32 v2, v3, 2, v2")
        A("v_bfe_u32 v3, v2, 1, 2")
        A("v_and_b32 v4, 3, v1")
        A("v_lshlrev_b32 v4, 3, v4")
        A("v_lshl_add_u32 v2, v2, 7, v4")
        A(f"v_add_u32 v2, {base}, v2")
        if perm_sgpr is not None: A(f"v_xor_b32 v3, {s(perm_sgpr)}, v3")
        for ct in range(4):
            A(f"v_xor_b32 v4, {ct}, v3")
            A(f"v_lshl_add_u32 v{dst+ct}, v4, 5, v2")

    def w3_groups(self):
        pre = self.slab_voffset_l(VSLAB, 1280) + self.srd_l(SRD_W2, P_WO, 0, 640 * 1280) + [
            f"s_mul_i32 {s(sK2)}, {s(sW)}, {160*1280}", f"s_lshl_b32 {s(sK3)}, {s(sC3)}, 7",
            f"s_add_u32 {s(sK2)}, {s(sK2)}, {s(sK3)}",
            f"s_cmp_eq_u32 {s(sV3)}, 0", f"s_cselect_b32 {s(sK2)}, {OOB}, {s(sK2)}",
            f"s_add_u32 {s(sK3)}, {s(sW)}, 4", f"s_mul_i32 {s(sK3)}, {s(sK3)}, {STAGE}"]
        gs = []
        for i in range(20):
            g = [f"s_add_u32 m0, {s(sK3)}, {i*1024}", "s_nop 0",
                 f"buffer_load_dwordx4 v{VSLAB}, {s(SRD_W2,4)}, {s(sK2)} offen lds",
                 f"s_add_u32 {s(sK2)}, {s(sK2)}, {8*1280}"]
            gs.append((pre if i == 0 else []) + g)
        gs += [[] for _ in range(4)]
        return gs

    def w4_groups(self, m0, m1):
        pre = [f"s_lshl_b32 {s(sK2)}, {s(sW)}, 3", f"s_add_u32 {s(sK2)}, {s(sK2)}, {32*m0}",
               f"s_mul_i32 {s(sK2)}, {s(sK2)}, 3456", f"s_lshl_b32 {s(sK3)}, {s(sS4)}, 7",
               f"s_add_u32 {s(sK2)}, {s(sK2)}, {s(sK3)}",
               f"s_cmp_eq_u32 {s(sV4)}, 0", f"s_cselect_b32 {s(sK2)}, {OOB}, {s(sK2)}",
               f"s_lshl_b32 {s(sK3)}, {s(sW)}, 10"]
        gs = []
        for m in range(m0, m1):
            gs.append((pre if m == m0 else []) + [f"s_add_u32 m0, {s(sK3)}, {m*8192}", "s_nop 0",
                      f"buffer_load_dwordx4 v{VSLAB4}, {s(SRD_W,4)}, {s(sK2)} offen lds ; @w4"])
            gs.append([f"s_add_u32 m0, {s(sK3)}, {m*8192 + 4096}", "s_nop 0",
                      f"buffer_load_dwordx4 v{VSLAB4}, {s(SRD_W2,4)}, {s(sK2)} offen lds ; @w4",
                      f"s_add_u32 {s(sK2)}, {s(sK2)}, {32*3456}"])
        return gs

    def w5_groups(self, m0, m1, tag):
        base = 81920 if 5 <= m0 < 10 else 0
        pre = []
        if m0 == 0:
            pre += self.srd_l(SRD_W, P_WD, 0, 1728 * 1280)
        pre += [f"s_mul_i32 {s(sK2)}, {s(sW)}, 14", f"s_add_u32 {s(sK2)}, {s(sK2)}, {m0}",
                f"s_mul_i32 {s(sK2)}, {s(sK2)}, {32*1280}", f"s_lshl_b32 {s(sK3)}, {s(sC3)}, 7",
                f"s_add_u32 {s(sK2)}, {s(sK2)}, {s(sK3)}",
                f"s_cmp_eq_u32 {s(sV3)}, 0", f"s_cselect_b32 {s(sK2)}, {OOB}, {s(sK2)}",
                f"s_mul_i32 {s(sK3)}, {s(sW)}, 20480"]
        gs = []
        for mm in range(m0, m1):
            for i in range(4):
                gs.append((pre if (mm == m0 and i == 0) else []) + [f"s_add_u32 m0, {s(sK3)}, {base + (mm-m0)*4096 + i*1024}", "s_nop 0",
                          f"buffer_load_dwordx4 v{VSLAB}, {s(SRD_W,4)}, {s(sK2)} offen lds ; @{tag}",
                          f"s_add_u32 {s(sK2)}, {s(sK2)}, {8*1280}"])
        return gs

    def colsum_part(self, m0, m1, VB, TMP):
        A = self.A
        A("v_bfe_u32 v2, v1, 2, 2")
        A("v_lshrrev_b32 v3, 4, v1")
        A("v_lshl_add_u32 v2, v3, 2, v2")
        A("v_bfe_u32 v3, v2, 1, 2")
        A(f"v_xor_b32 v3, {s(sW)}, v3")
        A("v_and_b32 v4, 3, v1")
        A("v_lshlrev_b32 v4, 3, v4")
        A("v_lshl_add_u32 v2, v2, 7, v4")
        A(f"v_lshl_add_u32 v{VB}, v3, 5, v2")
        if m0: A(f"v_add_u32 v{VB}, {m0*8192}, v{VB}")
        for i in range(4): A(f"v_mov_b32 v{TMP+i}, 0x3f803f80")
        NB = 3
        def rd(m):
            k = m - m0; b = TMP + 4 + (k % NB) * 8
            pre = [f"v_add_u32 v{VB}, 57344, v{VB}"] if (k and k % 7 == 0) else []
            return pre + [f"ds_read_b64_tr_b16 {v(b+sec*4+2*h,2)}, v{VB} offset:{(k % 7)*8192 + sec*4096 + h*2048}" for sec in range(2) for h in range(2)]
        for m in range(m0, min(m0 + NB - 1, m1)):
            for t in rd(m): A(t)
        for m in range(m0, m1):
            if m + NB - 1 < m1:
                for t in rd(m + NB - 1): A(t)
            A(f"s_waitcnt lgkmcnt({4*min(NB - 1, m1 - 1 - m)})")
            b = TMP + 4 + ((m - m0) % NB) * 8
            for sec in range(2):
                A(f"{MF} {a(ACS+4*sec,4)}, {v(b+sec*4,4)}, {v(TMP,4)}, {'0' if m == 0 else a(ACS+4*sec,4)}")

    def emit_groups(self, gs):
        for g in gs:
            for t in g: self.A(t)

    def p2(self):
        A = self.A
        half_items = []
        for (j, i0, i1) in [(0,0,1),(1,0,1),(1,2,7),(2,1,2),(2,3,7),(3,2,3),(3,4,7),(4,3,4)]:
            half_items += [(i0, j), (i1, j)]
        ti = sum(h[0] << (3*k) for k, h in enumerate(half_items))
        tj = sum(h[1] << (3*k) for k, h in enumerate(half_items))
        A(f"s_and_b32 {s(sT0)}, {s(sR)}, 15")
        A(f"s_mul_i32 {s(sT0)}, {s(sT0)}, 3")
        A(f"s_mov_b32 {s(sC)}, {ti & 0xffffffff}")
        A(f"s_mov_b32 {s(sC+1)}, {ti >> 32}")
        A(f"s_lshr_b64 {s(sC,2)}, {s(sC,2)}, {s(sT0)}")
        A(f"s_and_b32 {s(sT1)}, {s(sC)}, 7")
        A(f"s_mov_b32 {s(sC)}, {tj & 0xffffffff}")
        A(f"s_mov_b32 {s(sC+1)}, {tj >> 32}")
        A(f"s_lshr_b64 {s(sC,2)}, {s(sC,2)}, {s(sT0)}")
        A(f"s_and_b32 {s(sT2)}, {s(sC)}, 7")
        A(f"s_lshl_b32 {s(sT3)}, {s(sT1)}, 1")
        A(f"s_add_u32 {s(sT3)}, {s(sT3)}, {s(sT2)}")
        A(f"s_add_u32 {s(sT4)}, {s(sT1)}, 13")
        A(f"s_cmp_ge_u32 {s(sR)}, 16")
        A(f"s_cselect_b32 {s(sT3)}, {s(sT4)}, {s(sT3)}")
        A(f"s_cmp_eq_u32 {s(sT1)}, 7")
        A(f"s_cselect_b32 {s(sT3)}, 0, {s(sT3)}")
        self.srd(SRD_A, P_WS, WS_PART, WS_PART_SZ)
        A(f"s_lshl_b32 {s(sT4)}, {s(sG)}, 5")
        A(f"s_lshl_b32 {s(sT0)}, {s(sW)}, 3")
        A(f"s_add_u32 {s(sT4)}, {s(sT4)}, {s(sT0)}")
        A(f"s_mul_i32 {s(sT4)}, {s(sT4)}, 18")
        A(f"s_add_u32 {s(sT4)}, {s(sT4)}, {s(sT3)}")
        A(f"s_lshl_b32 {s(sK)}, {s(sT4)}, 10")
        A(f"s_mov_b32 {s(sC)}, 3277")
        A("v_and_b32 v3, 15, v1")
        A(f"s_lshl_b32 {s(sT0)}, {s(sT2)}, 4")
        A(f"v_add_u32 v3, {s(sT0)}, v3")
        A(f"v_mul_lo_u32 v3, v3, {s(sC)}")
        A("v_lshrrev_b32 v3, 16, v3")
        A("v_lshrrev_b32 v4, 4, v1")
        A(f"s_lshl_b32 {s(sT0)}, {s(sT1)}, 4")
        A(f"v_lshl_add_u32 v4, v4, 2, {s(sT0)}")
        for r in range(4):
            A(f"v_add_u32 v5, {r}, v4")
            A(f"v_mul_lo_u32 v5, v5, {s(sC)}")
            A("v_lshrrev_b32 v5, 16, v5")
            A(f"v_cmp_eq_u32 {s(sMASK+2*r,2)}, v5, v3")
        def setupA():
            A(f"s_add_u32 {s(sT0)}, {s(sG)}, {C_A}")
            A(f"s_lshl_b32 {s(sT0)}, {s(sT0)}, 7")
            A(f"v_mov_b32 v2, {s(sT0)}")
        self.poll(SRD_CNT, setupA, 1, 32, 2)
        self.stamp('cA')
        T = 164
        A("v_lshlrev_b32 v6, 4, v1")
        for k in range(8):
            A(f"buffer_load_dwordx4 {v(T+4*k,4)}, v6, {s(SRD_A,4)}, {s(sK)} offen sc1")
            if k < 7: A(f"s_add_u32 {s(sK)}, {s(sK)}, {18*1024}")
        self.q_epilogue()
        self.stamp('q_epi')
        A("s_waitcnt vmcnt(0)")
        for k in (4, 2, 1):
            for b in range(k):
                for p in range(2):
                    A(f"v_pk_add_f32 {v(T+4*b+2*p,2)}, {v(T+4*b+2*p,2)}, {v(T+4*(b+k)+2*p,2)}")
        A(f"s_lshl_b32 {s(sT0)}, {s(sW)}, 10")
        A(f"s_add_u32 {s(sT0)}, {s(sT0)}, {RED2}")
        A(f"v_add_u32 v3, {s(sT0)}, v6")
        A(f"ds_write_b128 v3, {v(T,4)}")
        A("s_waitcnt lgkmcnt(0)")
        A("s_barrier")
        Lr = A.newlabel('red')
        A(f"s_cmp_lg_u32 {s(sW)}, 0")
        A(f"s_cbranch_scc1 {Lr}")
        A(f"v_add_u32 v3, {RED2}, v6")
        for k in range(4):
            A(f"ds_read_b128 {v(T+4*k,4)}, v3 offset:{k*1024}")
        self.srd(SRD_B, P_WS, WS_KVF, WS_KVF_SZ)
        A(f"s_lshl_b32 {s(sT0)}, {s(sG)}, 14")
        A(f"s_lshr_b32 {s(sT1)}, {s(sR)}, 1")
        A(f"s_lshl_b32 {s(sT1)}, {s(sT1)}, 10")
        A(f"s_add_u32 {s(sT0)}, {s(sT0)}, {s(sT1)}")
        A(f"s_and_b32 {s(sT1)}, {s(sR)}, 1")
        A(f"s_lshl_b32 {s(sT1)}, {s(sT1)}, 3")
        A(f"s_add_u32 {s(sT0)}, {s(sT0)}, {s(sT1)}")
        A("s_waitcnt lgkmcnt(0)")
        for p in range(2):
            A(f"v_pk_add_f32 {v(T+2*p,2)}, {v(T+2*p,2)}, {v(T+4+2*p,2)}")
            A(f"v_pk_add_f32 {v(T+8+2*p,2)}, {v(T+8+2*p,2)}, {v(T+12+2*p,2)}")
        for p in range(2):
            A(f"v_pk_add_f32 {v(T+2*p,2)}, {v(T+2*p,2)}, {v(T+8+2*p,2)}")
        for r in range(4):
            A(f"v_cndmask_b32 v{T+r}, 0, v{T+r}, {s(sMASK+2*r,2)}")
        A(f"v_cvt_pk_bf16_f32 v{T}, v{T}, v{T+1}")
        A(f"v_cvt_pk_bf16_f32 v{T+1}, v{T+2}, v{T+3}")
        A(f"buffer_store_dwordx2 {v(T,2)}, v6, {s(SRD_B,4)}, {s(sT0)} offen sc1")
        A("s_waitcnt vmcnt(0)")
        A(f"s_add_u32 {s(sT0)}, {s(sG)}, {C_B}")
        self.signal(sT0, 4)
        A.label(Lr)
        self.stamp('red_done')
        for t in self.slab_voffset_l(VSLAB4, 3456): A(t)
        self.srd(SRD_W, P_WG, 0, 640 * 3456)
        self.srd(SRD_W2, P_WU, 0, 640 * 3456)
        self.emit_groups(self.w4_groups(0, W4_E1))
        A(f"s_add_u32 {s(sT0)}, {s(sW)}, 4")
        A(f"s_mul_i32 {s(sT0)}, {s(sT0)}, {STAGE}")
        A(f"s_and_b32 {s(sT1)}, {s(sW)}, 1")
        A(f"s_lshl_b32 {s(sT1)}, {s(sT1)}, 1")
        self.tr_addrs(VTR3, s(sT0), perm_sgpr=sT1)
        for mm in range(5):
            for ct in range(4):
                for sec in range(2):
                    A(f"ds_read_b64_tr_b16 {a(mm*16+ct*4+2*sec,2)}, v{VTR3+ct} offset:{mm*4096+sec*2048}")
        A("WAITVM w4 lgkmcnt(0)")
        A("s_barrier")
        self.colsum_part(0, W4_E1, 6, 196)
        def setupB():
            A(f"s_add_u32 {s(sT0)}, {s(sG)}, {C_B}")
            A(f"s_lshl_b32 {s(sT0)}, {s(sT0)}, 7")
            A(f"v_mov_b32 v2, {s(sT0)}")
        A("s_waitcnt lgkmcnt(0)")
        self.poll(SRD_CNT, setupB, 1, 32, 2)
        self.stamp('cB')
        PQ = self.PQ
        self.srd(SRD_A, P_WS, WS_KVF, WS_KVF_SZ)
        A("v_lshlrev_b32 v6, 4, v1")
        A(f"s_lshl_b32 {s(sT0)}, {s(sG)}, 14")
        KV = 164
        order = [0, 8, 1, 2, 9, 10, 3, 4, 11, 12, 5, 6, 13, 14, 7, 15]
        A(f"s_add_u32 {s(sT1)}, {s(sT0)}, 4096")
        A(f"s_add_u32 {s(sT2)}, {s(sT0)}, 8192")
        A(f"s_add_u32 {s(sT3)}, {s(sT0)}, 12288")
        for f in order:
            A(f"buffer_load_dwordx4 {v(KV+4*f,4)}, v6, {s(SRD_A,4)}, {s([sT0,sT1,sT2,sT3][f >> 2])} offen offset:{(f & 3)*1024} sc1")
        NUM, DEN = 96, 116
        plan = [(0, 0, True), (1, 0, True), (1, 4, False), (2, 2, True), (2, 6, False), (3, 4, True), (3, 8, False), (4, 6, True)]
        self.srd(SRD_B, P_WS, WS_O, WS_O_SZ)
        A(f"s_lshl_b32 {s(sT0)}, {s(sR)}, 2")
        A(f"s_add_u32 {s(sT0)}, {s(sT0)}, {s(sW)}")
        A(f"s_mul_i32 {s(sT0)}, {s(sT0)}, {20*1024}")
        A(f"s_mul_i32 {s(sT1)}, {s(sG)}, 5")
        A(f"s_mov_b32 {s(sC)}, 0x358637bd")
        A(f"s_mov_b32 {s(sC+1)}, 0x358637bd")
        done = 0
        for j in range(5):
            fs = [f for f, pl in enumerate(plan) if pl[0] == j]
            done += 2 * len(fs)
            A(f"s_waitcnt vmcnt({16 - done})")
            for f in fs:
                _, boff, first = plan[f]
                A(f"{MF} {v(NUM+4*j,4)}, {v(KV+4*f,4)}, {v(PQ+boff,4)}, {'0' if first else v(NUM+4*j,4)}")
                A(f"{MF} {v(DEN+4*j,4)}, {v(KV+32+4*f,4)}, {v(PQ+boff,4)}, {'0' if first else v(DEN+4*j,4)}")
        for j in range(5):
            for p in range(2):
                A(f"v_pk_add_f32 {v(DEN+4*j+2*p,2)}, {v(DEN+4*j+2*p,2)}, {s(sC,2)}")
            for r in range(4):
                A(f"v_rcp_f32 v{DEN+4*j+r}, v{DEN+4*j+r}")
            A(f"s_add_u32 {s(sT2)}, {s(sT1)}, {j}")
            A(f"s_lshr_b32 {s(sT3)}, {s(sT2)}, 1")
            A(f"s_lshl_b32 {s(sT3)}, {s(sT3)}, 10")
            A(f"s_and_b32 {s(sT2)}, {s(sT2)}, 1")
            A(f"s_lshl_b32 {s(sT2)}, {s(sT2)}, 3")
            A(f"s_add_u32 {s(sT2)}, {s(sT2)}, {s(sT3)}")
            A(f"s_add_u32 {s(sT2)}, {s(sT2)}, {s(sT0)}")
            for p in range(2):
                A(f"v_pk_mul_f32 {v(NUM+4*j+2*p,2)}, {v(NUM+4*j+2*p,2)}, {v(DEN+4*j+2*p,2)}")
            A(f"v_cvt_pk_bf16_f32 v{NUM+4*j}, v{NUM+4*j}, v{NUM+4*j+1}")
            A(f"v_cvt_pk_bf16_f32 v{NUM+4*j+1}, v{NUM+4*j+2}, v{NUM+4*j+3}")
            A(f"buffer_store_dwordx2 {v(NUM+4*j,2)}, v6, {s(SRD_B,4)}, {s(sT2)} offen sc1")
        A("s_waitcnt vmcnt(0)")
        A("s_barrier")
        A(f"s_add_u32 {s(sT0)}, {s(sR)}, {C_O}")
        self.signal(sT0, 4)
        self.stamp('o_sig')
        self.emit_groups(self.w4_groups(W4_E1, W4_E2))

    def slot_tile(self, a_, b_): return (a_*4 + b_)
    def reduce_writes(self, ACC, rels):
        out = []
        for a_ in range(6):
            for b_ in range(4):
                rel = (a_ // 3) * 2 + (b_ >> 1)
                if rel in rels:
                    idx = (a_ % 3) * 2 + (b_ & 1)
                    out.append(f"ds_write_b128 v{self.VRW+rel-1}, {v(ACC + (a_*4+b_)*4, 4)} offset:{idx*1024}")
        return out
    def reduce_setup(self, VRW, VRR):
        A = self.A
        self.VRW, self.VRR = VRW, VRR
        for rel in range(1, 4):
            A(f"s_xor_b32 {s(sT0)}, {s(sW)}, {rel}")
            A(f"s_mul_i32 {s(sT0)}, {s(sT0)}, {3*6144}")
            A(f"s_add_u32 {s(sT0)}, {s(sT0)}, {RED3 + (rel-1)*6144}")
            A(f"v_lshl_add_u32 v{VRW+rel-1}, v1, 4, {s(sT0)}")
        A(f"s_mul_i32 {s(sT0)}, {s(sW)}, {3*6144}")
        A(f"s_add_u32 {s(sT0)}, {s(sT0)}, {RED3}")
        A(f"v_lshl_add_u32 v{VRR}, v1, 4, {s(sT0)}")
    def reduce_finish(self, ACC, TMP):
        A = self.A
        for rel in range(1, 4):
            for idx in range(6):
                A(f"ds_read_b128 {v(TMP + ((rel-1)*6+idx)*4, 4)}, v{self.VRR} offset:{(rel-1)*6144 + idx*1024}")
        for rel in range(1, 4):
            A(f"s_waitcnt lgkmcnt({min(15, 6*(3-rel))})")
            for idx in range(6):
                d = ACC + ((idx // 2)*4 + (idx & 1))*4; t = TMP + ((rel-1)*6+idx)*4
                for p in range(2):
                    A(f"v_pk_add_f32 {v(d+2*p,2)}, {v(d+2*p,2)}, {v(t+2*p,2)}")

    def p3(self):
        A = self.A
        Lend = A.newlabel('p3end')
        A(f"s_cmp_eq_u32 {s(sV3)}, 0")
        A(f"s_cbranch_scc1 {Lend}")
        ACC, XR = 16, 112
        A("v_and_b32 v2, 15, v1")
        A("v_mul_u32_u24 v2, 1280, v2")
        A("v_lshrrev_b32 v3, 4, v1")
        A(f"v_lshl_add_u32 v{VXR}, v3, 3, v2")
        A(f"s_lshr_b32 {s(sT0)}, {s(sW)}, 1")
        A(f"s_mul_i32 {s(sT0)}, {s(sT0)}, 3")
        A(f"s_mul_i32 {s(sT1)}, {s(sR3)}, 6")
        A(f"s_add_u32 {s(sTT)}, {s(sT0)}, {s(sT1)}")
        A(f"s_mul_i32 {s(sT0)}, {s(sTT)}, {16*1280}")
        A(f"s_lshl_b32 {s(sT1)}, {s(sC3)}, 7")
        A(f"s_add_u32 {s(sT0)}, {s(sT0)}, {s(sT1)}")
        A(f"s_and_b32 {s(sT1)}, {s(sW)}, 1")
        A(f"s_lshl_b32 {s(sT1)}, {s(sT1)}, 6")
        A(f"s_add_u32 {s(sXO)}, {s(sT0)}, {s(sT1)}")
        A(f"s_mov_b32 {s(sT0)}, {s(sXO)}")
        for i in range(3):
            for c in range(2):
                A(f"buffer_load_dwordx2 {v(XR+4*i+2*c,2)}, v{VXR}, {s(SRD_X,4)}, {s(sT0)} offen offset:{32*c}")
            if i < 2: A(f"s_add_u32 {s(sT0)}, {s(sT0)}, {16*1280}")
        self.reduce_setup(124, 127)
        self.srd(SRD_A, P_WS, WS_O, WS_O_SZ)
        VA = 128
        A("v_lshlrev_b32 v2, 4, v1")
        A(f"s_lshr_b32 {s(sT0)}, {s(sW)}, 1")
        A(f"s_mul_i32 {s(sT0)}, {s(sT0)}, {3*20*1024}")
        for a_ in range(6):
            if a_ < 3:
                A(f"s_add_u32 {s(sT1)}, {s(sT0)}, {a_*20*1024}")
            else:
                A(f"s_sub_u32 {s(sT1)}, {a_*20*1024}, {s(sT0)}")
                A(f"s_cmp_ge_u32 {s(sT1)}, {3*20*1024}")
            A(f"v_add_u32 v{VA+a_}, {s(sT1)}, v2")
        A(f"s_mul_i32 {s(sK)}, {s(sR3)}, {6*20*1024}")
        A(f"s_mul_i32 {s(sT1)}, {s(sW)}, {5*1024}")
        A(f"s_add_u32 {s(sK)}, {s(sK)}, {s(sT1)}")
        def setup():
            A(f"s_mul_i32 {s(sT0)}, {s(sR3)}, 3")
            A(f"s_lshr_b32 {s(sT0)}, {s(sT0)}, 1")
            A(f"v_add_u32 v2, {s(sT0)}, v1")
            A("v_min_u32 v2, 31, v2")
            A(f"v_add_u32 v2, {C_O}, v2")
            A("v_lshlrev_b32 v2, 7, v2")
        self.poll(SRD_CNT, setup, 2, 8, 2)
        self.stamp('cO')
        OF = 80
        order = [3, 4, 5, 0, 1, 2]
        for a_ in order:
            for mm in range(5):
                A(f"buffer_load_dwordx4 {a(OF+(a_*5+mm)*4,4)}, v{VA+a_}, {s(SRD_A,4)}, {s(sK)} offen offset:{mm*1024 if mm < 4 else 0} sc1"
                  if mm < 4 else
                  f"buffer_load_dwordx4 {a(OF+(a_*5+mm)*4,4)}, v{VA+a_}, {s(SRD_A,4)}, {s(sK3)} offen sc1")
                if a_ == order[0] and mm == 0: A(f"s_add_u32 {s(sK3)}, {s(sK)}, 4096")
        def mm_tile(a_, b_, mm):
            d = ACC + (a_*4+b_)*4
            return f"{MF} {v(d,4)}, {a(mm*16+b_*4,4)}, {a(OF+(a_*5+mm)*4,4)}, {'0' if mm == 0 else v(d,4)}"
        for n, a_ in enumerate((3, 4, 5)):
            A(f"s_waitcnt vmcnt({25 - 5*n})")
            for mm in range(5):
                for b_ in range(4): A(mm_tile(a_, b_, mm))
        main = []
        for n, a_ in enumerate((0, 1, 2)):
            blk = [mm_tile(a_, b_, mm) for mm in range(5) for b_ in (2, 3)]
            main += [f"s_waitcnt vmcnt({10 - 5*n})"] + blk
        wr = self.reduce_writes(ACC, (2, 3))
        for t in weave(main, [([[x] for x in wr], 8, len(main))]): A(t)
        main = [mm_tile(a_, b_, mm) for a_ in range(3) for mm in range(5) for b_ in (0, 1)]
        wr = self.reduce_writes(ACC, (1,))
        for t in weave(main, [([[x] for x in wr], 6, 24)]): A(t)
        self.stamp('p3_mfma')
        A("s_waitcnt lgkmcnt(0)")
        A("s_barrier")
        self.reduce_finish(ACC, 136)
        self.stamp('p3_red')
        T = 136; HR = 148
        self.srd(SRD_B, P_WS, WS_H, WS_H_SZ)
        self.srd(SRD_A, P_WS, WS_HST, WS_HST_SZ)
        A(f"s_mul_i32 {s(sT0)}, {s(sTT)}, 20")
        A(f"s_lshl_b32 {s(sT1)}, {s(sC3)}, 1")
        A(f"s_add_u32 {s(sT0)}, {s(sT0)}, {s(sT1)}")
        A(f"s_and_b32 {s(sT1)}, {s(sW)}, 1")
        A(f"s_add_u32 {s(sT0)}, {s(sT0)}, {s(sT1)}")
        A(f"s_lshl_b32 {s(sT1)}, {s(sT0)}, 10")
        A(f"s_lshl_b32 {s(sT2)}, {s(sT0)}, 7")
        A("v_lshlrev_b32 v4, 4, v1")
        A("v_and_b32 v5, 15, v1")
        A("v_lshlrev_b32 v5, 3, v5")
        for i in range(3):
            for c in range(2):
                o = ACC + (i*4+c)*4
                for hreg in range(2):
                    x = XR + 4*i + 2*c + hreg
                    A(f"v_lshlrev_b32 v{T}, 16, v{x}")
                    A(f"v_and_b32 v{T+1}, 0xffff0000, v{x}")
                    A(f"v_pk_add_f32 {v(o+2*hreg,2)}, {v(o+2*hreg,2)}, {v(T,2)}")
            o = ACC + i*16
            for k in range(4):
                A(f"v_cvt_pk_bf16_f32 v{HR+4*i+k}, v{o+2*k}, v{o+2*k+1}")
            A(f"buffer_store_dwordx4 {v(HR+4*i,4)}, v4, {s(SRD_B,4)}, {s(sT1)} offen sc1")
            if i < 2: A(f"s_add_u32 {s(sT1)}, {s(sT1)}, {20*1024}")
        for i in range(3):
            o = ACC + i*16
            A(f"v_pk_mul_f32 {v(T+2,2)}, {v(o,2)}, {v(o,2)}")
            A(f"v_pk_add_f32 {v(T,2)}, {v(o,2)}, {v(o+2,2)}")
            A(f"v_pk_fma_f32 {v(T+2,2)}, {v(o+2,2)}, {v(o+2,2)}, {v(T+2,2)}")
            for k in (4, 6):
                A(f"v_pk_add_f32 {v(T,2)}, {v(T,2)}, {v(o+k,2)}")
                A(f"v_pk_fma_f32 {v(T+2,2)}, {v(o+k,2)}, {v(o+k,2)}, {v(T+2,2)}")
            A(f"v_add_f32 v{T}, v{T}, v{T+1}")
            A(f"v_add_f32 v{T+1}, v{T+2}, v{T+3}")
            for sw in ('v_permlane16_swap_b32', 'v_permlane32_swap_b32'):
                A(f"v_mov_b32 v{T+2}, v{T}")
                A(f"v_mov_b32 v{T+3}, v{T+1}")
                A(f"{sw} v{T}, v{T+2}")
                A(f"{sw} v{T+1}, v{T+3}")
                A(f"v_pk_add_f32 {v(T,2)}, {v(T,2)}, {v(T+2,2)}")
            A(f"v_mov_b32 v{T+4+2*i}, v{T}")
            A(f"v_mov_b32 v{T+5+2*i}, v{T+1}")
            A("s_mov_b64 exec, 0xffff")
            A(f"buffer_store_dwordx2 {v(T+4+2*i,2)}, v5, {s(SRD_A,4)}, {s(sT2)} offen sc1")
            A("s_mov_b64 exec, -1")
            if i < 2: A(f"s_add_u32 {s(sT2)}, {s(sT2)}, {20*128}")
        for k in range(12):
            A(f"v_accvgpr_write_b32 a{AHRES+k}, v{HR+k}")
        A("s_waitcnt vmcnt(0)")
        A("s_barrier")
        A(f"s_add_u32 {s(sT0)}, {s(sR3)}, {C_H}")
        self.signal(sT0, 4)
        A.label(Lend)
        self.stamp('h_sig')

    def p4(self):
        A = self.A
        Lend = A.newlabel('p4end')
        A(f"s_cmp_eq_u32 {s(sV4)}, 0")
        A(f"s_cbranch_scc1 {Lend}")
        ACC = 16; CSR = 160; T = 208
        WF = 0; AF = 64; D = 8
        self.emit_groups(self.w4_groups(W4_E2, 20))
        self.tr_addrs(VTR4, "0")
        self.srd(SRD_A, P_WS, WS_H, WS_H_SZ)
        self.srd(SRD_B, P_WS, WS_HST, WS_HST_SZ)
        VA = T + 20
        A("v_lshlrev_b32 v4, 4, v1")
        for i in range(4): A(f"v_add_u32 v{VA+i}, {i*20*1024}, v4")
        A(f"s_lshl_b32 {s(sT0)}, {s(sR4)}, 4")
        A(f"s_lshl_b32 {s(sT1)}, {s(sW)}, 2")
        A(f"s_add_u32 {s(sTT4)}, {s(sT0)}, {s(sT1)}")
        A(f"s_mul_i32 {s(sK)}, {s(sTT4)}, {20*1024}")
        A("v_and_b32 v3, 15, v1")
        A("v_lshlrev_b32 v3, 3, v3")
        A("v_lshrrev_b32 v4, 4, v1")
        A("v_mul_u32_u24 v4, 640, v4")
        A(f"v_add_u32 v{VA+4}, v3, v4")
        def wreads(buf, m):
            return [f"ds_read_b64_tr_b16 {a(WF+buf*32+(sec*4+ct)*4+2*h,2)}, v{VTR4+ct} offset:{(m % 8)*8192 + sec*4096 + h*2048}"
                    for sec in range(2) for ct in range(4) for h in range(2)]
        for t in wreads(0, 0): A(t)
        A("WAITVM w4 lgkmcnt(0)")
        A("s_barrier")
        self.stamp('w4_landed')
        self.colsum_part(W4_E1, 20, 6, 16)
        A("v_lshrrev_b32 v2, 4, v1")
        A("v_lshlrev_b32 v2, 4, v2")
        A(f"s_lshl_b32 {s(sT0)}, {s(sW)}, 6")
        A(f"v_add_u32 v3, {s(sT0)}, v2")
        A(f"ds_write_b128 v3, {a(ACS,4)}")
        A(f"ds_write_b128 v3, {a(ACS+4,4)} offset:256")
        A("s_waitcnt lgkmcnt(0)")
        A("s_barrier")
        for k in range(8):
            A(f"ds_read_b128 {v(CSR+4*k,4)}, v2 offset:{k*64}")
        self.stamp('colsum')
        def setup():
            A(f"s_lshl_b32 {s(sT0)}, {s(sR4)}, 4")
            A(f"s_mul_i32 {s(sT1)}, {s(sT0)}, 43")
            A(f"s_lshr_b32 {s(sT1)}, {s(sT1)}, 8")
            A(f"s_add_u32 {s(sT0)}, {s(sT0)}, 15")
            A(f"s_mul_i32 {s(sT0)}, {s(sT0)}, 43")
            A(f"s_lshr_b32 {s(sT0)}, {s(sT0)}, 8")
            A(f"v_add_u32 v2, {s(sT1)}, v1")
            A(f"v_min_u32 v2, {s(sT0)}, v2")
            A(f"v_add_u32 v2, {C_H}, v2")
            A("v_lshlrev_b32 v2, 7, v2")
        self.poll(SRD_CNT, setup, 4, 10, 2)
        self.stamp('cH')
        def aload_groups(m):
            gs = [[f"buffer_load_dwordx4 {a(AF+(m % D)*16+4*i,4)}, v{VA+i}, {s(SRD_A,4)}, {s(sK)} offen sc1 ; @a{m}"] for i in range(4)]
            gs[-1].append(f"s_add_u32 {s(sK)}, {s(sK)}, 1024")
            return gs
        NPRE = 3
        for m in range(NPRE): self.emit_groups(aload_groups(m))
        MEAN, RS2 = 192, 200
        stat_loads = []
        for i in range(4):
            for k in range(5):
                g = [f"buffer_load_dwordx2 {a(192+(i*5+k)*2,2)}, v{VA+4}, {s(SRD_B,4)}, {s(sWB)} offen offset:{k*128} sc1 ; @stat{i}"]
                if i == 0 and k == 0: g = [f"s_mul_i32 {s(sWB)}, {s(sTT4)}, 2560"] + g
                if k == 4 and i < 3: g.append(f"s_add_u32 {s(sWB)}, {s(sWB)}, 2560")
                stat_loads.append(g)
        def stat_math(i):
            U = T
            o = [f"v_accvgpr_read_b32 v{U+k}, a{192+i*10+k}" for k in range(10)]
            o += [f"v_pk_add_f32 {v(U,2)}, {v(U,2)}, {v(U+2,2)}", f"v_pk_add_f32 {v(U+4,2)}, {v(U+4,2)}, {v(U+6,2)}",
                  f"v_pk_add_f32 {v(U,2)}, {v(U,2)}, {v(U+8,2)}", f"v_pk_add_f32 {v(U,2)}, {v(U,2)}, {v(U+4,2)}"]
            for sw in ('v_permlane16_swap_b32', 'v_permlane32_swap_b32'):
                o += [f"v_mov_b32 v{U+2}, v{U}", f"v_mov_b32 v{U+3}, v{U+1}", "s_nop 1", f"{sw} v{U}, v{U+2}", f"{sw} v{U+1}, v{U+3}",
                      f"v_pk_add_f32 {v(U,2)}, {v(U,2)}, {v(U+2,2)}"]
            o += [f"v_mul_f32 v{MEAN+2*i}, {1.0/640!r}, v{U}", f"v_mul_f32 v{U+1}, {1.0/640!r}, v{U+1}",
                  f"v_fma_f32 v{U+1}, -v{MEAN+2*i}, v{MEAN+2*i}, v{U+1}", f"v_max_f32 v{U+1}, 0, v{U+1}",
                  f"v_add_f32 v{U+1}, 0x3727c5ac, v{U+1}", f"v_rcp_f32 v{RS2+2*i}, v{U+1}"]
            return o
        nxt = NPRE
        w5a = self.w5_groups(0, 5, 'w5a')
        for m in range(20):
            buf = m & 1
            self.lstamp_pre(f'p4k{m}')
            A(f"WAITVM a{m} lgkmcnt(0)")
            self.lstamp_post()
            if m == 10: A("s_barrier")
            if 12 <= m < 16: A(f"WAITVM stat{m-12}")
            mf = []
            for i in range(4):
                for sec in range(2):
                    for ct in range(4):
                        d = ACC + (i*8 + sec*4 + ct)*4
                        mf.append(f"{MF} {v(d,4)}, {a(WF+buf*32+(sec*4+ct)*4,4)}, {a(AF+(m % D)*16+4*i,4)}, {'0' if m == 0 else v(d,4)}")
            fill = []
            if m + 1 < 20:
                if (m + 1) in (8, 16):
                    fill.append([f"v_add_u32 v{VTR4+ct}, 65536, v{VTR4+ct}" for ct in range(4)])
                fill += [[x] for x in wreads(buf ^ 1, m + 1)]
            loads = []
            nsteps = 0
            while nxt < 20 and nxt - m < D and nsteps < (2 if nxt - m < D - 1 else 1):
                loads += aload_groups(nxt); nxt += 1; nsteps += 1
            if 5 <= m < 9: loads += stat_loads[(m-5)*5:(m-4)*5]
            if m >= 10: loads += w5a[(m-10)*2:(m-9)*2]
            streams = [(fill, 0, 20), (loads, 1, 32)]
            if 12 <= m < 16: streams.append(([[x] for x in stat_math(m-12)], 0, 32))
            for t in weave(mf, streams): A(t)
        self.stamp('p4_loop')
        self.srd(SRD_B, P_WS, WS_HH, WS_HH_SZ)
        A(f"s_mul_i32 {s(sT0)}, {s(sTT4)}, 54")
        A(f"s_lshl_b32 {s(sT1)}, {s(sS4)}, 1")
        A(f"s_add_u32 {s(sT0)}, {s(sT0)}, {s(sT1)}")
        A(f"s_lshl_b32 {s(sK)}, {s(sT0)}, 10")
        A("v_lshlrev_b32 v6, 4, v1")
        A("s_barrier")
        body = []
        for i in range(4):
            for pair in range(2):
                P = T + 8 + ((i*2+pair) & 1) * 4
                for c in range(2):
                    ct = 2*pair + c
                    g = ACC + (i*8 + ct)*4; u = ACC + (i*8 + 4 + ct)*4
                    for p in range(2):
                        body.append(f"v_pk_fma_f32 {v(g+2*p,2)}, {v(CSR+4*ct+2*p,2)}, {v(MEAN+2*i,2)}, {v(g+2*p,2)} op_sel_hi:[1,0,1] neg_lo:[1,0,0] neg_hi:[1,0,0]")
                        body.append(f"v_pk_fma_f32 {v(u+2*p,2)}, {v(CSR+16+4*ct+2*p,2)}, {v(MEAN+2*i,2)}, {v(u+2*p,2)} op_sel_hi:[1,0,1] neg_lo:[1,0,0] neg_hi:[1,0,0]")
                    for r in range(4):
                        body.append(f"v_max_f32 v{g+r}, 0, v{g+r}")
                    for p in range(2):
                        body.append(f"v_pk_mul_f32 {v(u+2*p,2)}, {v(u+2*p,2)}, {v(RS2+2*i,2)} op_sel_hi:[1,0]")
                    for p in range(2):
                        body.append(f"v_pk_mul_f32 {v(g+2*p,2)}, {v(g+2*p,2)}, {v(u+2*p,2)}")
                    body.append(f"v_cvt_pk_bf16_f32 v{P+2*c}, v{g}, v{g+1}")
                    body.append(f"v_cvt_pk_bf16_f32 v{P+2*c+1}, v{g+2}, v{g+3}")
                body.append(f"buffer_store_dwordx4 {v(P,4)}, v6, {s(SRD_B,4)}, {s(sK)} offen offset:{pair*1024} sc1 ; @hh")
            if i < 3: body.append(f"s_add_u32 {s(sK)}, {s(sK)}, {54*1024}")
        w5b = self.w5_groups(5, 10, 'w5b')
        for t in weave(body, [(w5b, 0, 130)]): A(t)
        A("s_waitcnt vmcnt(0)")
        A("s_barrier")
        A(f"s_add_u32 {s(sT0)}, {s(sR4)}, {C_HH}")
        self.signal(sT0, 4)
        self.stamp('hh_sig')
        Lj = A.newlabel('p4join')
        A(f"s_branch {Lj}")
        A.label(Lend)
        A("s_waitcnt vmcnt(0)")
        A("s_barrier")
        self.emit_groups(self.w5_groups(0, 5, 'w5a'))
        self.emit_groups(self.w5_groups(5, 10, 'w5b'))
        A("s_waitcnt vmcnt(0)")
        A.label(Lj)

    def p5(self):
        A = self.A
        Lend = A.newlabel('p5end')
        A(f"s_cmp_eq_u32 {s(sV3)}, 0")
        A(f"s_cbranch_scc1 {Lend}")
        ACC = 16
        AF = 112; D = 8
        A(f"s_mul_i32 {s(sT0)}, {s(sW)}, 20480")
        A(f"s_and_b32 {s(sT1)}, {s(sW)}, 1")
        A(f"s_lshl_b32 {s(sT1)}, {s(sT1)}, 1")
        self.tr_addrs(VTR3, s(sT0), perm_sgpr=sT1)
        for ct in range(4): A(f"v_add_u32 v{VTR4+ct}, 81920, v{VTR3+ct}")
        def w5reads(m0, m1):
            base = VTR4 if 5 <= m0 < 10 else VTR3
            for mm in range(m0, m1):
                for ct in range(4):
                    for h in range(2):
                        A(f"ds_read_b64_tr_b16 {a(mm*16+ct*4+2*h,2)}, v{base+ct} offset:{(mm-m0)*4096 + h*2048}")
        w5reads(0, 5)
        A("s_waitcnt lgkmcnt(0)")
        self.emit_groups(self.w5_groups(10, 14, 'w5c'))
        self.reduce_setup(232, 235)
        self.srd(SRD_A, P_WS, WS_HH, WS_HH_SZ)
        VA = 236
        A("v_lshlrev_b32 v2, 4, v1")
        A(f"s_lshr_b32 {s(sT0)}, {s(sW)}, 1")
        A(f"s_mul_i32 {s(sT0)}, {s(sT0)}, {3*54*1024}")
        for a_ in range(6):
            if a_ < 3: A(f"s_add_u32 {s(sT1)}, {s(sT0)}, {a_*54*1024}")
            else: A(f"s_sub_u32 {s(sT1)}, {a_*54*1024}, {s(sT0)}")
            A(f"v_add_u32 v{VA+a_}, {s(sT1)}, v2")
        A(f"s_mul_i32 {s(sT0)}, {s(sR3)}, {6*54}")
        A(f"s_mul_i32 {s(sT2)}, {s(sW)}, 14")
        A(f"s_add_u32 {s(sT0)}, {s(sT0)}, {s(sT2)}")
        A(f"s_lshl_b32 {s(sWA)}, {s(sT0)}, 10")
        w5reads(5, 10)
        A("WAITVM w5c")
        w5reads(10, 14)
        A("s_waitcnt lgkmcnt(0)")
        def setup():
            A(f"s_mul_i32 {s(sT0)}, {s(sR3)}, 6")
            A(f"s_lshr_b32 {s(sT1)}, {s(sT0)}, 4")
            A(f"s_add_u32 {s(sT0)}, {s(sT0)}, 5")
            A(f"s_min_u32 {s(sT0)}, {s(sT0)}, 127")
            A(f"s_lshr_b32 {s(sT0)}, {s(sT0)}, 4")
            A(f"v_add_u32 v2, {s(sT1)}, v1")
            A(f"v_min_u32 v2, {s(sT0)}, v2")
            A(f"v_add_u32 v2, {C_HH}, v2")
            A("v_lshlrev_b32 v2, 7, v2")
        self.stamp('w5_regs')
        self.poll(SRD_CNT, setup, 2, 27, 2)
        self.stamp('cHH')
        A(f"s_mul_i32 {s(sWB)}, {s(sW)}, 14")
        def aload_groups(n):
            ps, mm = divmod(n, 14)
            a0 = 3 if ps == 0 else 0
            pre = []
            if mm == 0: pre.append(f"s_mov_b32 {s(sK)}, {s(sWA)}")
            so = sK
            if mm >= 12:
                pre += [f"s_add_u32 {s(sK2)}, {s(sWB)}, {mm}", f"s_cmp_lt_u32 {s(sK2)}, 54",
                        f"s_cselect_b32 {s(sK2)}, {s(sK)}, {OOB}"]
                so = sK2
            gs = [[f"buffer_load_dwordx4 {v(AF+(n % D)*12+4*i,4)}, v{VA+a0+i}, {s(SRD_A,4)}, {s(so)} offen sc1"] for i in range(3)]
            gs[0] = pre + gs[0]
            gs[-1].append(f"s_add_u32 {s(sK)}, {s(sK)}, 1024")
            return gs
        NPRE = 6
        for n in range(NPRE): self.emit_groups(aload_groups(n))
        nxt = NPRE
        wr1 = self.reduce_writes(ACC, (2, 3))
        for n in range(28):
            ps, mm = divmod(n, 14)
            a0 = 3 if ps == 0 else 0
            if n % 2 == 0: self.lstamp_pre(f'p5k{n}')
            A(f"s_waitcnt vmcnt({3*(nxt - n - 1)})" + (" lgkmcnt(0)" if (self.prof and 'fine' in self.exp and n % 2 == 0) else ""))
            if n % 2 == 0: self.lstamp_post()
            mf = []
            bs = (2, 3, 0, 1)
            for i in range(3):
                for b_ in bs:
                    d = ACC + ((a0+i)*4+b_)*4
                    mf.append(f"{MF} {v(d,4)}, {a(mm*16+b_*4,4)}, {v(AF+(n % D)*12+4*i,4)}, {'0' if mm == 0 else v(d,4)}")
            loads = []
            nsteps = 0
            while nxt < 28 and nxt - n < D and nsteps < (2 if nxt - n < D - 1 else 1):
                loads += aload_groups(nxt); nxt += 1; nsteps += 1
            streams = [(loads, 0, 12)]
            if ps == 1 and 1 <= mm <= 12:
                streams.append(([[x] for x in wr1[mm-1:mm]], 4, 8))
            for t in weave(mf, streams): A(t)
        self.stamp('p5_mfma')
        for t in self.reduce_writes(ACC, (1,)): A(t)
        self.srd(SRD_B, P_OUT, 0, 2048 * 1280)
        A("s_waitcnt lgkmcnt(0)")
        A("s_barrier")
        self.reduce_finish(ACC, 112)
        self.stamp('p5_red')
        T = 200
        A(f"s_mov_b32 {s(sT0)}, {s(sXO)}")
        for i in range(3):
            for c in range(2):
                o = ACC + (i*4+c)*4
                for hreg in range(2):
                    A(f"v_accvgpr_read_b32 v{T+2}, a{AHRES + 4*i + 2*c + hreg}")
                    A(f"v_lshlrev_b32 v{T}, 16, v{T+2}")
                    A(f"v_and_b32 v{T+1}, 0xffff0000, v{T+2}")
                    A(f"v_pk_add_f32 {v(o+2*hreg,2)}, {v(o+2*hreg,2)}, {v(T,2)}")
                A(f"v_cvt_pk_bf16_f32 v{o}, v{o}, v{o+1}")
                A(f"v_cvt_pk_bf16_f32 v{o+1}, v{o+2}, v{o+3}")
                A(f"buffer_store_dwordx2 {v(o,2)}, v{VXR}, {s(SRD_B,4)}, {s(sT0)} offen offset:{32*c}")
            if i < 2: A(f"s_add_u32 {s(sT0)}, {s(sT0)}, {16*1280}")
        A.label(Lend)

    def finish(self):
        A = self.A
        if self.prof:
            A("s_waitcnt vmcnt(0)")
            self.stamp('end')
            self.dump_stamps()
        A.label("L_end")
        A("s_endpgm")

    def build(self):
        self.prologue()
        self.p1()
        self.p2()
        self.p3()
        self.p4()
        self.p5()
        self.finish()
        n = self.A.fix_hazards()
        hdr = open('cdna_kernels/' + NAME + '.s.ref').read().split('; Override launch')[0]
        out = hdr
        out += "; Override launch geometry by editing the next line.\n"
        out += f"; @launch grid=(256,1,1) block=(256,1,1) lds={LDS_BYTES}\n"
        out += '.amdgcn_target "amdgcn-amd-amdhsa--gfx950"\n.text\n'
        out += f".globl {KNAME}\n.p2align 8\n.type {KNAME},@function\n{KNAME}:\n"
        out += self.A.text()
        out += f""".section .rodata,"a"
.p2align 6
.amdhsa_kernel {KNAME}
  .amdhsa_next_free_vgpr 512
  .amdhsa_next_free_sgpr 102
  .amdhsa_accum_offset 256
  .amdhsa_group_segment_fixed_size 0
  .amdhsa_kernarg_size 80
  .amdhsa_user_sgpr_count 2
  .amdhsa_user_sgpr_kernarg_segment_ptr 1
  .amdhsa_system_sgpr_workgroup_id_x 1
.end_amdhsa_kernel
"""
        return out, n

sTT4 = 81

def issued_at_zero(sig):
    return 99

if __name__ == '__main__':
    dbg = '--dbg' in sys.argv
    out = [a for a in sys.argv[1:] if not a.startswith('--')]
    g = G(dbg=dbg, prof='--prof' in sys.argv, exp=next((a.split('=')[1] for a in sys.argv if a.startswith('--exp=')), ''))
    txt, n = g.build()
    path = out[0] if out else 'k.s'
    open(path, 'w').write(txt)
    if g.prof: json.dump(g.stamps, open(path + '.stamps', 'w'))
    print('wrote', path, 'nops inserted', n, 'lines', txt.count('\n'))
```

```python
import re

def v(i, n=1):
    return f"v{i}" if n == 1 else f"v[{i}:{i+n-1}]"
def a(i, n=1):
    return f"a{i}" if n == 1 else f"a[{i}:{i+n-1}]"
def s(i, n=1):
    return f"s{i}" if n == 1 else f"s[{i}:{i+n-1}]"

_REG = re.compile(r'^(-|abs\()?([vas])(\d+|\[(\d+):(\d+)\])\)?$')

def regs_of(op):
    op = op.strip()
    if op in ('vcc', 'vcc_lo', 'vcc_hi'):
        return {('s', 'vcc')}
    if op == 'exec':
        return {('s', 'exec')}
    if op == 'm0':
        return {('s', 'm0')}
    m = _REG.match(op)
    if not m:
        return set()
    kind = m.group(2)
    if m.group(4) is not None:
        return {(kind, i) for i in range(int(m.group(4)), int(m.group(5)) + 1)}
    return {(kind, int(m.group(3)))}

TRANS = ('v_exp_f32', 'v_log_f32', 'v_rcp_f32', 'v_rsq_f32', 'v_sqrt_f32', 'v_sin_f32', 'v_cos_f32', 'v_rcp_iflag_f32')

class Ins:
    __slots__ = ('text', 'mn', 'ops', 'reads', 'writes', 'kind', 'passes', 'states', 'mods', 'srcC', 'srcAB')
    def __init__(self, text):
        self.text = text
        t = text.split(';')[0].strip()
        self.kind = 'other'
        self.reads = set(); self.writes = set(); self.passes = 0; self.states = 1
        self.srcC = set(); self.srcAB = set()
        if not t or t.endswith(':') or t.startswith('.'):
            self.kind = 'label' if t.endswith(':') else 'meta'
            self.mn = t; self.ops = []; self.states = 0; self.mods = ''
            return
        parts = t.split(None, 1)
        self.mn = mn = parts[0]
        rest = parts[1] if len(parts) > 1 else ''
        toks = []; depth = 0; cur = ''
        for ch in rest:
            if ch in '[(': depth += 1
            if ch in '])': depth -= 1
            if ch == ',' and depth == 0:
                toks.append(cur.strip()); cur = ''
            else:
                cur += ch
        if cur.strip(): toks.append(cur.strip())
        mods = ''
        if toks:
            last = toks[-1].split()
            toks[-1] = last[0]
            mods = ' '.join(last[1:])
        self.ops = toks; self.mods = mods
        R = lambda ops: set().union(*[regs_of(o) for o in ops]) if ops else set()
        if mn.startswith('v_mfma'):
            self.kind = 'mfma'
            self.passes = 8 if '32x32' in mn else 4
            self.writes = regs_of(toks[0]); self.srcAB = R(toks[1:3]); self.srcC = regs_of(toks[3])
            self.reads = self.srcAB | self.srcC
        elif mn.startswith('v_'):
            self.kind = 'valu'
            base = mn.replace('_e32', '').replace('_e64', '').replace('_dpp', '').replace('_sdwa', '')
            if base.startswith('v_cmp'):
                self.writes = regs_of(toks[0]); self.reads = R(toks[1:])
                if base.startswith('v_cmpx'): self.writes |= {('s', 'exec')}
            elif base.startswith('v_permlane') and 'swap' in base:
                self.writes = R(toks[:2]); self.reads = R(toks[:2]); self.kind = 'permlane'
            elif base in ('v_add_co_u32', 'v_sub_co_u32', 'v_addc_co_u32', 'v_subb_co_u32', 'v_div_scale_f32', 'v_mad_u64_u32'):
                self.writes = R(toks[:2]); self.reads = R(toks[2:])
            else:
                self.writes = regs_of(toks[0]); self.reads = R(toks[1:])
                if base in ('v_fmac_f32', 'v_dot2c_f32_bf16', 'v_pk_fmac_f16', 'v_writelane_b32'):
                    self.reads |= regs_of(toks[0])
                if base == 'v_cndmask_b32' and len(toks) == 3:
                    self.reads |= {('s', 'vcc')}
                if base in TRANS: self.kind = 'trans'
                if base in ('v_readfirstlane_b32', 'v_readlane_b32'): self.kind = 'readlane'
                if 'row_' in mods or 'quad_perm' in mods or 'wave_' in mods or mn.endswith('_dpp'):
                    self.kind = 'dpp'
        elif mn.startswith('ds_'):
            self.kind = 'ds'
            if mn.startswith('ds_read') or mn.startswith('ds_bpermute') or mn.startswith('ds_swizzle') or mn.startswith('ds_permute'):
                self.writes = regs_of(toks[0]); self.reads = R(toks[1:])
            else:
                self.reads = R(toks)
        elif mn.startswith('buffer_') or mn.startswith('global_'):
            self.kind = 'vmem'
            if mn in ('buffer_wbl2', 'buffer_inv'):
                pass
            elif 'lds' in mods.split() or 'load_lds' in mn:
                self.reads = R(toks) | {('s', 'm0')}; self.kind = 'ldsdma'
            elif '_load' in mn:
                self.writes = regs_of(toks[0]); self.reads = R(toks[1:])
            elif 'atomic' in mn:
                self.reads = R(toks)
                if 'sc0' in mods.split(): self.writes = regs_of(toks[0]) if mn.startswith('buffer') else regs_of(toks[0])
            else:
                self.reads = R(toks); self.kind = 'vstore'
                if mn.startswith('global_'):
                    self.srcC = regs_of(toks[1])
                else:
                    self.srcC = regs_of(toks[0])
                if not (mn.endswith('x4') or mn.endswith('x3')): self.srcC = set()
        elif mn == 's_nop':
            self.kind = 'nop'; self.states = int(toks[0], 0) + 1
        elif mn.startswith('s_'):
            self.kind = 'salu'
            if mn.startswith('s_cbranch') or mn == 's_branch':
                self.kind = 'branch'
            elif mn in ('s_waitcnt', 's_barrier', 's_endpgm', 's_sleep', 's_setprio'):
                pass
            elif mn.startswith('s_cmp') or mn.startswith('s_bitcmp'):
                self.reads = R(toks)
            elif mn.startswith('s_load') or mn in ('s_memtime', 's_memrealtime'):
                self.writes = regs_of(toks[0]); self.reads = R(toks[1:]); self.kind = 'smem'
            else:
                self.writes = regs_of(toks[0]); self.reads = R(toks[1:])
                if 'saveexec' in mn: self.writes |= {('s', 'exec')}

WINDOW = 24

def need(prod, cons):
    n = 0
    pw = prod.writes
    valu_like = ('valu', 'trans', 'readlane', 'dpp', 'permlane')
    if prod.kind in valu_like:
        vw = {r for r in pw if r[0] in 'va'}
        sw = {r for r in pw if r[0] == 's'}
        if cons.kind == 'mfma' and vw & cons.reads: n = max(n, 2)
        if cons.kind == 'mfma' and ('s', 'exec') in sw: n = max(n, 4)
        if cons.kind == 'readlane' and vw & cons.reads: n = max(n, 1)
        if cons.kind == 'dpp' and vw & cons.reads: n = max(n, 2)
        if cons.kind == 'dpp' and ('s', 'exec') in sw: n = max(n, 5)
        if cons.kind == 'permlane' and vw & cons.reads: n = max(n, 2)
        if cons.kind in ('vmem', 'vstore', 'ldsdma') and sw & cons.reads: n = max(n, 5)
        if cons.kind in valu_like and sw & cons.reads:
            n = max(n, 4 if cons.kind == 'readlane' and len(cons.ops) > 2 and regs_of(cons.ops[2]) & sw else 2)
        if cons.kind in ('salu', 'branch') and (sw & cons.reads or (('s', 'vcc') in sw and 'vcc' in cons.mn)
                                                 or (('s', 'exec') in sw and 'exec' in cons.mn)): n = max(n, 5)
        if prod.kind == 'trans' and cons.kind in valu_like + ('mfma', 'ds', 'vmem', 'vstore') and vw & cons.reads: n = max(n, 1)
    if prod.kind == 'mfma':
        big = {4: 8, 8: 12}[prod.passes]
        if cons.kind == 'mfma':
            if pw & cons.srcAB: n = max(n, big)
            if pw & cons.srcC and not (pw == cons.srcC and prod.passes == cons.passes):
                n = max(n, {4: 6, 8: 10}[prod.passes])
            if pw & cons.writes and not (pw == cons.writes): n = max(n, big)
        else:
            if pw & (cons.reads | cons.writes): n = max(n, big)
        if cons.kind in valu_like and prod.srcC & cons.writes: n = max(n, {4: 3, 8: 7}[prod.passes])
    if prod.kind == 'vstore' and prod.srcC:
        if prod.srcC & cons.writes: n = max(n, 2)
    if prod.kind == 'salu' and ('s', 'm0') in pw and cons.kind == 'ldsdma': n = max(n, 1)
    return n

VMEM_PREFIX = ('buffer_load', 'buffer_store', 'buffer_atomic', 'global_load', 'global_store', 'global_atomic')

class Asm:
    def __init__(self):
        self.L = []
        self.uid = 0
        self.vmseq = []
        self.dsseq = []
    def __call__(self, text):
        for line in text.split('\n'):
            line = line.strip()
            if not line: continue
            if line.startswith('WAITVM'):
                parts = line.split()
                tags = parts[1].split(',')
                last = max(k for k, t in enumerate(self.vmseq) if t in tags)
                n = min(63, len(self.vmseq) - 1 - last)
                self.L.append(f"s_waitcnt vmcnt({n})" + (" " + " ".join(parts[2:]) if len(parts) > 2 else ""))
                continue
            if line.startswith('WAITLG'):
                tags = line.split()[1].split(',')
                last = max(k for k, t in enumerate(self.dsseq) if t in tags)
                self.L.append(f"s_waitcnt lgkmcnt({min(15, len(self.dsseq) - 1 - last)})")
                continue
            if line.startswith('ds_'):
                m = re.search(r';\s*@(\S+)', line)
                self.dsseq.append(m.group(1) if m else 'anon')
                line = line.split(';')[0].rstrip()
            if line.startswith(VMEM_PREFIX):
                m = re.search(r';\s*@(\S+)', line)
                tag = m.group(1) if m else 'anon'
                if tag != 'nocount': self.vmseq.append(tag)
                line = line.split(';')[0].rstrip()
            self.L.append(line)
    def label(self, name): self.L.append(name + ':')
    def newlabel(self, stem):
        self.uid += 1
        return f"L_{stem}_{self.uid}"
    def comment(self, t): self.L.append('; ' + t)

    def fix_hazards(self):
        items = [(t, Ins(t) if not t.startswith(';') else None) for t in self.L]
        inserted = 0
        def mklabels():
            return {i.mn[:-1]: k for k, (t, i) in enumerate(items) if i is not None and i.kind == 'label'}
        labels = mklabels()
        def succ_path(start):
            out = []; k = start; tot = 0
            while k < len(items) and tot < WINDOW:
                i = items[k][1]
                if i is not None and i.kind not in ('label', 'meta'):
                    out.append(k); tot += i.states
                    if i.mn in ('s_branch', 's_endpgm', 's_setpc_b64'): break
                k += 1
            return out
        def check(p, path):
            dist = 0
            for ck in path:
                c = items[ck][1]
                n = need(p, c)
                if n > dist:
                    return ck, n - dist
                dist += c.states
                if dist >= WINDOW: break
            return None
        k = 0
        while k < len(items):
            p = items[k][1]
            if p is None or p.kind in ('label', 'meta', 'nop', 'branch') or not (p.writes or p.srcC):
                k += 1; continue
            base = succ_path(k + 1)
            paths = [base]
            for idx, bk in enumerate(base):
                b = items[bk][1]
                if b.kind == 'branch' and b.ops[0] in labels:
                    paths.append(base[:idx + 1] + succ_path(labels[b.ops[0]]))
            hit = None
            for path in paths:
                hit = check(p, path)
                if hit: break
            if hit:
                ck, cnt = hit
                while cnt > 0:
                    c = min(cnt, 16)
                    t = f"s_nop {c-1}"
                    items.insert(ck, (t, Ins(t))); inserted += 1; cnt -= c
                    if ck <= k: k += 1
                labels = mklabels()
                continue
            k += 1
        self.L = [t for t, _ in items]
        return inserted

    def text(self):
        out = []
        for t in self.L:
            out.append(t if (t.endswith(':') or t.startswith('.') or t.startswith(';')) else '    ' + t)
        return '\n'.join(out) + '\n'

def interleave(main, fill, per=None, start=0):
    out = []; n = len(main); f = list(fill); k = 0
    for i, m in enumerate(main):
        out.append(m)
        if i < start: continue
        if per is None:
            want = ((i - start + 1) * len(f) + (n - start) - 1) // (n - start)
        else:
            want = min(len(f), (i - start + 1) * per)
        while k < want:
            out.append(f[k]); k += 1
    out.extend(f[k:])
    return out

def weave(main, streams):
    slots = [[] for _ in range(len(main) + 1)]
    for groups, lo, hi in streams:
        n = len(groups)
        hi = min(hi, len(main)); lo = max(lo, 0)
        for k, g in enumerate(groups):
            pos = lo + int((k + 0.5) * (hi - lo) / n) if n else lo
            pos = min(max(pos, 0), len(main) - 1)
            slots[pos].extend(g if isinstance(g, (list, tuple)) else [g])
    out = []
    for i, m in enumerate(main):
        out.append(m)
        out.extend(slots[i])
    return out

class Pacer:
    def __init__(self, A):
        self.A = A; self.q = []; self.t = 0.0; self.pipe = 0.0; self.ta = 0.0; self.events = set()
        self.slack = 1.0
    def push(self, groups, cost, need=None, tag=None):
        for g in groups: self.q.append((g, cost, need, tag))
    def _cost(self, ins):
        mn = ins.split()[0]
        if mn.startswith('v_exp') or mn.startswith('v_rcp') or mn.startswith('v_rsq'): return 8.2
        if mn.startswith('WAIT') or mn in ('s_waitcnt', 's_barrier', 's_nop'): return 4.2
        if mn.startswith('s_'): return 4.2
        return 5.0
    def _raw(self, ins):
        if ins.startswith('v_mfma'):
            self.t = max(self.t, self.pipe); self.pipe = self.t + 16; self.t += 5
        else:
            self.t += self._cost(ins)
        self.A(ins)
    def _pop(self):
        g, cost, need, tag = self.q.pop(0)
        for ins in g: self._raw(ins)
        self.ta = max(self.ta, self.t) + 4 * cost * self.slack
    def ready(self):
        return self.q and (self.q[0][2] is None or self.q[0][2] in self.events)
    def emit(self, ins, feed=True):
        self._raw(ins)
        if feed and self.ready() and self.ta <= self.t + 8: self._pop()
    def emit_all(self, L, feed=True):
        for ins in L: self.emit(ins, feed)
    def event(self, name): self.events.add(name)
    def flush(self, tag):
        idx = [k for k, e in enumerate(self.q) if e[3] == tag]
        if not idx: return
        for _ in range(idx[-1] + 1):
            assert self.ready(), (tag, self.q[0])
            self._pop()
    def idle(self, cycles):
        self.t += cycles
```

```python
import sys, json
from asmlib import *

NAME = 'sequential_preLN__linear_attn_block__glu_gated_reglu__prompt'
KNAME = NAME + '_kernel'

WS_CNT, WS_CNT_SZ = 0x0, 0x8000
WS_ST2 = 0x4000
WS_KVF, WS_KVF_SZ = 0x10000, 8 * 16384
WS_HST, WS_HST_SZ = 0x40000, 128 * 20 * 128
WS_PART, WS_PART_SZ = 0x100000, 8 * 32 * 18 * 1024
WS_O, WS_O_SZ = 0x600000, 128 * 20 * 1024
WS_H, WS_H_SZ = 0x900000, 128 * 20 * 1024
WS_HH, WS_HH_SZ = 0xC00000, 128 * 54 * 1024
WS_DBG, WS_DBG_SZ = 0x1400000, 0x1000000
C_A, C_B, C_O, C_H, C_HH = 0, 8, 16, 48, 72
NZERO = 32
OOB = 0x7ff00000

JOBS = [(0,0),(0,1),(1,0),(1,1),(1,2),(2,1),(2,2),(2,3),(3,2),(3,3),(3,4),(4,3),(4,4)] + [(i,5) for i in range(5)]

SRD_X, SRD_W, SRD_W2, SRD_A, SRD_B, SRD_CNT, SRD_T, SRD_DBG = 4, 8, 12, 16, 20, 24, 28, 32
P_X, P_WQKV, P_WO, P_WG, P_WU, P_WD, P_OUT, P_DBG, P_WS = 40, 42, 44, 48, 50, 52, 54, 56, 58
sK2, sK3 = 46, 47
sW, sR, sG, sRHO, sXCD, sJ = 60, 61, 62, 63, 64, 65
sT0, sT1, sT2, sT3, sT4, sT5 = 66, 67, 68, 69, 70, 71
sWA, sWB, sK, sLD = 72, 73, 74, 75
sROT = 76
sMASK = 82
sC = 92
sC2 = 90
sC3, sR3, sV3, sR4, sS4, sV4, sTT, sXO = 94, 95, 96, 97, 98, 99, 100, 101
VSLAB, VSLAB4, VXR = 8, 9, 15
VTR3, VTR4 = 244, 248
AHRES = 240
AZERO = 253

LDS_BYTES = 163840
STAGE = 20480
def slot_of(sig): return (sig + 4) % 8
FR = 3 * STAGE
CS = FR + 22528
ST = CS + 1024
RED2 = 73728
RED3 = 90112
W4_E1, W4_E2 = 9, 11
W5A = 144
ACS = 232
MF = "v_mfma_f32_16x16x32_bf16"
LOG2E = 1.4426950408889634

def f32bits(x):
    import struct
    return struct.unpack('<I', struct.pack('<f', x))[0]

class G:
    def __init__(self, stop=None, dbg=False, prof=False, exp=''):
        self.exp = exp
        self.A = Asm(); self.stop = stop; self.dbg = dbg; self.prof = prof
        self.stamps = []

    def stamp(self, name):
        if 'hdbg' in self.exp:
            self.hstamp(name); return
        if not self.prof: return
        A = self.A
        i = len(self.stamps); self.stamps.append(name)
        A("s_memrealtime s[36:37]")
        A("s_memtime s[38:39]")
        A("v_accvgpr_read_b32 v7, a252" if i else "v_mov_b32 v7, 0")
        A("s_waitcnt lgkmcnt(0)")
        A(f"v_writelane_b32 v7, s36, {i}")
        A("v_accvgpr_write_b32 a252, v7")
        A("v_accvgpr_read_b32 v7, a254" if i else "v_mov_b32 v7, 0")
        A(f"v_writelane_b32 v7, s38, {i}")
        A("v_accvgpr_write_b32 a254, v7")

    HSTAMPS = ['start', 'x_landed', 'normed', 'p1a_loop', 'p1b_loop', 'cA', 'cB', 'o_sig', 'cO', 'h_sig', 'cH', 'p4_loop', 'cHH', 'p5_mfma', 'end']
    def hstamp(self, name):
        if name not in self.HSTAMPS: return
        A = self.A
        i = self.HSTAMPS.index(name)
        A("s_memrealtime s[36:37]")
        A("v_accvgpr_read_b32 v7, a252" if i else "v_mov_b32 v7, 0")
        A("s_waitcnt lgkmcnt(0)")
        A(f"v_writelane_b32 v7, s36, {i}")
        A("v_accvgpr_write_b32 a252, v7")
    def hreport(self):
        A = self.A
        L = A.newlabel('noh')
        A(f"s_cmp_lg_u32 {s(sW)}, 0")
        A(f"s_cbranch_scc1 {L}")
        A("v_accvgpr_read_b32 v7, a252")
        A("v_not_b32 v6, v7")
        A("v_cmp_eq_u32 vcc, 0, v1")
        A("v_cndmask_b32 v7, v7, v6, vcc")
        A("v_lshlrev_b32 v2, 2, v1")
        A("v_add_u32 v2, 4, v2")
        A("s_mov_b64 exec, 0x7fff")
        A(f"buffer_atomic_umax v7, v2, {s(SRD_DBG,4)}, 0 offen sc1")
        A("s_mov_b64 exec, -1")
        A.label(L)

    def lstamp_pre(self, name):
        if not (self.prof and 'fine' in self.exp): return
        self.A("s_memrealtime s[36:37]")
        self._ls = name
    def lstamp_post(self):
        if not (self.prof and 'fine' in self.exp): return
        i = len(self.stamps); self.stamps.append(self._ls)
        self.A("v_accvgpr_read_b32 v7, a252")
        self.A(f"v_writelane_b32 v7, s36, {i}")
        self.A("v_accvgpr_write_b32 a252, v7")

    def dump_stamps(self):
        A = self.A
        L = A.newlabel('nost')
        A(f"s_cmp_lg_u32 {s(sW)}, 0")
        A(f"s_cbranch_scc1 {L}")
        self.srd(SRD_T, P_WS, WS_DBG + 0x800000, 0x20000)
        A("v_accvgpr_read_b32 v7, a252")
        A("v_lshlrev_b32 v2, 2, v1")
        A(f"s_lshl_b32 {s(sT0)}, s2, 8")
        A(f"buffer_store_dword v7, v2, {s(SRD_T,4)}, {s(sT0)} offen")
        A("v_accvgpr_read_b32 v6, a254")
        A(f"s_add_u32 {s(sT0)}, {s(sT0)}, 0x10000")
        A(f"buffer_store_dword v6, v2, {s(SRD_T,4)}, {s(sT0)} offen")
        A.label(L)

    def srd_l(self, dst, ptr, off, size):
        out = []
        if off:
            out += [f"s_add_u32 {s(dst)}, {s(ptr)}, {off}", f"s_addc_u32 {s(dst+1)}, {s(ptr+1)}, 0"]
        else:
            out += [f"s_mov_b32 {s(dst)}, {s(ptr)}", f"s_mov_b32 {s(dst+1)}, {s(ptr+1)}"]
        out += [f"s_mov_b32 {s(dst+2)}, {size}", f"s_mov_b32 {s(dst+3)}, 0x20000"]
        return out
    def srd(self, dst, ptr, off, size):
        for t in self.srd_l(dst, ptr, off, size): self.A(t)

    def prologue(self):
        A = self.A
        A("s_cmp_ge_u32 s2, 256")
        A("s_cbranch_scc1 L_end")
        A("s_load_dwordx16 s[40:55], s[0:1], 0")
        A("s_load_dwordx4 s[56:59], s[0:1], 64")
        A("v_and_b32 v1, 63, v0")
        self.stamp('start')
        A("v_lshrrev_b32 v2, 6, v0")
        A(f"s_and_b32 {s(sXCD)}, s2, 7")
        A(f"v_readfirstlane_b32 {s(sW)}, v2")
        A(f"s_lshr_b32 {s(sJ)}, s2, 3")
        A(f"s_and_b32 {s(sRHO)}, {s(sJ)}, 7")
        A(f"s_lshr_b32 {s(sT0)}, {s(sXCD)}, 1")
        A(f"s_lshl_b32 {s(sT0)}, {s(sT0)}, 3")
        A(f"s_add_u32 {s(sR)}, {s(sT0)}, {s(sRHO)}")
        A(f"s_and_b32 {s(sT0)}, {s(sXCD)}, 1")
        A(f"s_lshl_b32 {s(sT0)}, {s(sT0)}, 2")
        A(f"s_lshr_b32 {s(sT1)}, {s(sJ)}, 3")
        A(f"s_add_u32 {s(sG)}, {s(sT0)}, {s(sT1)}")
        if 'rot0' in self.exp: A(f"s_mov_b32 {s(sRHO)}, 0")
        if 'rot2' in self.exp:
            A(f"s_and_b32 {s(sRHO)}, {s(sRHO)}, 1")
            A(f"s_mul_i32 {s(sRHO)}, {s(sRHO)}, 5")

    def code_prefetch(self):
        A = self.A
        A("s_getpc_b64 s[36:37]")
        A.label("L_pc0")
        A(f"s_lshl_b32 {s(sT0)}, {s(sJ)}, 2")
        A(f"s_add_u32 {s(sT0)}, {s(sT0)}, {s(sW)}")
        A(f"s_lshl_b32 {s(sT0)}, {s(sT0)}, 10")
        A(f"s_min_u32 {s(sT0)}, {s(sT0)}, L_end-L_pc0-1024")
        A(f"v_lshl_add_u32 v6, v1, 4, {s(sT0)}")
        A("global_load_dwordx4 a[244:247], v6, s[36:37]")

    def weight_prefetch(self, late=False):
        A = self.A
        if late:
            L = A.newlabel('nopf')
            A(f"s_cmp_eq_u32 {s(sW)}, 0")
            A(f"s_cbranch_scc1 {L}")
            for rep in range(2):
                A(f"s_mul_i32 {s(sT0)}, s2, 3")
                A(f"s_add_u32 {s(sT0)}, {s(sT0)}, {s(sW)}")
                A(f"s_add_u32 {s(sT0)}, {s(sT0)}, {768*rep - 1}" if rep else f"s_sub_u32 {s(sT0)}, {s(sT0)}, 1")
                self._pf_one(nocount=True)
            A.label(L)
            return
        A(f"s_lshl_b32 {s(sT0)}, s2, 2")
        A(f"s_add_u32 {s(sT0)}, {s(sT0)}, {s(sW)}")
        self._pf_one()

    def wqkv_prefetch(self):
        A = self.A
        A(f"s_lshl_b32 {s(sT0)}, s2, 2")
        A(f"s_add_u32 {s(sT0)}, {s(sT0)}, {s(sW)}")
        A(f"s_mul_i32 {s(sT0)}, {s(sT0)}, {19*128}")
        A(f"v_lshl_add_u32 v6, v1, 7, {s(sT0)}")
        A(f"v_min_u32 v6, {640*3840 - 128}, v6")
        A("s_mov_b64 exec, 0x7ffff")
        A(f"global_load_dword a249, v6, s[{P_WQKV}:{P_WQKV+1}]")
        A("s_mov_b64 exec, -1")

    def _pf_one(self, nocount=False):
        A = self.A
        A(f"s_mov_b32 s36, {s(P_WO)}")
        A(f"s_mov_b32 s37, {s(P_WO+1)}")
        A(f"s_mov_b32 {s(sT1)}, {640*1280 - 128}")
        for lo, ptr, size in ((100, P_WG, 640*3456), (370, P_WU, 640*3456), (640, P_WD, 1728*1280)):
            A(f"s_cmp_ge_u32 {s(sT0)}, {lo}")
            A(f"s_cselect_b32 s36, {s(ptr)}, s36")
            A(f"s_cselect_b32 s37, {s(ptr+1)}, s37")
            A(f"s_cselect_b32 {s(sT1)}, {size - 128}, {s(sT1)}")
        A(f"s_mov_b32 {s(sT2)}, 0")
        for lo in (100, 370, 640):
            A(f"s_cmp_ge_u32 {s(sT0)}, {lo}")
            A(f"s_cselect_b32 {s(sT2)}, {lo}, {s(sT2)}")
        A(f"s_sub_u32 {s(sT0)}, {s(sT0)}, {s(sT2)}")
        A(f"s_lshl_b32 {s(sT0)}, {s(sT0)}, 13")
        A(f"v_lshl_add_u32 v6, v1, 7, {s(sT0)}")
        A(f"v_min_u32 v6, {s(sT1)}, v6")
        A("global_load_dword a248, v6, s[36:37]" + (" ; @nocount" if nocount else ""))

    def zero_store(self):
        A = self.A
        L = A.newlabel('nz')
        A(f"s_cmp_ge_u32 s2, {NZERO}")
        A(f"s_cbranch_scc1 {L}")
        A(f"s_cmp_lg_u32 {s(sW)}, 3")
        A(f"s_cbranch_scc1 {L}")
        self.srd(SRD_CNT, P_WS, WS_CNT, WS_CNT_SZ)
        A("v_lshlrev_b32 v2, 4, v1")
        A(f"s_lshl_b32 {s(sT5)}, s2, 10")
        for i in range(4): A(f"v_mov_b32 v{4+i}, 0")
        A(f"buffer_store_dwordx4 v[4:7], v2, {s(SRD_CNT,4)}, {s(sT5)} offen sc1 ; @nocount")
        A.label(L)

    def zero_report(self):
        A = self.A
        L = A.newlabel('nzr')
        A(f"s_cmp_ge_u32 s2, {NZERO}")
        A(f"s_cbranch_scc1 {L}")
        A(f"s_cmp_lg_u32 {s(sW)}, 3")
        A(f"s_cbranch_scc1 {L}")
        A("v_mov_b32 v4, 1")
        A("v_mov_b32 v2, 0")
        A("s_mov_b64 exec, 1")
        A(f"buffer_atomic_add v4, v2, {s(SRD_DBG,4)}, 0 offen sc1 ; @nocount")
        A("s_mov_b64 exec, -1")
        A.label(L)

    def poll(self, srd, voff_setup, nlanes, target, tmp, barrier=True):
        A = self.A
        Lskip, Lp, Lgot = A.newlabel('pskip'), A.newlabel('poll'), A.newlabel('got')
        A(f"s_cmp_lg_u32 {s(sW)}, 0")
        A(f"s_cbranch_scc1 {Lskip}")
        voff_setup()
        A(f"s_mov_b64 exec, {(1 << nlanes) - 1}")
        A(f"s_mov_b32 {s(sT5)}, 0")
        A.label(Lp)
        A(f"buffer_load_dword v{tmp+1}, v{tmp}, {s(srd,4)}, 0 offen sc1 ; @nocount")
        A(f"s_add_u32 {s(sT5)}, {s(sT5)}, 1")
        A("s_waitcnt vmcnt(0)")
        A(f"v_cmp_gt_u32 vcc, {target}, v{tmp+1}")
        A(f"s_cbranch_vccz {Lgot}")
        A(f"s_cmp_lt_u32 {s(sT5)}, 0x40000")
        A(f"s_cbranch_scc1 {Lp}")
        A.label(Lgot)
        A("s_mov_b64 exec, -1")
        A.label(Lskip)
        if barrier: A("s_barrier")

    def signal(self, cidx_sgpr, tmp, wave=0):
        A = self.A
        L = A.newlabel('sig')
        A(f"s_cmp_lg_u32 {s(sW)}, {wave}")
        A(f"s_cbranch_scc1 {L}")
        A(f"s_lshl_b32 {s(sT5)}, {s(cidx_sgpr)}, 7")
        A(f"v_mov_b32 v{tmp}, {s(sT5)}")
        A(f"v_mov_b32 v{tmp+1}, 1")
        A("s_mov_b64 exec, 1")
        A(f"buffer_atomic_add v{tmp+1}, v{tmp}, {s(SRD_CNT,4)}, 0 offen sc1 ; @nocount")
        A("s_mov_b64 exec, -1")
        A.label(L)

    def p1(self):
        A = self.A
        XF = 16
        ACK, ACV = 96, 116
        INIT, SUM, GRAM, ONES = 136, 140, 144, 148
        KF = 152
        VTRW = 232
        VOW = 250; VOX = 255; VXA = 10
        A("v_lshrrev_b32 v2, 3, v1")
        A("v_and_b32 v3, 6, v2")
        A("v_and_b32 v4, 7, v1")
        A("v_xor_b32 v3, v3, v4")
        A("v_lshlrev_b32 v3, 4, v3")
        A("v_mul_u32_u24 v2, 1280, v2")
        A(f"v_add_u32 v{VOX}, v2, v3")
        A(f"s_lshl_b32 {s(sT0)}, {s(sR)}, 6")
        A(f"s_lshl_b32 {s(sT1)}, {s(sW)}, 4")
        A(f"s_add_u32 {s(sT0)}, {s(sT0)}, {s(sT1)}")
        A(f"s_mul_i32 {s(sT0)}, {s(sT0)}, 1280")
        A(f"s_lshl_b32 {s(sT1)}, {s(sRHO)}, 7")
        A(f"s_mul_i32 {s(sLD)}, {s(sW)}, {STAGE}")
        A(f"s_add_u32 {s(sT3)}, {s(sT0)}, {s(sT1)}")
        A(f"s_add_u32 {s(sT4)}, {s(sT0)}, 1280")
        A(f"s_mov_b32 {s(sC)}, 6554")
        A(f"s_mov_b32 {s(sC+1)}, 3840")
        A("s_waitcnt lgkmcnt(0)")
        self.zero_store()
        if 'pfq' in self.exp: self.wqkv_prefetch()
        self.srd(SRD_X, P_X, 0, 2048 * 1280)
        wv = []
        for i in range(5):
            wv += [f"v_add_u32 v2, {64*i}, v1", f"v_mul_lo_u32 v3, v2, {s(sC)}", "v_lshrrev_b32 v3, 16, v3",
                   "v_mul_u32_u24 v4, 10, v3", "v_sub_u32 v4, v2, v4", "v_and_b32 v5, 0x13, v3", "v_and_b32 v6, 4, v3",
                   "v_lshlrev_b32 v6, 1, v6", "v_and_b32 v7, 8, v3", "v_lshrrev_b32 v7, 1, v7", "v_or3_b32 v5, v5, v6, v7",
                   f"v_mul_lo_u32 v5, v5, {s(sC+1)}", f"v_lshl_add_u32 v{VOW+i}, v4, 4, v5"]
        wv += self.srd_l(SRD_W, P_WQKV, 0, 640 * 3840)
        wv += [f"s_and_b32 {s(sT0)}, {s(sW)}, 1", f"s_mul_i32 {s(sT0)}, {s(sT0)}, {32*3840}", f"s_mul_i32 {s(sT1)}, {s(sG)}, 160",
               f"s_add_u32 {s(sWB)}, {s(sT0)}, {s(sT1)}", f"s_lshr_b32 {s(sT0)}, {s(sW)}, 1", f"s_add_u32 {s(sT0)}, {s(sT0)}, 1",
               f"s_mul_i32 {s(sT0)}, {s(sT0)}, 1280", f"s_add_u32 {s(sWA)}, {s(sWB)}, {s(sT0)}"]
        xg = []
        for sl in range(10):
            xg.append([f"s_add_u32 m0, {s(sLD)}, {sl*1024}", f"s_add_u32 {s(sT2)}, {s(sT3)}, {8*1280}",
                       f"buffer_load_dwordx4 v{VOX}, {s(SRD_X,4)}, {s(sT3)} offen lds ; @x"])
            g = [f"s_add_u32 m0, {s(sLD)}, {(10+sl)*1024}", f"s_add_u32 {s(sT3)}, {s(sT3)}, 128",
                 f"buffer_load_dwordx4 v{VOX}, {s(SRD_X,4)}, {s(sT2)} offen lds ; @x"]
            if sl < 9:
                g += [f"s_cmp_ge_u32 {s(sT3)}, {s(sT4)}", f"s_cselect_b32 {s(sK2)}, 1280, 0", f"s_sub_u32 {s(sT3)}, {s(sT3)}, {s(sK2)}"]
            xg.append(g)
        per = -(-len(wv) // 20)
        for k, g in enumerate(xg):
            for t in g: A(t)
            for t in wv[k*per:(k+1)*per]: A(t)
        A(f"s_mul_i32 {s(sLD)}, {s(sW)}, 5120")

        def stage_groups(sig):
            pre = []
            if sig < 10:
                pre.append(f"s_add_u32 {s(sK)}, {s(sRHO)}, {sig}")
                base = sWA
            else:
                pre.append(f"s_add_u32 {s(sK)}, {s(sRH2)}, {2*(sig-10)}")
                base = sWB
            pre += [f"s_cmp_ge_u32 {s(sK)}, 10", f"s_cselect_b32 {s(sK2)}, 10, 0", f"s_sub_u32 {s(sK)}, {s(sK)}, {s(sK2)}",
                    f"s_mul_i32 {s(sK)}, {s(sK)}, {64*3840}", f"s_add_u32 {s(sK)}, {s(sK)}, {s(base)}"]
            gs = []
            for i in range(5):
                gs.append((pre if i == 0 else []) + [f"s_add_u32 m0, {s(sLD)}, {slot_of(sig)*STAGE + i*1024}"])
                gs.append([f"buffer_load_dwordx4 v{VOW+i}, {s(SRD_W,4)}, {s(sK)} offen lds ; @st{sig}"])
            return gs
        A(f"s_lshr_b32 {s(sRH2)}, {s(sW)}, 1")
        A(f"s_add_u32 {s(sRH2)}, {s(sRH2)}, {s(sRHO)}")
        if 'pfstart' in self.exp: self.weight_prefetch()
        self.code_prefetch()
        self.srd(SRD_CNT, P_WS, WS_CNT, WS_CNT_SZ)
        self.srd(SRD_DBG, P_DBG, 0, 256)
        self.srd(SRD_T, P_WS, WS_DBG, WS_DBG_SZ)
        A("v_bfe_u32 v2, v1, 2, 2")
        A("v_bfe_u32 v3, v1, 4, 1")
        A("v_lshl_add_u32 v2, v3, 2, v2")
        A("v_bfe_u32 v3, v1, 5, 1")
        A("v_lshl_add_u32 v2, v3, 4, v2")
        A("v_mul_u32_u24 v2, 160, v2")
        A("v_and_b32 v3, 3, v1")
        A(f"v_lshl_add_u32 v{VTRW}, v3, 3, v2")
        A(f"v_add_u32 v{VTRW+1}, {3*STAGE}, v{VTRW}")
        A(f"v_add_u32 v{VTRW+2}, {6*STAGE}, v{VTRW}")
        A("v_and_b32 v2, 15, v1")
        A("v_lshrrev_b32 v3, 3, v2")
        A("v_mul_u32_u24 v3, 10240, v3")
        A("v_and_b32 v4, 7, v2")
        A("v_lshl_add_u32 v3, v4, 7, v3")
        A(f"s_mul_i32 {s(sT0)}, {s(sW)}, {STAGE}")
        A(f"v_add_u32 v3, {s(sT0)}, v3")
        A("v_and_b32 v4, 6, v2")
        A("v_lshrrev_b32 v5, 4, v1")
        A("v_xor_b32 v6, v5, v4")
        A(f"v_lshl_add_u32 v{VXA}, v6, 4, v3")
        A("v_or_b32 v5, 4, v5")
        A("v_xor_b32 v6, v5, v4")
        A(f"v_lshl_add_u32 v{VXA+1}, v6, 4, v3")
        for i in range(4):
            A(f"v_mov_b32 v{ONES+i}, 0x3f803f80")
            A(f"v_mov_b32 v{INIT+i}, 0x358637bd")
        self.map_p3()
        A("v_and_b32 v3, 3, v1")
        A(f"v_cmp_eq_u32 {s(sMASK,2)}, 1, v3")
        A(f"v_cmp_eq_u32 {s(sMASK+2,2)}, 2, v3")
        A(f"v_cmp_eq_u32 {s(sMASK+4,2)}, 3, v3")
        A("v_bfe_u32 v3, v1, 2, 2")
        A("v_lshrrev_b32 v4, 4, v1")
        A(f"v_cmp_eq_u32 {s(sMASK+6,2)}, v3, v4")
        P = self.P = Pacer(A)
        for tk in self.exp.split(','):
            if tk.startswith('slack'): P.slack = float(tk[5:]) / 100
        def stage_dma(sig):
            it = stage_groups(sig)
            return [it[2*i] + it[2*i+1] for i in range(5)]
        for sig in range(15):
            need = None if sig < 4 else ('xfree' if sig < 8 else f'bar{sig-8}')
            P.push(stage_dma(sig), 30, need, f'st{sig}')
        if 'dmaonly' in self.exp:
            P.event('xfree')
            for k in range(10): P.event(f'bar{k}')
            A("WAITVM x")
            self.stamp('x_landed')
            for sig in range(15):
                P.flush(f'st{sig}')
                if sig in (3, 9):
                    A(f"WAITVM st{sig}")
                    self.stamp(f'st{sig}')
            A("s_waitcnt vmcnt(0)")
            self.stamp('all')
            self.dump_stamps()
            A("s_endpgm")
            self.early_exit = True
            return
        P.flush('st0')
        self.stamp('issued')
        A("WAITVM x")
        self.zero_report()
        self.stamp('x_landed')
        for m in range(8):
            A(f"ds_read_b128 {v(XF+4*m,4)}, v{VXA+(m&1)} offset:{(m>>1)*1024} ; @xf{m}")
        for m in range(20):
            xf = v(XF+4*m,4)
            P.emit(f"WAITLG xf{m}", feed=False)
            P.emit(f"{MF} {v(SUM,4)}, {v(ONES,4)}, {xf}, {'0' if m == 0 else v(SUM,4)}")
            if m + 8 < 20:
                P.emit(f"ds_read_b128 {v(XF+4*(m+8),4)}, v{VXA+(m&1)} offset:{((m+8)>>1)*1024} ; @xf{m+8}")
            P.emit(f"{MF} {v(GRAM,4)}, {xf}, {xf}, {'0' if m == 0 else v(GRAM,4)}")
        A("s_barrier")
        P.event('xfree')
        T = KF
        P.emit_all([f"v_cndmask_b32 v{T}, v{GRAM}, v{GRAM+1}, {s(sMASK,2)}",
            f"v_cndmask_b32 v{T}, v{T}, v{GRAM+2}, {s(sMASK+2,2)}",
            f"v_cndmask_b32 v{T}, v{T}, v{GRAM+3}, {s(sMASK+4,2)}",
            f"v_cndmask_b32 v{T}, 0, v{T}, {s(sMASK+6,2)}",
            f"v_mov_b32 v{T+1}, v{T}",
            f"v_mul_f32 v{T+2}, {1.0/640!r}, v{SUM}",
            f"v_permlane16_swap_b32 v{T}, v{T+1}",
            f"v_add_f32 v{T}, v{T}, v{T+1}",
            f"v_mov_b32 v{T+1}, v{T}",
            f"s_mov_b32 {s(sC)}, 0xffff0000",
            f"v_permlane32_swap_b32 v{T}, v{T+1}",
            f"v_add_f32 v{T}, v{T}, v{T+1}",
            f"v_mul_f32 v{T}, {1.0/640!r}, v{T}",
            f"v_fma_f32 v{T}, -v{T+2}, v{T+2}, v{T}",
            f"v_max_f32 v{T}, 0, v{T}",
            f"v_add_f32 v{T}, 0x3727c5ac, v{T}",
            f"v_rsq_f32 v{T+4}, v{T}",
            f"v_mul_f32 v{T+6}, v{T+2}, v{T+4}"])
        norm = []
        for r in range(80):
            x = XF + r; u = T + 8 + 2*(r & 3)
            norm.append([f"v_lshlrev_b32 v{u}, 16, v{x}", f"v_and_b32 v{u+1}, {s(sC)}, v{x}",
                         f"v_pk_fma_f32 {v(u,2)}, {v(u,2)}, {v(T+4,2)}, {v(T+6,2)} op_sel_hi:[1,0,0] neg_lo:[0,0,1] neg_hi:[0,0,1]",
                         f"v_cvt_pk_bf16_f32 v{x}, v{u}, v{u+1}"])
        for b in range(0, 80, 4):
            for k in range(4):
                for r in range(4): P.emit(norm[b+r][k])
        self.stamp('normed')

        def rd(buf, sec, j, sig, h, second):
            sl = slot_of(sig)
            dst = KF + buf*40 + sec*20 + j*4 + 2*second
            return f"ds_read_b64_tr_b16 {v(dst,2)}, v{VTRW + sl // 3} offset:{(sl % 3)*STAGE + (sec*2+h)*5120 + j*32 + second*1280} ; @r{2*sig+h}_{j}"
        def reads(buf, sig, h):
            return [rd(buf, sec, j, sig, h, sec2) for j in range(5) for sec in range(2) for sec2 in range(2)]
        def phase(buf, m, rds):
            first = (m == 0)
            xf = v(XF+4*m,4)
            for j in range(5):
                kf = v(KF+buf*40+j*4,4); vf = v(KF+buf*40+20+j*4,4)
                P.emit(f"WAITLG r{m}_{j}", feed=False)
                P.emit(f"{MF} {v(ACK+4*j,4)}, {xf}, {kf}, {v(INIT,4) if first else v(ACK+4*j,4)}")
                P.emit_all(rds[4*j:4*j+2], feed=False)
                P.emit(f"{MF} {v(ACV+4*j,4)}, {xf}, {vf}, {'0' if first else v(ACV+4*j,4)}")
                P.emit_all(rds[4*j+2:4*j+4], feed=False)

        P.flush('st0')
        A("WAITVM st0")
        A("s_barrier")
        for t in reads(0, 0, 0): A(t)
        for sig in range(10):
            phase(0, 2*sig, reads(1, sig, 1))
            if sig == 3:
                A("v_mov_b32 v2, 0")
                A(f"buffer_load_dword a{AZERO}, v2, {s(SRD_DBG,4)}, 0 offen sc1 ; @zero")
            if sig < 9:
                P.flush(f'st{sig+1}')
                A(f"WAITVM st{sig+1}")
            A("s_barrier")
            P.event(f'bar{sig-1}')
            phase(1, 2*sig+1, reads(0, sig + 1, 0) if sig < 9 else [])
        self.stamp('p1a_loop')

        T = KF
        VFR = T
        Y, E, PK = T + 4, T + 8, T + 12
        A(f"s_lshr_b32 {s(sT1)}, {s(sW)}, 1")
        A(f"s_lshl_b32 {s(sT1)}, {s(sT1)}, 10")
        A(f"s_add_u32 {s(sT0)}, {s(sT1)}, {FR + 20*1024}")
        A(f"v_lshl_add_u32 v5, v1, 4, {s(sT0)}")
        A(f"ds_write_b128 v5, {v(ONES,4)}")
        A(f"s_and_b32 {s(sT2)}, {s(sW)}, 1")
        A(f"s_lshl_b32 {s(sT2)}, {s(sT2)}, 3")
        A(f"s_add_u32 {s(sT1)}, {s(sT1)}, {s(sT2)}")
        A(f"s_add_u32 {s(sT1)}, {s(sT1)}, {FR}")
        A(f"v_lshl_add_u32 v{VFR}, v1, 4, {s(sT1)}")
        A(f"s_mov_b32 {s(sC2)}, {f32bits(LOG2E)}")
        A(f"s_mov_b32 {s(sC2+1)}, {f32bits(LOG2E)}")
        A(f"s_mov_b32 {s(sC)}, 0x358637bd")
        def phi_tile(acc, dst, E=E):
            out = []
            for p in range(2): out.append(f"v_pk_mul_f32 {v(E+2*p,2)}, {v(acc+2*p,2)}, {s(sC2,2)}")
            for r in range(4): out.append(f"v_exp_f32 v{E+r}, v{E+r} clamp")
            for r in range(4): out.append(f"v_max_f32 v{acc+r}, {s(sC)}, v{acc+r}")
            for p in range(2): out.append(f"v_pk_add_f32 {v(acc+2*p,2)}, {v(acc+2*p,2)}, {v(E+2*p,2)}")
            out.append(f"v_cvt_pk_bf16_f32 v{dst}, v{acc}, v{acc+1}")
            out.append(f"v_cvt_pk_bf16_f32 v{dst+1}, v{acc+2}, v{acc+3}")
            return out
        self.phi_tile = phi_tile
        for j in range(5):
            b = PK + 4*(j & 1)
            P.emit(f"v_cvt_pk_bf16_f32 v{b+2}, v{ACV+4*j}, v{ACV+4*j+1}")
            P.emit(f"v_cvt_pk_bf16_f32 v{b+3}, v{ACV+4*j+2}, v{ACV+4*j+3}")
            P.emit(f"ds_write_b64 v{VFR}, {v(b+2,2)} offset:{5*2048 + j*2048}")
            P.emit_all(phi_tile(ACK+4*j, b))
            P.emit(f"ds_write_b64 v{VFR}, {v(b,2)} offset:{j*2048}")
        ia = sum(JOBS[k][0] << (3*k) for k in range(18))
        ib = sum(JOBS[k][1] << (3*k) for k in range(18))
        self.srd(SRD_B, P_WS, WS_PART, WS_PART_SZ)
        A(f"s_lshl_b32 {s(sT4)}, {s(sG)}, 5")
        A(f"s_add_u32 {s(sT4)}, {s(sT4)}, {s(sR)}")
        A(f"s_mul_i32 {s(sT4)}, {s(sT4)}, {18*1024}")
        A("v_lshlrev_b32 v2, 4, v1")
        JADDR = T + 20
        A(f"s_mul_i32 {s(sT1)}, {s(sW)}, 3")
        A(f"s_mov_b32 {s(sC)}, {ia & 0xffffffff}")
        A(f"s_mov_b32 {s(sC+1)}, {ia >> 32}")
        A(f"s_lshr_b64 {s(sC,2)}, {s(sC,2)}, {s(sT1)}")
        A(f"s_mov_b32 {s(sC2)}, {ib & 0xffffffff}")
        A(f"s_mov_b32 {s(sC2+1)}, {ib >> 32}")
        A(f"s_lshr_b64 {s(sC2,2)}, {s(sC2,2)}, {s(sT1)}")
        for q in range(5):
            A(f"s_and_b32 {s(sT2)}, {s(sC)}, 7")
            A(f"s_and_b32 {s(sT3)}, {s(sC2)}, 7")
            A(f"s_lshl_b32 {s(sT2)}, {s(sT2)}, 11")
            A(f"s_lshl_b32 {s(sT3)}, {s(sT3)}, 11")
            A(f"s_add_u32 {s(sT2)}, {s(sT2)}, {FR}")
            A(f"s_add_u32 {s(sT3)}, {s(sT3)}, {FR + 5*2048}")
            A(f"v_add_u32 v{JADDR+2*q}, {s(sT2)}, v2")
            A(f"v_add_u32 v{JADDR+2*q+1}, {s(sT3)}, v2")
            if q < 4:
                A(f"s_lshr_b64 {s(sC,2)}, {s(sC,2)}, 12")
                A(f"s_lshr_b64 {s(sC2,2)}, {s(sC2,2)}, 12")
        A("s_waitcnt lgkmcnt(0)")
        A("s_barrier")
        JF = T + 32
        JD = 96
        def jreads(q, base):
            return [f"ds_read_b128 {v(base,4)}, v{JADDR+2*q}", f"ds_read_b128 {v(base+4,4)}, v{JADDR+2*q+1}",
                    f"ds_read_b128 {v(base+8,4)}, v{JADDR+2*q} offset:1024", f"ds_read_b128 {v(base+12,4)}, v{JADDR+2*q+1} offset:1024"]
        for q in range(3):
            for t in jreads(q, JF + 16*q): A(t)
        A(f"s_lshl_b32 {s(sT0)}, {s(sW)}, 10")
        A(f"s_add_u32 {s(sT0)}, {s(sT0)}, {s(sT4)}")
        for q in range(5):
            b = JF + 16*(q % 3)
            A(f"s_waitcnt lgkmcnt({min(8, 4*(min(q+3,5)-q-1))})")
            A(f"{MF} {v(JD+4*q,4)}, {v(b,4)}, {v(b+4,4)}, 0")
            A(f"{MF} {v(JD+4*q,4)}, {v(b+8,4)}, {v(b+12,4)}, {v(JD+4*q,4)}")
            if q + 3 < 5:
                for t in jreads(q + 3, b): A(t)
        for q in range(5):
            if q == 4:
                A(f"s_cmp_lt_u32 {s(sW)}, 2")
                A(f"s_cselect_b32 {s(sT0)}, {s(sT0)}, {OOB}")
            A(f"buffer_store_dwordx4 {v(JD+4*q,4)}, v2, {s(SRD_B,4)}, {s(sT0)} offen sc1 ; @part")
            if q < 4: A(f"s_add_u32 {s(sT0)}, {s(sT0)}, 4096")
        self.stamp('p1a_epi')

        ACQ = 116
        QF = KF
        def rdq(buf, j, ks, second):
            sl = slot_of(10 + ks // 4)
            return f"ds_read_b64_tr_b16 {v(QF+buf*20+j*4+2*second,2)}, v{VTRW + sl // 3} offset:{(sl % 3)*STAGE + (ks % 4)*5120 + j*32 + second*1280} ; @q{ks}_{j}"
        def readsq(buf, ks): return [rdq(buf, j, ks, sec2) for j in range(5) for sec2 in range(2)]
        def mfq(buf, m):
            return [f"{MF} {v(ACQ+4*j,4)}, {v(QF+buf*20+j*4,4)}, {v(XF+4*m,4)}, {v(INIT,4) if m == 0 else v(ACQ+4*j,4)}" for j in range(5)]
        P.event('bar8'); P.event('bar9')
        P.flush('st11')
        A("WAITVM st11")
        A("s_barrier")
        for t in readsq(0, 0): A(t)
        P.push(self.w3_groups()[:20], 19, 'w3ok', 'w3')
        for ks in range(20):
            if ks in (7, 11, 15):
                P.flush(f'st{12 + (ks - 7)//4}')
                A(f"WAITVM st{12 + (ks - 7)//4}" + (" lgkmcnt(0)" if ks == 7 else ""))
                A("s_barrier")
                if ks == 7: P.event('w3ok')
            if ks == 4:
                A("WAITVM part")
                A("s_barrier")
                self.check_zero_done()
                A(f"s_add_u32 {s(sT0)}, {s(sG)}, {C_A}")
                self.signal(sT0, 2)
            if ks == 5 and 'pflate' in self.exp: self.weight_prefetch(late=True)
            rd_ = readsq((ks+1) & 1, ks+1) if ks < 19 else []
            for j, t in enumerate(mfq(ks & 1, ks)):
                P.emit(f"WAITLG q{ks}_{j}", feed=False)
                P.emit(t)
                P.emit_all(rd_[2*j:2*j+2], feed=False)
        P.flush('w3')
        self.ACQ = ACQ
        self.stamp('p1b_loop')

    def check_zero_done(self):
        A = self.A
        L = A.newlabel('zok')
        A(f"v_accvgpr_read_b32 v2, a{AZERO}")
        A("s_nop 0")
        A(f"v_readfirstlane_b32 {s(sT0)}, v2")
        A(f"s_cmp_ge_u32 {s(sT0)}, {NZERO}")
        A(f"s_cbranch_scc1 {L}")
        self.poll(SRD_DBG, lambda: A("v_mov_b32 v2, 0"), 1, NZERO, 2, barrier=False)
        A.label(L)

    def q_epilogue(self):
        A = self.A
        PQ = self.PQ = 232
        A(f"s_mov_b32 {s(sC2)}, {f32bits(LOG2E)}")
        A(f"s_mov_b32 {s(sC2+1)}, {f32bits(LOG2E)}")
        A(f"s_mov_b32 {s(sC)}, 0x358637bd")
        for j in range(5):
            for t in self.phi_tile(self.ACQ+4*j, PQ+2*j, E=200 + 4*(j & 1)): A(t)
        A(f"v_mov_b32 v{PQ+10}, 0")
        A(f"v_mov_b32 v{PQ+11}, 0")
        if self.dbg:
            A(f"s_lshl_b32 {s(sT0)}, s2, 2")
            A(f"s_add_u32 {s(sT0)}, {s(sT0)}, {s(sW)}")
            A(f"s_mul_i32 {s(sT0)}, {s(sT0)}, {5*512}")
            A("v_lshlrev_b32 v2, 3, v1")
            for j in range(5):
                A(f"buffer_store_dwordx2 {v(PQ+2*j,2)}, v2, {s(SRD_T,4)}, {s(sT0)} offen offset:{j*512}")

    def map_p3(self):
        A = self.A
        A(f"s_lshr_b32 {s(sT0)}, {s(sXCD)}, 1")
        A(f"s_mul_i32 {s(sT1)}, {s(sJ)}, 52")
        A(f"s_lshr_b32 {s(sT1)}, {s(sT1)}, 8")
        A(f"s_mul_i32 {s(sT2)}, {s(sT1)}, 5")
        A(f"s_sub_u32 {s(sT2)}, {s(sJ)}, {s(sT2)}")
        A(f"s_and_b32 {s(sT3)}, {s(sXCD)}, 1")
        A(f"s_mul_i32 {s(sT3)}, {s(sT3)}, 5")
        A(f"s_add_u32 {s(sC3)}, {s(sT2)}, {s(sT3)}")
        A(f"s_mul_i32 {s(sT2)}, {s(sT0)}, 6")
        A(f"s_cmp_eq_u32 {s(sT0)}, 3")
        A(f"s_cselect_b32 {s(sT3)}, 1, 0")
        A(f"s_sub_u32 {s(sT2)}, {s(sT2)}, {s(sT3)}")
        A(f"s_add_u32 {s(sR3)}, {s(sT2)}, {s(sT1)}")
        A(f"s_cmp_ge_u32 {s(sT0)}, 2")
        A(f"s_cselect_b32 {s(sT3)}, 5, 6")
        A(f"s_cmp_lt_u32 {s(sT1)}, {s(sT3)}")
        A(f"s_cselect_b32 {s(sV3)}, 1, 0")
        A(f"s_lshr_b32 {s(sT0)}, {s(sXCD)}, 2")
        A(f"s_lshl_b32 {s(sT0)}, {s(sT0)}, 2")
        A(f"s_and_b32 {s(sT1)}, {s(sJ)}, 3")
        A(f"s_add_u32 {s(sR4)}, {s(sT0)}, {s(sT1)}")
        A(f"s_and_b32 {s(sT0)}, {s(sXCD)}, 3")
        A(f"s_lshr_b32 {s(sT1)}, {s(sJ)}, 2")
        A(f"s_mul_i32 {s(sT2)}, {s(sT0)}, 7")
        A(f"s_add_u32 {s(sS4)}, {s(sT2)}, {s(sT1)}")
        A(f"s_cmp_eq_u32 {s(sT0)}, 3")
        A(f"s_cselect_b32 {s(sT2)}, 6, 7")
        A(f"s_cmp_lt_u32 {s(sT1)}, {s(sT2)}")
        A(f"s_cselect_b32 {s(sV4)}, 1, 0")

    def slab_voffset_l(self, dst, rowstride):
        return ["v_lshrrev_b32 v2, 3, v1", "v_bfe_u32 v3, v1, 4, 2", "v_lshlrev_b32 v3, 1, v3", "v_and_b32 v4, 7, v1",
                "v_xor_b32 v3, v3, v4", "v_lshlrev_b32 v3, 4, v3", f"v_mul_u32_u24 v2, {rowstride}, v2",
                f"v_add_u32 v{dst}, v2, v3"]

    def tr_addrs(self, dst, base, perm_sgpr=None):
        A = self.A
        A("v_bfe_u32 v2, v1, 2, 2")
        A("v_lshrrev_b32 v3, 4, v1")
        A("v_lshl_add_u32 v2, v3, 2, v2")
        A("v_bfe_u32 v3, v2, 1, 2")
        A("v_and_b32 v4, 3, v1")
        A("v_lshlrev_b32 v4, 3, v4")
        A("v_lshl_add_u32 v2, v2, 7, v4")
        A(f"v_add_u32 v2, {base}, v2")
        if perm_sgpr is not None: A(f"v_xor_b32 v3, {s(perm_sgpr)}, v3")
        for ct in range(4):
            A(f"v_xor_b32 v4, {ct}, v3")
            A(f"v_lshl_add_u32 v{dst+ct}, v4, 5, v2")

    def w3_groups(self):
        pre = self.slab_voffset_l(VSLAB, 1280) + self.srd_l(SRD_W2, P_WO, 0, 640 * 1280) + [
            f"s_mul_i32 {s(sK2)}, {s(sW)}, {160*1280}", f"s_lshl_b32 {s(sK3)}, {s(sC3)}, 7",
            f"s_add_u32 {s(sK2)}, {s(sK2)}, {s(sK3)}",
            f"s_cmp_eq_u32 {s(sV3)}, 0", f"s_cselect_b32 {s(sK2)}, {OOB}, {s(sK2)}",
            f"s_add_u32 {s(sK3)}, {s(sW)}, 4", f"s_mul_i32 {s(sK3)}, {s(sK3)}, {STAGE}"]
        gs = []
        for i in range(20):
            g = [f"s_add_u32 m0, {s(sK3)}, {i*1024}", "s_nop 0",
                 f"buffer_load_dwordx4 v{VSLAB}, {s(SRD_W2,4)}, {s(sK2)} offen lds",
                 f"s_add_u32 {s(sK2)}, {s(sK2)}, {8*1280}"]
            gs.append((pre if i == 0 else []) + g)
        gs += [[] for _ in range(4)]
        return gs

    def w4_groups(self, m0, m1):
        pre = [f"s_lshl_b32 {s(sK2)}, {s(sW)}, 3", f"s_add_u32 {s(sK2)}, {s(sK2)}, {32*m0}",
               f"s_mul_i32 {s(sK2)}, {s(sK2)}, 3456", f"s_lshl_b32 {s(sK3)}, {s(sS4)}, 7",
               f"s_add_u32 {s(sK2)}, {s(sK2)}, {s(sK3)}",
               f"s_cmp_eq_u32 {s(sV4)}, 0", f"s_cselect_b32 {s(sK2)}, {OOB}, {s(sK2)}",
               f"s_lshl_b32 {s(sK3)}, {s(sW)}, 10"]
        gs = []
        for m in range(m0, m1):
            gs.append((pre if m == m0 else []) + [f"s_add_u32 m0, {s(sK3)}, {m*8192}", "s_nop 0",
                      f"buffer_load_dwordx4 v{VSLAB4}, {s(SRD_W,4)}, {s(sK2)} offen lds ; @w4"])
            gs.append([f"s_add_u32 m0, {s(sK3)}, {m*8192 + 4096}", "s_nop 0",
                      f"buffer_load_dwordx4 v{VSLAB4}, {s(SRD_W2,4)}, {s(sK2)} offen lds ; @w4",
                      f"s_add_u32 {s(sK2)}, {s(sK2)}, {32*3456}"])
        return gs

    def w5_groups(self, m0, m1, tag, region_a=None):
        base = 81920 if m0 >= 10 else 0
        pre = []
        if m0 == 0:
            pre += self.srd_l(SRD_W, P_WD, 0, 1728 * 1280)
        pre += [f"s_mul_i32 {s(sK2)}, {s(sW)}, 14", f"s_add_u32 {s(sK2)}, {s(sK2)}, {m0}",
                f"s_mul_i32 {s(sK2)}, {s(sK2)}, {32*1280}", f"s_lshl_b32 {s(sK3)}, {s(sC3)}, 7",
                f"s_add_u32 {s(sK2)}, {s(sK2)}, {s(sK3)}",
                f"s_cmp_eq_u32 {s(sV3)}, 0", f"s_cselect_b32 {s(sK2)}, {OOB}, {s(sK2)}",
                f"s_mul_i32 {s(sK3)}, {s(sW)}, 20480"]
        gs = []
        for mm in range(m0, m1):
            for i in range(4):
                gs.append((pre if (mm == m0 and i == 0) else []) + [f"s_add_u32 m0, {s(sK3)}, {base + (mm-m0)*4096 + i*1024}", "s_nop 0",
                          f"buffer_load_dwordx4 v{VSLAB}, {s(SRD_W,4)}, {s(sK2)} offen lds ; @{tag}",
                          f"s_add_u32 {s(sK2)}, {s(sK2)}, {8*1280}"])
        return gs

    def colsum_part(self, m0, m1, VB, TMP):
        A = self.A
        A("v_bfe_u32 v2, v1, 2, 2")
        A("v_lshrrev_b32 v3, 4, v1")
        A("v_lshl_add_u32 v2, v3, 2, v2")
        A("v_bfe_u32 v3, v2, 1, 2")
        A(f"v_xor_b32 v3, {s(sW)}, v3")
        A("v_and_b32 v4, 3, v1")
        A("v_lshlrev_b32 v4, 3, v4")
        A("v_lshl_add_u32 v2, v2, 7, v4")
        A(f"v_lshl_add_u32 v{VB}, v3, 5, v2")
        if m0: A(f"v_add_u32 v{VB}, {m0*8192}, v{VB}")
        for i in range(4): A(f"v_mov_b32 v{TMP+i}, 0x3f803f80")
        NB = 3
        def rd(m):
            k = m - m0; b = TMP + 4 + (k % NB) * 8
            pre = [f"v_add_u32 v{VB}, 57344, v{VB}"] if (k and k % 7 == 0) else []
            return pre + [f"ds_read_b64_tr_b16 {v(b+sec*4+2*h,2)}, v{VB} offset:{(k % 7)*8192 + sec*4096 + h*2048}" for sec in range(2) for h in range(2)]
        for m in range(m0, min(m0 + NB - 1, m1)):
            for t in rd(m): A(t)
        for m in range(m0, m1):
            if m + NB - 1 < m1:
                for t in rd(m + NB - 1): A(t)
            A(f"s_waitcnt lgkmcnt({4*min(NB - 1, m1 - 1 - m)})")
            b = TMP + 4 + ((m - m0) % NB) * 8
            for sec in range(2):
                A(f"{MF} {a(ACS+4*sec,4)}, {v(b+sec*4,4)}, {v(TMP,4)}, {'0' if m == 0 else a(ACS+4*sec,4)}")

    def emit_groups(self, gs):
        for g in gs:
            for t in g: self.A(t)

    def p2(self):
        A = self.A
        half_items = []
        for (j, i0, i1) in [(0,0,1),(1,0,1),(1,2,7),(2,1,2),(2,3,7),(3,2,3),(3,4,7),(4,3,4)]:
            half_items += [(i0, j), (i1, j)]
        ti = sum(h[0] << (3*k) for k, h in enumerate(half_items))
        tj = sum(h[1] << (3*k) for k, h in enumerate(half_items))
        A(f"s_and_b32 {s(sT0)}, {s(sR)}, 15")
        A(f"s_mul_i32 {s(sT0)}, {s(sT0)}, 3")
        A(f"s_mov_b32 {s(sC)}, {ti & 0xffffffff}")
        A(f"s_mov_b32 {s(sC+1)}, {ti >> 32}")
        A(f"s_lshr_b64 {s(sC,2)}, {s(sC,2)}, {s(sT0)}")
        A(f"s_and_b32 {s(sT1)}, {s(sC)}, 7")
        A(f"s_mov_b32 {s(sC)}, {tj & 0xffffffff}")
        A(f"s_mov_b32 {s(sC+1)}, {tj >> 32}")
        A(f"s_lshr_b64 {s(sC,2)}, {s(sC,2)}, {s(sT0)}")
        A(f"s_and_b32 {s(sT2)}, {s(sC)}, 7")
        A(f"s_lshl_b32 {s(sT3)}, {s(sT1)}, 1")
        A(f"s_add_u32 {s(sT3)}, {s(sT3)}, {s(sT2)}")
        A(f"s_add_u32 {s(sT4)}, {s(sT1)}, 13")
        A(f"s_cmp_ge_u32 {s(sR)}, 16")
        A(f"s_cselect_b32 {s(sT3)}, {s(sT4)}, {s(sT3)}")
        A(f"s_cmp_eq_u32 {s(sT1)}, 7")
        A(f"s_cselect_b32 {s(sT3)}, 0, {s(sT3)}")
        self.srd(SRD_A, P_WS, WS_PART, WS_PART_SZ)
        A(f"s_lshl_b32 {s(sT4)}, {s(sG)}, 5")
        A(f"s_lshl_b32 {s(sT0)}, {s(sW)}, 3")
        A(f"s_add_u32 {s(sT4)}, {s(sT4)}, {s(sT0)}")
        A(f"s_mul_i32 {s(sT4)}, {s(sT4)}, 18")
        A(f"s_add_u32 {s(sT4)}, {s(sT4)}, {s(sT3)}")
        A(f"s_lshl_b32 {s(sK)}, {s(sT4)}, 10")
        A(f"s_mov_b32 {s(sC)}, 3277")
        A("v_and_b32 v3, 15, v1")
        A(f"s_lshl_b32 {s(sT0)}, {s(sT2)}, 4")
        A(f"v_add_u32 v3, {s(sT0)}, v3")
        A(f"v_mul_lo_u32 v3, v3, {s(sC)}")
        A("v_lshrrev_b32 v3, 16, v3")
        A("v_lshrrev_b32 v4, 4, v1")
        A(f"s_lshl_b32 {s(sT0)}, {s(sT1)}, 4")
        A(f"v_lshl_add_u32 v4, v4, 2, {s(sT0)}")
        for r in range(4):
            A(f"v_add_u32 v5, {r}, v4")
            A(f"v_mul_lo_u32 v5, v5, {s(sC)}")
            A("v_lshrrev_b32 v5, 16, v5")
            A(f"v_cmp_eq_u32 {s(sMASK+2*r,2)}, v5, v3")
        def setupA():
            A(f"s_add_u32 {s(sT0)}, {s(sG)}, {C_A}")
            A(f"s_lshl_b32 {s(sT0)}, {s(sT0)}, 7")
            A(f"v_mov_b32 v2, {s(sT0)}")
        self.poll(SRD_CNT, setupA, 1, 32, 2)
        self.stamp('cA')
        T = 164
        A("v_lshlrev_b32 v6, 4, v1")
        for k in range(8):
            A(f"buffer_load_dwordx4 {v(T+4*k,4)}, v6, {s(SRD_A,4)}, {s(sK)} offen sc1")
            if k < 7: A(f"s_add_u32 {s(sK)}, {s(sK)}, {18*1024}")
        self.q_epilogue()
        self.stamp('q_epi')
        A("s_waitcnt vmcnt(0)")
        for k in (4, 2, 1):
            for b in range(k):
                for p in range(2):
                    A(f"v_pk_add_f32 {v(T+4*b+2*p,2)}, {v(T+4*b+2*p,2)}, {v(T+4*(b+k)+2*p,2)}")
        A(f"s_lshl_b32 {s(sT0)}, {s(sW)}, 10")
        A(f"s_add_u32 {s(sT0)}, {s(sT0)}, {RED2}")
        A(f"v_add_u32 v3, {s(sT0)}, v6")
        A(f"ds_write_b128 v3, {v(T,4)}")
        A("s_waitcnt lgkmcnt(0)")
        A("s_barrier")
        Lr = A.newlabel('red')
        A(f"s_cmp_lg_u32 {s(sW)}, 0")
        A(f"s_cbranch_scc1 {Lr}")
        A(f"v_add_u32 v3, {RED2}, v6")
        for k in range(4):
            A(f"ds_read_b128 {v(T+4*k,4)}, v3 offset:{k*1024}")
        self.srd(SRD_B, P_WS, WS_KVF, WS_KVF_SZ)
        A(f"s_lshl_b32 {s(sT0)}, {s(sG)}, 14")
        A(f"s_lshr_b32 {s(sT1)}, {s(sR)}, 1")
        A(f"s_lshl_b32 {s(sT1)}, {s(sT1)}, 10")
        A(f"s_add_u32 {s(sT0)}, {s(sT0)}, {s(sT1)}")
        A(f"s_and_b32 {s(sT1)}, {s(sR)}, 1")
        A(f"s_lshl_b32 {s(sT1)}, {s(sT1)}, 3")
        A(f"s_add_u32 {s(sT0)}, {s(sT0)}, {s(sT1)}")
        A("s_waitcnt lgkmcnt(0)")
        for p in range(2):
            A(f"v_pk_add_f32 {v(T+2*p,2)}, {v(T+2*p,2)}, {v(T+4+2*p,2)}")
            A(f"v_pk_add_f32 {v(T+8+2*p,2)}, {v(T+8+2*p,2)}, {v(T+12+2*p,2)}")
        for p in range(2):
            A(f"v_pk_add_f32 {v(T+2*p,2)}, {v(T+2*p,2)}, {v(T+8+2*p,2)}")
        for r in range(4):
            A(f"v_cndmask_b32 v{T+r}, 0, v{T+r}, {s(sMASK+2*r,2)}")
        A(f"v_cvt_pk_bf16_f32 v{T}, v{T}, v{T+1}")
        A(f"v_cvt_pk_bf16_f32 v{T+1}, v{T+2}, v{T+3}")
        A(f"buffer_store_dwordx2 {v(T,2)}, v6, {s(SRD_B,4)}, {s(sT0)} offen sc1")
        A("s_waitcnt vmcnt(0)")
        A(f"s_add_u32 {s(sT0)}, {s(sG)}, {C_B}")
        self.signal(sT0, 4)
        A.label(Lr)
        self.stamp('red_done')
        for t in self.slab_voffset_l(VSLAB4, 3456): A(t)
        self.srd(SRD_W, P_WG, 0, 640 * 3456)
        self.srd(SRD_W2, P_WU, 0, 640 * 3456)
        self.emit_groups(self.w4_groups(0, W4_E1))
        A(f"s_add_u32 {s(sT0)}, {s(sW)}, 4")
        A(f"s_mul_i32 {s(sT0)}, {s(sT0)}, {STAGE}")
        A(f"s_and_b32 {s(sT1)}, {s(sW)}, 1")
        A(f"s_lshl_b32 {s(sT1)}, {s(sT1)}, 1")
        self.tr_addrs(VTR3, s(sT0), perm_sgpr=sT1)
        for mm in range(5):
            for ct in range(4):
                for sec in range(2):
                    A(f"ds_read_b64_tr_b16 {a(mm*16+ct*4+2*sec,2)}, v{VTR3+ct} offset:{mm*4096+sec*2048}")
        A("WAITVM w4 lgkmcnt(0)")
        A("s_barrier")
        self.colsum_part(0, W4_E1, 6, 196)
        def setupB():
            A(f"s_add_u32 {s(sT0)}, {s(sG)}, {C_B}")
            A(f"s_lshl_b32 {s(sT0)}, {s(sT0)}, 7")
            A(f"v_mov_b32 v2, {s(sT0)}")
        A("s_waitcnt lgkmcnt(0)")
        self.poll(SRD_CNT, setupB, 1, 32, 2)
        self.stamp('cB')
        PQ = self.PQ
        self.srd(SRD_A, P_WS, WS_KVF, WS_KVF_SZ)
        A("v_lshlrev_b32 v6, 4, v1")
        A(f"s_lshl_b32 {s(sT0)}, {s(sG)}, 14")
        KV = 164
        order = [0, 8, 1, 2, 9, 10, 3, 4, 11, 12, 5, 6, 13, 14, 7, 15]
        A(f"s_add_u32 {s(sT1)}, {s(sT0)}, 4096")
        A(f"s_add_u32 {s(sT2)}, {s(sT0)}, 8192")
        A(f"s_add_u32 {s(sT3)}, {s(sT0)}, 12288")
        for f in order:
            A(f"buffer_load_dwordx4 {v(KV+4*f,4)}, v6, {s(SRD_A,4)}, {s([sT0,sT1,sT2,sT3][f >> 2])} offen offset:{(f & 3)*1024} sc1")
        NUM, DEN = 96, 116
        plan = [(0, 0, True), (1, 0, True), (1, 4, False), (2, 2, True), (2, 6, False), (3, 4, True), (3, 8, False), (4, 6, True)]
        self.srd(SRD_B, P_WS, WS_O, WS_O_SZ)
        A(f"s_lshl_b32 {s(sT0)}, {s(sR)}, 2")
        A(f"s_add_u32 {s(sT0)}, {s(sT0)}, {s(sW)}")
        A(f"s_mul_i32 {s(sT0)}, {s(sT0)}, {20*1024}")
        A(f"s_mul_i32 {s(sT1)}, {s(sG)}, 5")
        A(f"s_mov_b32 {s(sC)}, 0x358637bd")
        A(f"s_mov_b32 {s(sC+1)}, 0x358637bd")
        done = 0
        for j in range(5):
            fs = [f for f, pl in enumerate(plan) if pl[0] == j]
            done += 2 * len(fs)
            A(f"s_waitcnt vmcnt({16 - done})")
            for f in fs:
                _, boff, first = plan[f]
                A(f"{MF} {v(NUM+4*j,4)}, {v(KV+4*f,4)}, {v(PQ+boff,4)}, {'0' if first else v(NUM+4*j,4)}")
                A(f"{MF} {v(DEN+4*j,4)}, {v(KV+32+4*f,4)}, {v(PQ+boff,4)}, {'0' if first else v(DEN+4*j,4)}")
        for j in range(5):
            for p in range(2):
                A(f"v_pk_add_f32 {v(DEN+4*j+2*p,2)}, {v(DEN+4*j+2*p,2)}, {s(sC,2)}")
            for r in range(4):
                A(f"v_rcp_f32 v{DEN+4*j+r}, v{DEN+4*j+r}")
            A(f"s_add_u32 {s(sT2)}, {s(sT1)}, {j}")
            A(f"s_lshr_b32 {s(sT3)}, {s(sT2)}, 1")
            A(f"s_lshl_b32 {s(sT3)}, {s(sT3)}, 10")
            A(f"s_and_b32 {s(sT2)}, {s(sT2)}, 1")
            A(f"s_lshl_b32 {s(sT2)}, {s(sT2)}, 3")
            A(f"s_add_u32 {s(sT2)}, {s(sT2)}, {s(sT3)}")
            A(f"s_add_u32 {s(sT2)}, {s(sT2)}, {s(sT0)}")
            for p in range(2):
                A(f"v_pk_mul_f32 {v(NUM+4*j+2*p,2)}, {v(NUM+4*j+2*p,2)}, {v(DEN+4*j+2*p,2)}")
            A(f"v_cvt_pk_bf16_f32 v{NUM+4*j}, v{NUM+4*j}, v{NUM+4*j+1}")
            A(f"v_cvt_pk_bf16_f32 v{NUM+4*j+1}, v{NUM+4*j+2}, v{NUM+4*j+3}")
            A(f"buffer_store_dwordx2 {v(NUM+4*j,2)}, v6, {s(SRD_B,4)}, {s(sT2)} offen sc1")
        A("s_waitcnt vmcnt(0)")
        A("s_barrier")
        A(f"s_add_u32 {s(sT0)}, {s(sR)}, {C_O}")
        self.signal(sT0, 4)
        self.stamp('o_sig')
        self.emit_groups(self.w4_groups(W4_E1, W4_E2))

    def slot_tile(self, a_, b_): return (a_*4 + b_)
    def reduce_writes(self, ACC, rels):
        out = []
        for a_ in range(6):
            for b_ in range(4):
                rel = (a_ // 3) * 2 + (b_ >> 1)
                if rel in rels:
                    idx = (a_ % 3) * 2 + (b_ & 1)
                    out.append(f"ds_write_b128 v{self.VRW+rel-1}, {v(ACC + (a_*4+b_)*4, 4)} offset:{idx*1024}")
        return out
    def reduce_setup(self, VRW, VRR):
        A = self.A
        self.VRW, self.VRR = VRW, VRR
        for rel in range(1, 4):
            A(f"s_xor_b32 {s(sT0)}, {s(sW)}, {rel}")
            A(f"s_mul_i32 {s(sT0)}, {s(sT0)}, {3*6144}")
            A(f"s_add_u32 {s(sT0)}, {s(sT0)}, {RED3 + (rel-1)*6144}")
            A(f"v_lshl_add_u32 v{VRW+rel-1}, v1, 4, {s(sT0)}")
        A(f"s_mul_i32 {s(sT0)}, {s(sW)}, {3*6144}")
        A(f"s_add_u32 {s(sT0)}, {s(sT0)}, {RED3}")
        A(f"v_lshl_add_u32 v{VRR}, v1, 4, {s(sT0)}")
    def reduce_finish(self, ACC, TMP):
        A = self.A
        for rel in range(1, 4):
            for idx in range(6):
                A(f"ds_read_b128 {v(TMP + ((rel-1)*6+idx)*4, 4)}, v{self.VRR} offset:{(rel-1)*6144 + idx*1024}")
        for rel in range(1, 4):
            A(f"s_waitcnt lgkmcnt({min(15, 6*(3-rel))})")
            for idx in range(6):
                d = ACC + ((idx // 2)*4 + (idx & 1))*4; t = TMP + ((rel-1)*6+idx)*4
                for p in range(2):
                    A(f"v_pk_add_f32 {v(d+2*p,2)}, {v(d+2*p,2)}, {v(t+2*p,2)}")

    def p3(self):
        A = self.A
        Lend = A.newlabel('p3end')
        A(f"s_cmp_eq_u32 {s(sV3)}, 0")
        A(f"s_cbranch_scc1 {Lend}")
        ACC, XR = 16, 112
        A("v_and_b32 v2, 15, v1")
        A("v_mul_u32_u24 v2, 1280, v2")
        A("v_lshrrev_b32 v3, 4, v1")
        A(f"v_lshl_add_u32 v{VXR}, v3, 3, v2")
        A(f"s_lshr_b32 {s(sT0)}, {s(sW)}, 1")
        A(f"s_mul_i32 {s(sT0)}, {s(sT0)}, 3")
        A(f"s_mul_i32 {s(sT1)}, {s(sR3)}, 6")
        A(f"s_add_u32 {s(sTT)}, {s(sT0)}, {s(sT1)}")
        A(f"s_mul_i32 {s(sT0)}, {s(sTT)}, {16*1280}")
        A(f"s_lshl_b32 {s(sT1)}, {s(sC3)}, 7")
        A(f"s_add_u32 {s(sT0)}, {s(sT0)}, {s(sT1)}")
        A(f"s_and_b32 {s(sT1)}, {s(sW)}, 1")
        A(f"s_lshl_b32 {s(sT1)}, {s(sT1)}, 6")
        A(f"s_add_u32 {s(sXO)}, {s(sT0)}, {s(sT1)}")
        A(f"s_mov_b32 {s(sT0)}, {s(sXO)}")
        for i in range(3):
            for c in range(2):
                A(f"buffer_load_dwordx2 {v(XR+4*i+2*c,2)}, v{VXR}, {s(SRD_X,4)}, {s(sT0)} offen offset:{32*c}")
            if i < 2: A(f"s_add_u32 {s(sT0)}, {s(sT0)}, {16*1280}")
        self.reduce_setup(124, 127)
        self.srd(SRD_A, P_WS, WS_O, WS_O_SZ)
        VA = 128
        A("v_lshlrev_b32 v2, 4, v1")
        A(f"s_lshr_b32 {s(sT0)}, {s(sW)}, 1")
        A(f"s_mul_i32 {s(sT0)}, {s(sT0)}, {3*20*1024}")
        for a_ in range(6):
            if a_ < 3:
                A(f"s_add_u32 {s(sT1)}, {s(sT0)}, {a_*20*1024}")
            else:
                A(f"s_sub_u32 {s(sT1)}, {a_*20*1024}, {s(sT0)}")
                A(f"s_cmp_ge_u32 {s(sT1)}, {3*20*1024}")
            A(f"v_add_u32 v{VA+a_}, {s(sT1)}, v2")
        A(f"s_mul_i32 {s(sK)}, {s(sR3)}, {6*20*1024}")
        A(f"s_mul_i32 {s(sT1)}, {s(sW)}, {5*1024}")
        A(f"s_add_u32 {s(sK)}, {s(sK)}, {s(sT1)}")
        def setup():
            A(f"s_mul_i32 {s(sT0)}, {s(sR3)}, 3")
            A(f"s_lshr_b32 {s(sT0)}, {s(sT0)}, 1")
            A(f"v_add_u32 v2, {s(sT0)}, v1")
            A("v_min_u32 v2, 31, v2")
            A(f"v_add_u32 v2, {C_O}, v2")
            A("v_lshlrev_b32 v2, 7, v2")
        self.poll(SRD_CNT, setup, 2, 8, 2)
        self.stamp('cO')
        OF = 80
        order = [3, 4, 5, 0, 1, 2]
        for a_ in order:
            for mm in range(5):
                A(f"buffer_load_dwordx4 {a(OF+(a_*5+mm)*4,4)}, v{VA+a_}, {s(SRD_A,4)}, {s(sK)} offen offset:{mm*1024 if mm < 4 else 0} sc1"
                  if mm < 4 else
                  f"buffer_load_dwordx4 {a(OF+(a_*5+mm)*4,4)}, v{VA+a_}, {s(SRD_A,4)}, {s(sK3)} offen sc1")
                if a_ == order[0] and mm == 0: A(f"s_add_u32 {s(sK3)}, {s(sK)}, 4096")
        def mm_tile(a_, b_, mm):
            d = ACC + (a_*4+b_)*4
            return f"{MF} {v(d,4)}, {a(mm*16+b_*4,4)}, {a(OF+(a_*5+mm)*4,4)}, {'0' if mm == 0 else v(d,4)}"
        for n, a_ in enumerate((3, 4, 5)):
            A(f"s_waitcnt vmcnt({25 - 5*n})")
            for mm in range(5):
                for b_ in range(4): A(mm_tile(a_, b_, mm))
        main = []
        for n, a_ in enumerate((0, 1, 2)):
            blk = [mm_tile(a_, b_, mm) for mm in range(5) for b_ in (2, 3)]
            main += [f"s_waitcnt vmcnt({10 - 5*n})"] + blk
        wr = self.reduce_writes(ACC, (2, 3))
        for t in weave(main, [([[x] for x in wr], 8, len(main))]): A(t)
        main = [mm_tile(a_, b_, mm) for a_ in range(3) for mm in range(5) for b_ in (0, 1)]
        wr = self.reduce_writes(ACC, (1,))
        for t in weave(main, [([[x] for x in wr], 6, 24)]): A(t)
        self.stamp('p3_mfma')
        A("s_waitcnt lgkmcnt(0)")
        A("s_barrier")
        self.reduce_finish(ACC, 136)
        self.stamp('p3_red')
        T = 136; HR = 148
        self.srd(SRD_B, P_WS, WS_H, WS_H_SZ)
        A(f"s_mul_i32 {s(sT0)}, {s(sTT)}, 20")
        A(f"s_lshl_b32 {s(sT1)}, {s(sC3)}, 1")
        A(f"s_add_u32 {s(sT0)}, {s(sT0)}, {s(sT1)}")
        A(f"s_and_b32 {s(sT1)}, {s(sW)}, 1")
        A(f"s_add_u32 {s(sT0)}, {s(sT0)}, {s(sT1)}")
        A(f"s_lshl_b32 {s(sT1)}, {s(sT0)}, 10")
        A(f"s_lshl_b32 {s(sT2)}, {s(sTT)}, 7")
        A(f"s_add_u32 {s(sT2)}, {s(sT2)}, {WS_ST2}")
        A(f"s_cmp_lt_u32 {s(sTT)}, 128")
        A(f"s_cselect_b32 {s(sT2)}, {s(sT2)}, {OOB}")
        A("v_lshlrev_b32 v4, 4, v1")
        A("v_and_b32 v5, 15, v1")
        A("v_lshlrev_b32 v5, 3, v5")
        A("v_bfe_u32 v6, v1, 4, 1")
        A(f"v_cmp_eq_u32 {s(sMASK,2)}, 1, v6")
        A("v_lshl_add_u32 v5, v6, 2, v5")
        for i in range(3):
            for c in range(2):
                o = ACC + (i*4+c)*4
                for hreg in range(2):
                    x = XR + 4*i + 2*c + hreg
                    A(f"v_lshlrev_b32 v{T}, 16, v{x}")
                    A(f"v_and_b32 v{T+1}, 0xffff0000, v{x}")
                    A(f"v_pk_add_f32 {v(o+2*hreg,2)}, {v(o+2*hreg,2)}, {v(T,2)}")
            o = ACC + i*16
            for k in range(4):
                A(f"v_cvt_pk_bf16_f32 v{HR+4*i+k}, v{o+2*k}, v{o+2*k+1}")
            A(f"buffer_store_dwordx4 {v(HR+4*i,4)}, v4, {s(SRD_B,4)}, {s(sT1)} offen sc1")
            if i < 2: A(f"s_add_u32 {s(sT1)}, {s(sT1)}, {20*1024}")
        for i in range(3):
            o = ACC + i*16
            A(f"v_pk_mul_f32 {v(T+2,2)}, {v(o,2)}, {v(o,2)}")
            A(f"v_pk_add_f32 {v(T,2)}, {v(o,2)}, {v(o+2,2)}")
            A(f"v_pk_fma_f32 {v(T+2,2)}, {v(o+2,2)}, {v(o+2,2)}, {v(T+2,2)}")
            for k in (4, 6):
                A(f"v_pk_add_f32 {v(T,2)}, {v(T,2)}, {v(o+k,2)}")
                A(f"v_pk_fma_f32 {v(T+2,2)}, {v(o+k,2)}, {v(o+k,2)}, {v(T+2,2)}")
            A(f"v_add_f32 v{T}, v{T}, v{T+1}")
            A(f"v_add_f32 v{T+1}, v{T+2}, v{T+3}")
            for sw in ('v_permlane16_swap_b32', 'v_permlane32_swap_b32'):
                A(f"v_mov_b32 v{T+2}, v{T}")
                A(f"v_mov_b32 v{T+3}, v{T+1}")
                A(f"{sw} v{T}, v{T+2}")
                A(f"{sw} v{T+1}, v{T+3}")
                A(f"v_pk_add_f32 {v(T,2)}, {v(T,2)}, {v(T+2,2)}")
            A(f"v_cndmask_b32 v{T+4+i}, v{T}, v{T+1}, {s(sMASK,2)}")
            A("s_mov_b64 exec, 0xffffffff")
            A(f"buffer_atomic_add_f32 v{T+4+i}, v5, {s(SRD_CNT,4)}, {s(sT2)} offen sc1")
            A("s_mov_b64 exec, -1")
            if i < 2:
                A(f"s_add_u32 {s(sT2)}, {s(sT2)}, 128")
                A(f"s_cmp_lt_u32 {s(sT2)}, {WS_ST2 + 2048*8}")
                A(f"s_cselect_b32 {s(sT2)}, {s(sT2)}, {OOB}")
        for k in range(12):
            A(f"v_accvgpr_write_b32 a{AHRES+k}, v{HR+k}")
        A("s_waitcnt vmcnt(0)")
        A("s_barrier")
        A(f"s_add_u32 {s(sT0)}, {s(sR3)}, {C_H}")
        self.signal(sT0, 4)
        A.label(Lend)
        self.stamp('h_sig')

    def p4(self):
        A = self.A
        Lend = A.newlabel('p4end')
        A(f"s_cmp_eq_u32 {s(sV4)}, 0")
        A(f"s_cbranch_scc1 {Lend}")
        ACC = 16; CSR = 160; T = 208
        WF = 0; AF = 64; D = 5
        self.emit_groups(self.w4_groups(W4_E2, 20))
        self.tr_addrs(VTR4, "0")
        self.srd(SRD_A, P_WS, WS_H, WS_H_SZ)
        VA = T + 20
        A("v_lshlrev_b32 v4, 4, v1")
        for i in range(4): A(f"v_add_u32 v{VA+i}, {i*20*1024}, v4")
        A(f"s_lshl_b32 {s(sT0)}, {s(sR4)}, 4")
        A(f"s_lshl_b32 {s(sT1)}, {s(sW)}, 2")
        A(f"s_add_u32 {s(sTT4)}, {s(sT0)}, {s(sT1)}")
        A(f"s_mul_i32 {s(sK)}, {s(sTT4)}, {20*1024}")
        A("v_and_b32 v3, 15, v1")
        A("v_lshlrev_b32 v3, 3, v3")
        A(f"v_mov_b32 v{VA+4}, v3")
        def wreads(buf, m):
            return [f"ds_read_b64_tr_b16 {a(WF+buf*32+(sec*4+ct)*4+2*h,2)}, v{VTR4+ct} offset:{(m % 8)*8192 + sec*4096 + h*2048}"
                    for sec in range(2) for ct in range(4) for h in range(2)]
        for t in wreads(0, 0): A(t)
        A("WAITVM w4 lgkmcnt(0)")
        A("s_barrier")
        self.stamp('w4_landed')
        self.colsum_part(W4_E1, 20, 6, 16)
        A("v_lshrrev_b32 v2, 4, v1")
        A("v_lshlrev_b32 v2, 4, v2")
        A(f"s_lshl_b32 {s(sT0)}, {s(sW)}, 6")
        A(f"v_add_u32 v3, {s(sT0)}, v2")
        A(f"ds_write_b128 v3, {a(ACS,4)}")
        A(f"ds_write_b128 v3, {a(ACS+4,4)} offset:256")
        A("s_waitcnt lgkmcnt(0)")
        A("s_barrier")
        for k in range(8):
            A(f"ds_read_b128 {v(CSR+4*k,4)}, v2 offset:{k*64}")
        self.stamp('colsum')
        def setup():
            A(f"s_lshl_b32 {s(sT0)}, {s(sR4)}, 4")
            A(f"s_mul_i32 {s(sT1)}, {s(sT0)}, 43")
            A(f"s_lshr_b32 {s(sT1)}, {s(sT1)}, 8")
            A(f"s_add_u32 {s(sT0)}, {s(sT0)}, 15")
            A(f"s_mul_i32 {s(sT0)}, {s(sT0)}, 43")
            A(f"s_lshr_b32 {s(sT0)}, {s(sT0)}, 8")
            A(f"v_add_u32 v2, {s(sT1)}, v1")
            A(f"v_min_u32 v2, {s(sT0)}, v2")
            A(f"v_add_u32 v2, {C_H}, v2")
            A("v_lshlrev_b32 v2, 7, v2")
        self.poll(SRD_CNT, setup, 4, 10, 2)
        self.stamp('cH')
        def aload_groups(m):
            gs = [[f"buffer_load_dwordx4 {a(AF+(m % D)*16+4*i,4)}, v{VA+i}, {s(SRD_A,4)}, {s(sK)} offen sc1 ; @a{m}"] for i in range(4)]
            gs[-1].append(f"s_add_u32 {s(sK)}, {s(sK)}, 1024")
            return gs
        NPRE = 3
        for m in range(NPRE): self.emit_groups(aload_groups(m))
        MEAN, RS2 = 192, 200
        A(f"s_lshl_b32 {s(sT0)}, {s(sTT4)}, 7")
        A(f"s_add_u32 {s(sT0)}, {s(sT0)}, {WS_ST2}")
        for i in range(4):
            A(f"buffer_load_dwordx2 {v(T+2*i,2)}, v{VA+4}, {s(SRD_CNT,4)}, {s(sT0)} offen offset:{i*128} sc1 ; @stat")
        def stat_math():
            o = []
            for i in range(4):
                o += [f"v_mul_f32 v{MEAN+2*i}, {1.0/640!r}, v{T+2*i}", f"v_mul_f32 v{T+2*i+1}, {1.0/640!r}, v{T+2*i+1}"]
            for i in range(4): o.append(f"v_fma_f32 v{T+2*i+1}, -v{MEAN+2*i}, v{MEAN+2*i}, v{T+2*i+1}")
            for i in range(4): o.append(f"v_max_f32 v{T+2*i+1}, 0, v{T+2*i+1}")
            for i in range(4): o.append(f"v_add_f32 v{T+2*i+1}, 0x3727c5ac, v{T+2*i+1}")
            for i in range(4): o.append(f"v_rcp_f32 v{RS2+2*i}, v{T+2*i+1}")
            return o
        P = Pacer(A)
        P.slack = 0.8
        w5a = self.w5_groups(0, 5, 'w5a')
        w5b = self.w5_groups(5, 10, 'w5b', region_a=True)
        for m in range(NPRE, 20):
            P.push(aload_groups(m), 19, None if m < D else f'it{m-D}', f'a{m}')
            if m >= 12 and m < 17: P.push(w5a[(m-12)*4:(m-11)*4], 19, 'w5ok', 'w5a')
        P.push(w5b, 19, 'w5a_read', 'w5b')
        A(f"s_mul_i32 {s(sT0)}, {s(sW)}, 20480")
        A(f"s_and_b32 {s(sT1)}, {s(sW)}, 1")
        A(f"s_lshl_b32 {s(sT1)}, {s(sT1)}, 1")
        self.tr_addrs(VTR3, s(sT0), perm_sgpr=sT1)
        def w5a_reads(mm):
            return [f"ds_read_b64_tr_b16 {a(W5A+mm*16+ct*4+2*h,2)}, v{VTR3+ct} offset:{mm*4096 + h*2048}" for ct in range(4) for h in range(2)]
        for m in range(20):
            buf = m & 1
            P.flush(f'a{m}')
            self.lstamp_pre(f'p4k{m}')
            A(f"WAITVM a{m} lgkmcnt(0)")
            self.lstamp_post()
            if m == 10:
                A("s_barrier")
                P.event('w5ok')
            side = []
            if m + 1 < 20:
                if (m + 1) in (8, 16):
                    side += [f"v_add_u32 v{VTR4+ct}, 65536, v{VTR4+ct}" for ct in range(4)]
                side += wreads(buf ^ 1, m + 1)
            if m == 3:
                A("WAITVM stat")
                side += stat_math()
            if m == 16:
                P.flush('w5a')
                A("WAITVM w5a")
            if m in (16, 17):
                for mm in (range(0, 3) if m == 16 else range(3, 5)): side += w5a_reads(mm)
            if m == 18: P.event('w5a_read')
            k = 0
            for n in range(32):
                i, sec, ct = n // 8, (n // 4) % 2, n % 4
                d = ACC + n*4
                P.emit(f"{MF} {v(d,4)}, {a(WF+buf*32+(sec*4+ct)*4,4)}, {a(AF+(m % D)*16+4*i,4)}, {'0' if m == 0 else v(d,4)}", feed=True)
                want = min(len(side), n + 1) if len(side) <= 28 else min(len(side), ((n + 1) * len(side) + 27) // 28)
                while k < want:
                    P.emit(side[k], feed=False); k += 1
            P.event(f'it{m}')
        P.flush('w5b')
        self.stamp('p4_loop')
        self.srd(SRD_B, P_WS, WS_HH, WS_HH_SZ)
        A(f"s_mul_i32 {s(sT0)}, {s(sTT4)}, 54")
        A(f"s_lshl_b32 {s(sT1)}, {s(sS4)}, 1")
        A(f"s_add_u32 {s(sT0)}, {s(sT0)}, {s(sT1)}")
        A(f"s_lshl_b32 {s(sK)}, {s(sT0)}, 10")
        A("v_lshlrev_b32 v6, 4, v1")
        body = []
        for i in range(4):
            for pair in range(2):
                P = T + 8 + ((i*2+pair) & 1) * 4
                for c in range(2):
                    ct = 2*pair + c
                    g = ACC + (i*8 + ct)*4; u = ACC + (i*8 + 4 + ct)*4
                    for p in range(2):
                        body.append(f"v_pk_fma_f32 {v(g+2*p,2)}, {v(CSR+4*ct+2*p,2)}, {v(MEAN+2*i,2)}, {v(g+2*p,2)} op_sel_hi:[1,0,1] neg_lo:[1,0,0] neg_hi:[1,0,0]")
                        body.append(f"v_pk_fma_f32 {v(u+2*p,2)}, {v(CSR+16+4*ct+2*p,2)}, {v(MEAN+2*i,2)}, {v(u+2*p,2)} op_sel_hi:[1,0,1] neg_lo:[1,0,0] neg_hi:[1,0,0]")
                    for r in range(4):
                        body.append(f"v_max_f32 v{g+r}, 0, v{g+r}")
                    for p in range(2):
                        body.append(f"v_pk_mul_f32 {v(u+2*p,2)}, {v(u+2*p,2)}, {v(RS2+2*i,2)} op_sel_hi:[1,0]")
                    for p in range(2):
                        body.append(f"v_pk_mul_f32 {v(g+2*p,2)}, {v(g+2*p,2)}, {v(u+2*p,2)}")
                    body.append(f"v_cvt_pk_bf16_f32 v{P+2*c}, v{g}, v{g+1}")
                    body.append(f"v_cvt_pk_bf16_f32 v{P+2*c+1}, v{g+2}, v{g+3}")
                body.append(f"buffer_store_dwordx4 {v(P,4)}, v6, {s(SRD_B,4)}, {s(sK)} offen offset:{pair*1024} sc1 ; @hh")
            if i < 3: body.append(f"s_add_u32 {s(sK)}, {s(sK)}, {54*1024}")
        for t in body: A(t)
        A("s_waitcnt vmcnt(0)")
        A("s_barrier")
        A(f"s_add_u32 {s(sT0)}, {s(sR4)}, {C_HH}")
        self.signal(sT0, 4)
        self.stamp('hh_sig')
        Lj = A.newlabel('p4join')
        A(f"s_branch {Lj}")
        A.label(Lend)
        A("s_waitcnt vmcnt(0)")
        A("s_barrier")
        self.emit_groups(self.w5_groups(0, 5, 'w5a'))
        A(f"s_mul_i32 {s(sT0)}, {s(sW)}, 20480")
        A(f"s_and_b32 {s(sT1)}, {s(sW)}, 1")
        A(f"s_lshl_b32 {s(sT1)}, {s(sT1)}, 1")
        self.tr_addrs(VTR3, s(sT0), perm_sgpr=sT1)
        A("s_waitcnt vmcnt(0)")
        for mm in range(5):
            for ct in range(4):
                for h in range(2):
                    A(f"ds_read_b64_tr_b16 {a(W5A+mm*16+ct*4+2*h,2)}, v{VTR3+ct} offset:{mm*4096 + h*2048}")
        A("s_waitcnt lgkmcnt(0)")
        self.emit_groups(self.w5_groups(5, 10, 'w5b', region_a=True))
        A("s_waitcnt vmcnt(0)")
        A.label(Lj)

    def p5(self):
        A = self.A
        Lend = A.newlabel('p5end')
        A(f"s_cmp_eq_u32 {s(sV3)}, 0")
        A(f"s_cbranch_scc1 {Lend}")
        ACC = 16
        AF = 112; D = 8
        self.emit_groups(self.w5_groups(10, 14, 'w5c'))
        for ct in range(4): A(f"v_add_u32 v{VTR4+ct}, 81920, v{VTR3+ct}")
        def w5reg(mm): return W5A + mm*16 if mm < 5 else (mm - 5)*16
        def w5reads(m0, m1):
            base = VTR4 if m0 >= 10 else VTR3
            for mm in range(m0, m1):
                for ct in range(4):
                    for h in range(2):
                        A(f"ds_read_b64_tr_b16 {a(w5reg(mm)+ct*4+2*h,2)}, v{base+ct} offset:{(mm-m0)*4096 + h*2048}")
        w5reads(5, 10)
        self.reduce_setup(232, 235)
        self.srd(SRD_A, P_WS, WS_HH, WS_HH_SZ)
        VA = 236
        A("v_lshlrev_b32 v2, 4, v1")
        A(f"s_lshr_b32 {s(sT0)}, {s(sW)}, 1")
        A(f"s_mul_i32 {s(sT0)}, {s(sT0)}, {3*54*1024}")
        for a_ in range(6):
            if a_ < 3: A(f"s_add_u32 {s(sT1)}, {s(sT0)}, {a_*54*1024}")
            else: A(f"s_sub_u32 {s(sT1)}, {a_*54*1024}, {s(sT0)}")
            A(f"v_add_u32 v{VA+a_}, {s(sT1)}, v2")
        A(f"s_mul_i32 {s(sT0)}, {s(sR3)}, {6*54}")
        A(f"s_mul_i32 {s(sT2)}, {s(sW)}, 14")
        A(f"s_add_u32 {s(sT0)}, {s(sT0)}, {s(sT2)}")
        A(f"s_lshl_b32 {s(sWA)}, {s(sT0)}, 10")
        A("WAITVM w5c")
        w5reads(10, 14)
        A("s_waitcnt lgkmcnt(0)")
        def setup():
            A(f"s_mul_i32 {s(sT0)}, {s(sR3)}, 6")
            A(f"s_lshr_b32 {s(sT1)}, {s(sT0)}, 4")
            A(f"s_add_u32 {s(sT0)}, {s(sT0)}, 5")
            A(f"s_min_u32 {s(sT0)}, {s(sT0)}, 127")
            A(f"s_lshr_b32 {s(sT0)}, {s(sT0)}, 4")
            A(f"v_add_u32 v2, {s(sT1)}, v1")
            A(f"v_min_u32 v2, {s(sT0)}, v2")
            A(f"v_add_u32 v2, {C_HH}, v2")
            A("v_lshlrev_b32 v2, 7, v2")
        self.stamp('w5_regs')
        self.poll(SRD_CNT, setup, 2, 27, 2)
        self.stamp('cHH')
        A(f"s_mul_i32 {s(sWB)}, {s(sW)}, 14")
        def aload_groups(n):
            ps, mm = divmod(n, 14)
            a0 = 3 if ps == 0 else 0
            pre = []
            if mm == 0: pre.append(f"s_mov_b32 {s(sK)}, {s(sWA)}")
            so = sK
            if mm >= 12:
                pre += [f"s_add_u32 {s(sK2)}, {s(sWB)}, {mm}", f"s_cmp_lt_u32 {s(sK2)}, 54",
                        f"s_cselect_b32 {s(sK2)}, {s(sK)}, {OOB}"]
                so = sK2
            gs = [[f"buffer_load_dwordx4 {v(AF+(n % D)*12+4*i,4)}, v{VA+a0+i}, {s(SRD_A,4)}, {s(so)} offen sc1 ; @b{n}"] for i in range(3)]
            gs[0] = pre + gs[0]
            gs[-1].append(f"s_add_u32 {s(sK)}, {s(sK)}, 1024")
            return gs
        NPRE = 6
        for n in range(NPRE): self.emit_groups(aload_groups(n))
        P = Pacer(A)
        P.slack = 0.6
        for n in range(NPRE, 28):
            P.push(aload_groups(n), 19, None if n < D else f'it{n-D}', f'b{n}')
        wr1 = self.reduce_writes(ACC, (2, 3))
        for n in range(28):
            ps, mm = divmod(n, 14)
            a0 = 3 if ps == 0 else 0
            P.flush(f'b{n}')
            A(f"WAITVM b{n}")
            k = 0
            for i in range(3):
                for b_ in (2, 3, 0, 1):
                    d = ACC + ((a0+i)*4+b_)*4
                    P.emit(f"{MF} {v(d,4)}, {a(w5reg(mm)+b_*4,4)}, {v(AF+(n % D)*12+4*i,4)}, {'0' if mm == 0 else v(d,4)}")
                    k += 1
                    if k == 6 and ps == 1 and 1 <= mm <= 12: P.emit(wr1[mm-1], feed=False)
            P.event(f'it{n}')
        self.stamp('p5_mfma')
        for t in self.reduce_writes(ACC, (1,)): A(t)
        self.srd(SRD_B, P_OUT, 0, 2048 * 1280)
        A("s_waitcnt lgkmcnt(0)")
        A("s_barrier")
        self.reduce_finish(ACC, 112)
        self.stamp('p5_red')
        T = 200
        A(f"s_mov_b32 {s(sT0)}, {s(sXO)}")
        for i in range(3):
            for c in range(2):
                o = ACC + (i*4+c)*4
                for hreg in range(2):
                    A(f"v_accvgpr_read_b32 v{T+2}, a{AHRES + 4*i + 2*c + hreg}")
                    A(f"v_lshlrev_b32 v{T}, 16, v{T+2}")
                    A(f"v_and_b32 v{T+1}, 0xffff0000, v{T+2}")
                    A(f"v_pk_add_f32 {v(o+2*hreg,2)}, {v(o+2*hreg,2)}, {v(T,2)}")
                A(f"v_cvt_pk_bf16_f32 v{o}, v{o}, v{o+1}")
                A(f"v_cvt_pk_bf16_f32 v{o+1}, v{o+2}, v{o+3}")
                A(f"buffer_store_dwordx2 {v(o,2)}, v{VXR}, {s(SRD_B,4)}, {s(sT0)} offen offset:{32*c}" + (" sc1" if 'outsc1' in self.exp else " nt" if 'outnt' in self.exp else ""))
            if i < 2: A(f"s_add_u32 {s(sT0)}, {s(sT0)}, {16*1280}")
        A.label(Lend)

    def finish(self):
        A = self.A
        if self.prof:
            A("s_waitcnt vmcnt(0)")
            self.stamp('end')
            self.dump_stamps()
        if 'hdbg' in self.exp:
            A("s_waitcnt vmcnt(0)")
            self.stamp('end')
            self.hreport()
        A.label("L_end")
        A("s_endpgm")

    def build(self):
        self.prologue()
        self.p1()
        if not getattr(self, 'early_exit', False):
            self.p2()
            self.p3()
            self.p4()
            self.p5()
            self.finish()
        else:
            self.A.label("L_end")
            self.A("s_endpgm")
        n = self.A.fix_hazards()
        hdr = open('cdna_kernels/' + NAME + '.s.ref').read().split('; Override launch')[0]
        out = hdr
        out += "; Override launch geometry by editing the next line.\n"
        out += f"; @launch grid=(256,1,1) block=(256,1,1) lds={LDS_BYTES}\n"
        out += '.amdgcn_target "amdgcn-amd-amdhsa--gfx950"\n.text\n'
        out += f".globl {KNAME}\n.p2align 8\n.type {KNAME},@function\n{KNAME}:\n"
        out += self.A.text()
        out += f""".section .rodata,"a"
.p2align 6
.amdhsa_kernel {KNAME}
  .amdhsa_next_free_vgpr 512
  .amdhsa_next_free_sgpr 102
  .amdhsa_accum_offset 256
  .amdhsa_group_segment_fixed_size 0
  .amdhsa_kernarg_size 80
  .amdhsa_user_sgpr_count 2
  .amdhsa_user_sgpr_kernarg_segment_ptr 1
  .amdhsa_system_sgpr_workgroup_id_x 1
.end_amdhsa_kernel
"""
        return out, n

sTT4 = 81
sRH2 = 76

def issued_at_zero(sig):
    return 99

if __name__ == '__main__':
    dbg = '--dbg' in sys.argv
    out = [a for a in sys.argv[1:] if not a.startswith('--')]
    g = G(dbg=dbg, prof='--prof' in sys.argv, exp=next((a.split('=')[1] for a in sys.argv if a.startswith('--exp=')), ''))
    txt, n = g.build()
    path = out[0] if out else 'k.s'
    open(path, 'w').write(txt)
    if g.prof: json.dump(g.stamps, open(path + '.stamps', 'w'))
    print('wrote', path, 'nops inserted', n, 'lines', txt.count('\n'))
```

```python
import sys, json
from asmlib import *

NAME = 'sequential_preLN__linear_attn_block__glu_gated_reglu__prompt'
KNAME = NAME + '_kernel'

WS_CNT, WS_CNT_SZ = 0x0, 0x8000
WS_ST2 = 0x4000
WS_KVF, WS_KVF_SZ = 0x10000, 8 * 16384
WS_HST, WS_HST_SZ = 0x40000, 128 * 20 * 128
WS_PART, WS_PART_SZ = 0x100000, 8 * 32 * 18 * 1024
WS_O, WS_O_SZ = 0x600000, 128 * 20 * 1024
WS_H, WS_H_SZ = 0x900000, 128 * 20 * 1024
WS_HH, WS_HH_SZ = 0xC00000, 128 * 54 * 1024
WS_DBG, WS_DBG_SZ = 0x1400000, 0x1000000
C_A, C_B, C_O, C_H, C_HH = 0, 8, 16, 48, 72
NZERO = 32
OOB = 0x7ff00000

JOBS = [(0,0),(0,1),(1,0),(1,1),(1,2),(2,1),(2,2),(2,3),(3,2),(3,3),(3,4),(4,3),(4,4)] + [(i,5) for i in range(5)]

SRD_X, SRD_W, SRD_W2, SRD_A, SRD_B, SRD_CNT, SRD_T, SRD_DBG = 4, 8, 12, 16, 20, 24, 28, 32
P_X, P_WQKV, P_WO, P_WG, P_WU, P_WD, P_OUT, P_DBG, P_WS = 40, 42, 44, 48, 50, 52, 54, 56, 58
sK2, sK3 = 46, 47
sW, sR, sG, sRHO, sXCD, sJ = 60, 61, 62, 63, 64, 65
sT0, sT1, sT2, sT3, sT4, sT5 = 66, 67, 68, 69, 70, 71
sWA, sWB, sK, sLD = 72, 73, 74, 75
sROT = 76
sMASK = 82
sC = 92
sC2 = 90
sC3, sR3, sV3, sR4, sS4, sV4, sTT, sXO = 94, 95, 96, 97, 98, 99, 100, 101
VSL = 252
VSLAB4, VXR = 8, 15
VTR3, VTR4 = 244, 248
AHRES = 240
AZERO = 253

LDS_BYTES = 163840
STAGE = 20480
def slot_of(sig): return (sig + 4) % 8
FR = 3 * STAGE
CS = FR + 22528
ST = CS + 1024
RED2 = 73728
RED3 = 90112
W4_E1, W4_E2 = 9, 11
W5A = 144
ACS = 232
MF = "v_mfma_f32_16x16x32_bf16"
LOG2E = 1.4426950408889634

def f32bits(x):
    import struct
    return struct.unpack('<I', struct.pack('<f', x))[0]

class G:
    def __init__(self, stop=None, dbg=False, prof=False, exp=''):
        self.exp = exp
        self.A = Asm(); self.stop = stop; self.dbg = dbg; self.prof = prof
        self.stamps = []

    def stamp(self, name):
        if 'hdbg' in self.exp:
            self.hstamp(name); return
        if not self.prof: return
        A = self.A
        i = len(self.stamps); self.stamps.append(name)
        A("s_memrealtime s[36:37]")
        A("s_memtime s[38:39]")
        A("v_accvgpr_read_b32 v7, a252" if i else "v_mov_b32 v7, 0")
        A("s_waitcnt lgkmcnt(0)")
        A(f"v_writelane_b32 v7, s36, {i}")
        A("v_accvgpr_write_b32 a252, v7")
        A("v_accvgpr_read_b32 v7, a254" if i else "v_mov_b32 v7, 0")
        A(f"v_writelane_b32 v7, s38, {i}")
        A("v_accvgpr_write_b32 a254, v7")

    HSTAMPS = ['start', 'x_landed', 'normed', 'p1a_loop', 'p1b_loop', 'cA', 'cB', 'o_sig', 'cO', 'h_sig', 'cH', 'p4_loop', 'cHH', 'p5_mfma', 'end']
    def hstamp(self, name):
        if name not in self.HSTAMPS: return
        A = self.A
        i = self.HSTAMPS.index(name)
        A("s_memrealtime s[36:37]")
        A("v_accvgpr_read_b32 v7, a252" if i else "v_mov_b32 v7, 0")
        A("s_waitcnt lgkmcnt(0)")
        A(f"v_writelane_b32 v7, s36, {i}")
        A("v_accvgpr_write_b32 a252, v7")
    def hreport(self):
        A = self.A
        L = A.newlabel('noh')
        A(f"s_cmp_lg_u32 {s(sW)}, 0")
        A(f"s_cbranch_scc1 {L}")
        A("v_accvgpr_read_b32 v7, a252")
        A("v_not_b32 v6, v7")
        A("v_cmp_eq_u32 vcc, 0, v1")
        A("v_cndmask_b32 v7, v7, v6, vcc")
        A("v_lshlrev_b32 v2, 2, v1")
        A("v_add_u32 v2, 4, v2")
        A("s_mov_b64 exec, 0x7fff")
        A(f"buffer_atomic_umax v7, v2, {s(SRD_DBG,4)}, 0 offen sc1")
        A("s_mov_b64 exec, -1")
        A.label(L)

    def lstamp_pre(self, name):
        if not (self.prof and 'fine' in self.exp): return
        self.A("s_memrealtime s[36:37]")
        self._ls = name
    def lstamp_post(self):
        if not (self.prof and 'fine' in self.exp): return
        i = len(self.stamps); self.stamps.append(self._ls)
        self.A("v_accvgpr_read_b32 v7, a252")
        self.A(f"v_writelane_b32 v7, s36, {i}")
        self.A("v_accvgpr_write_b32 a252, v7")

    def dump_stamps(self):
        A = self.A
        L = A.newlabel('nost')
        A(f"s_cmp_lg_u32 {s(sW)}, 0")
        A(f"s_cbranch_scc1 {L}")
        self.srd(SRD_T, P_WS, WS_DBG + 0x800000, 0x20000)
        A("v_accvgpr_read_b32 v7, a252")
        A("v_lshlrev_b32 v2, 2, v1")
        A(f"s_lshl_b32 {s(sT0)}, s2, 8")
        A(f"buffer_store_dword v7, v2, {s(SRD_T,4)}, {s(sT0)} offen")
        A("v_accvgpr_read_b32 v6, a254")
        A(f"s_add_u32 {s(sT0)}, {s(sT0)}, 0x10000")
        A(f"buffer_store_dword v6, v2, {s(SRD_T,4)}, {s(sT0)} offen")
        A.label(L)

    def srd_l(self, dst, ptr, off, size):
        out = []
        if off:
            out += [f"s_add_u32 {s(dst)}, {s(ptr)}, {off}", f"s_addc_u32 {s(dst+1)}, {s(ptr+1)}, 0"]
        else:
            out += [f"s_mov_b32 {s(dst)}, {s(ptr)}", f"s_mov_b32 {s(dst+1)}, {s(ptr+1)}"]
        out += [f"s_mov_b32 {s(dst+2)}, {size}", f"s_mov_b32 {s(dst+3)}, 0x20000"]
        return out
    def srd(self, dst, ptr, off, size):
        for t in self.srd_l(dst, ptr, off, size): self.A(t)

    def prologue(self):
        A = self.A
        A("s_cmp_ge_u32 s2, 256")
        A("s_cbranch_scc1 L_end")
        A("s_load_dwordx16 s[40:55], s[0:1], 0")
        A("s_load_dwordx4 s[56:59], s[0:1], 64")
        A("v_and_b32 v1, 63, v0")
        self.stamp('start')
        A("v_lshrrev_b32 v2, 6, v0")
        A(f"s_and_b32 {s(sXCD)}, s2, 7")
        A(f"v_readfirstlane_b32 {s(sW)}, v2")
        A(f"s_lshr_b32 {s(sJ)}, s2, 3")
        A(f"s_and_b32 {s(sRHO)}, {s(sJ)}, 7")
        A(f"s_lshr_b32 {s(sT0)}, {s(sXCD)}, 1")
        A(f"s_lshl_b32 {s(sT0)}, {s(sT0)}, 3")
        A(f"s_add_u32 {s(sR)}, {s(sT0)}, {s(sRHO)}")
        A(f"s_and_b32 {s(sT0)}, {s(sXCD)}, 1")
        A(f"s_lshl_b32 {s(sT0)}, {s(sT0)}, 2")
        A(f"s_lshr_b32 {s(sT1)}, {s(sJ)}, 3")
        A(f"s_add_u32 {s(sG)}, {s(sT0)}, {s(sT1)}")
        A(f"s_cmp_ge_u32 {s(sRHO)}, 5")
        A(f"s_cselect_b32 {s(sT0)}, 5, 0")
        A(f"s_sub_u32 {s(sRHO)}, {s(sRHO)}, {s(sT0)}")
        A(f"s_lshl_b32 {s(sRHO)}, {s(sRHO)}, 1")
        if 'rot0' in self.exp: A(f"s_mov_b32 {s(sRHO)}, 0")

    def code_prefetch(self):
        A = self.A
        A("s_getpc_b64 s[36:37]")
        A.label("L_pc0")
        A(f"s_lshl_b32 {s(sT0)}, {s(sJ)}, 2")
        A(f"s_add_u32 {s(sT0)}, {s(sT0)}, {s(sW)}")
        A(f"s_lshl_b32 {s(sT0)}, {s(sT0)}, 10")
        A(f"s_min_u32 {s(sT0)}, {s(sT0)}, L_end-L_pc0-1024")
        A(f"v_lshl_add_u32 v6, v1, 4, {s(sT0)}")
        A("global_load_dwordx4 a[244:247], v6, s[36:37]")

    def weight_prefetch(self, late=False):
        A = self.A
        if late:
            L = A.newlabel('nopf')
            A(f"s_cmp_eq_u32 {s(sW)}, 0")
            A(f"s_cbranch_scc1 {L}")
            for rep in range(2):
                A(f"s_mul_i32 {s(sT0)}, s2, 3")
                A(f"s_add_u32 {s(sT0)}, {s(sT0)}, {s(sW)}")
                A(f"s_add_u32 {s(sT0)}, {s(sT0)}, {768*rep - 1}" if rep else f"s_sub_u32 {s(sT0)}, {s(sT0)}, 1")
                self._pf_one(nocount=True)
            A.label(L)
            return
        A(f"s_lshl_b32 {s(sT0)}, s2, 2")
        A(f"s_add_u32 {s(sT0)}, {s(sT0)}, {s(sW)}")
        self._pf_one()

    def page_touch(self, wave_only=None):
        A = self.A
        L = A.newlabel('notouch')
        if wave_only is not None:
            A(f"s_cmp_lg_u32 {s(sW)}, {wave_only}")
            A(f"s_cbranch_scc1 {L}")
        A("v_lshlrev_b32 v6, 20, v1")
        A("s_mov_b64 exec, 0xfffff")
        A(f"global_load_dword a250, v6, s[{P_WS}:{P_WS+1}] ; @nocount")
        A("s_mov_b64 exec, 7")
        A(f"global_load_dword a250, v6, s[{P_OUT}:{P_OUT+1}] ; @nocount")
        A("s_mov_b64 exec, -1")
        A.label(L)

    def wqkv_prefetch(self):
        A = self.A
        A(f"s_lshl_b32 {s(sT0)}, s2, 2")
        A(f"s_add_u32 {s(sT0)}, {s(sT0)}, {s(sW)}")
        A(f"s_mul_i32 {s(sT0)}, {s(sT0)}, {19*128}")
        A(f"v_lshl_add_u32 v6, v1, 7, {s(sT0)}")
        A(f"v_min_u32 v6, {640*3840 - 128}, v6")
        A("s_mov_b64 exec, 0x7ffff")
        A(f"global_load_dword a249, v6, s[{P_WQKV}:{P_WQKV+1}]")
        A("s_mov_b64 exec, -1")

    def _pf_one(self, nocount=False):
        A = self.A
        A(f"s_mov_b32 s36, {s(P_WO)}")
        A(f"s_mov_b32 s37, {s(P_WO+1)}")
        A(f"s_mov_b32 {s(sT1)}, {640*1280 - 128}")
        for lo, ptr, size in ((100, P_WG, 640*3456), (370, P_WU, 640*3456), (640, P_WD, 1728*1280)):
            A(f"s_cmp_ge_u32 {s(sT0)}, {lo}")
            A(f"s_cselect_b32 s36, {s(ptr)}, s36")
            A(f"s_cselect_b32 s37, {s(ptr+1)}, s37")
            A(f"s_cselect_b32 {s(sT1)}, {size - 128}, {s(sT1)}")
        A(f"s_mov_b32 {s(sT2)}, 0")
        for lo in (100, 370, 640):
            A(f"s_cmp_ge_u32 {s(sT0)}, {lo}")
            A(f"s_cselect_b32 {s(sT2)}, {lo}, {s(sT2)}")
        A(f"s_sub_u32 {s(sT0)}, {s(sT0)}, {s(sT2)}")
        A(f"s_lshl_b32 {s(sT0)}, {s(sT0)}, 13")
        A(f"v_lshl_add_u32 v6, v1, 7, {s(sT0)}")
        A(f"v_min_u32 v6, {s(sT1)}, v6")
        A("global_load_dword a248, v6, s[36:37]" + (" ; @nocount" if nocount else ""))

    def zero_store(self):
        A = self.A
        L = A.newlabel('nz')
        A(f"s_cmp_ge_u32 s2, {NZERO}")
        A(f"s_cbranch_scc1 {L}")
        A(f"s_cmp_lg_u32 {s(sW)}, 3")
        A(f"s_cbranch_scc1 {L}")
        self.srd(SRD_CNT, P_WS, WS_CNT, WS_CNT_SZ)
        A("v_lshlrev_b32 v2, 4, v1")
        A(f"s_lshl_b32 {s(sT5)}, s2, 10")
        for i in range(4): A(f"v_mov_b32 v{4+i}, 0")
        A(f"buffer_store_dwordx4 v[4:7], v2, {s(SRD_CNT,4)}, {s(sT5)} offen sc1 ; @nocount")
        A.label(L)

    def zero_report(self):
        A = self.A
        L = A.newlabel('nzr')
        A(f"s_cmp_ge_u32 s2, {NZERO}")
        A(f"s_cbranch_scc1 {L}")
        A(f"s_cmp_lg_u32 {s(sW)}, 3")
        A(f"s_cbranch_scc1 {L}")
        A("v_mov_b32 v4, 1")
        A("v_mov_b32 v2, 0")
        A("s_mov_b64 exec, 1")
        A(f"buffer_atomic_add v4, v2, {s(SRD_DBG,4)}, 0 offen sc1 ; @nocount")
        A("s_mov_b64 exec, -1")
        A.label(L)

    def poll(self, srd, voff_setup, nlanes, target, tmp, barrier=True):
        A = self.A
        Lskip, Lp, Lgot = A.newlabel('pskip'), A.newlabel('poll'), A.newlabel('got')
        A(f"s_cmp_lg_u32 {s(sW)}, 0")
        A(f"s_cbranch_scc1 {Lskip}")
        voff_setup()
        A(f"s_mov_b64 exec, {(1 << nlanes) - 1}")
        A(f"s_mov_b32 {s(sT5)}, 0")
        A.label(Lp)
        A(f"buffer_load_dword v{tmp+1}, v{tmp}, {s(srd,4)}, 0 offen sc1 ; @nocount")
        A(f"s_add_u32 {s(sT5)}, {s(sT5)}, 1")
        A("s_waitcnt vmcnt(0)")
        A(f"v_cmp_gt_u32 vcc, {target}, v{tmp+1}")
        A(f"s_cbranch_vccz {Lgot}")
        A(f"s_cmp_lt_u32 {s(sT5)}, 0x40000")
        A(f"s_cbranch_scc1 {Lp}")
        A.label(Lgot)
        A("s_mov_b64 exec, -1")
        A.label(Lskip)
        if barrier: A("s_barrier")

    def signal(self, cidx_sgpr, tmp, wave=0):
        A = self.A
        L = A.newlabel('sig')
        A(f"s_cmp_lg_u32 {s(sW)}, {wave}")
        A(f"s_cbranch_scc1 {L}")
        A(f"s_lshl_b32 {s(sT5)}, {s(cidx_sgpr)}, 7")
        A(f"v_mov_b32 v{tmp}, {s(sT5)}")
        A(f"v_mov_b32 v{tmp+1}, 1")
        A("s_mov_b64 exec, 1")
        A(f"buffer_atomic_add v{tmp+1}, v{tmp}, {s(SRD_CNT,4)}, 0 offen sc1 ; @nocount")
        A("s_mov_b64 exec, -1")
        A.label(L)

    def p1(self):
        A = self.A
        XF = 16
        ACK, ACV = 96, 116
        INIT, SUM, GRAM, ONES = 136, 140, 144, 148
        KF = 152
        VTRW = 232
        VOW = 250; VOX = 255; VXA = 10
        VX = 240
        A(f"s_mov_b32 {s(sC2)}, 2048")
        A("v_lshrrev_b32 v2, 3, v1")
        A("v_and_b32 v3, 6, v2")
        A("v_and_b32 v4, 7, v1")
        A("v_xor_b32 v3, v3, v4")
        A("v_lshlrev_b32 v3, 4, v3")
        A("v_mul_u32_u24 v2, 1280, v2")
        A(f"v_add3_u32 v{VX}, v2, v3, {s(sC2)}")
        A(f"v_add_u32 v{VX+1}, {8*1280 - 1024}, v{VX}")
        A(f"v_subrev_u32 v{VX+2}, {2048 - 128}, v{VX}")
        A(f"v_add_u32 v{VX+3}, {8*1280 + 128 - 3072}, v{VX}")
        A(f"s_lshl_b32 {s(sT0)}, {s(sR)}, 6")
        A(f"s_lshl_b32 {s(sT1)}, {s(sW)}, 4")
        A(f"s_add_u32 {s(sT0)}, {s(sT0)}, {s(sT1)}")
        A(f"s_mul_i32 {s(sT3)}, {s(sT0)}, 1280")
        A(f"s_mul_i32 {s(sLD)}, {s(sW)}, {STAGE}")
        A(f"s_mov_b32 {s(sC)}, 6554")
        A(f"s_mov_b32 {s(sC+1)}, 3840")
        A("s_waitcnt lgkmcnt(0)")
        if 'startprof' in self.exp: self.stamp('karg')
        self.zero_store()
        if 'pfq' in self.exp: self.wqkv_prefetch()
        A(f"s_sub_u32 {s(SRD_X)}, {s(P_X)}, 2048")
        A(f"s_subb_u32 {s(SRD_X+1)}, {s(P_X+1)}, 0")
        A(f"s_mov_b32 {s(SRD_X+2)}, {2048 * 1280 + 2048}")
        A(f"s_mov_b32 {s(SRD_X+3)}, 0x20000")
        wv = []
        for i in range(5):
            wv += [f"v_add_u32 v2, {64*i}, v1", f"v_mul_lo_u32 v3, v2, {s(sC)}", "v_lshrrev_b32 v3, 16, v3",
                   "v_mul_u32_u24 v4, 10, v3", "v_sub_u32 v4, v2, v4", "v_and_b32 v5, 0x13, v3", "v_and_b32 v6, 4, v3",
                   "v_lshlrev_b32 v6, 1, v6", "v_and_b32 v7, 8, v3", "v_lshrrev_b32 v7, 1, v7", "v_or3_b32 v5, v5, v6, v7",
                   f"v_mul_lo_u32 v5, v5, {s(sC+1)}", f"v_lshl_add_u32 v{VOW+i}, v4, 4, v5"]
            if 1 <= i <= 3: wv.append(f"v_subrev_u32 v{VOW+i}, {1024*i}, v{VOW+i}")
        wv += self.srd_l(SRD_W, P_WQKV, 0, 640 * 3840)
        wv += [f"s_and_b32 {s(sT0)}, {s(sW)}, 1", f"s_mul_i32 {s(sT0)}, {s(sT0)}, {32*3840}", f"s_mul_i32 {s(sT1)}, {s(sG)}, 160",
               f"s_add_u32 {s(sWB)}, {s(sT0)}, {s(sT1)}", f"s_lshr_b32 {s(sT0)}, {s(sW)}, 1", f"s_add_u32 {s(sT2)}, {s(sT0)}, 1",
               f"s_mul_i32 {s(sT2)}, {s(sT2)}, 1280", f"s_add_u32 {s(sK)}, {s(sWB)}, {s(sT2)}",
               f"s_mul_i32 {s(sT0)}, {s(sT0)}, {64*3840}", f"s_add_u32 {s(sWB)}, {s(sWB)}, {s(sT0)}",
               f"s_add_u32 {s(sLK)}, {s(sK)}, {640*3840}", f"s_add_u32 {s(sLQ)}, {s(sWB)}, {640*3840}",
               f"s_mul_i32 {s(sT0)}, {s(sRHO)}, {64*3840}", f"s_add_u32 {s(sK)}, {s(sK)}, {s(sT0)}",
               f"s_add_u32 {s(sWB)}, {s(sWB)}, {s(sT0)}"]
        per = -(-len(wv) // 20)
        n = 0
        A(f"s_lshr_b32 {s(sT4)}, {s(sRHO)}, 1")
        A(f"s_sub_u32 {s(sT4)}, 5, {s(sT4)}")
        for q in range(5):
            A(f"s_cmp_ge_u32 {s(sT4)}, 5")
            A(f"s_cselect_b32 {s(sK2)}, 5, 0")
            A(f"s_sub_u32 {s(sT4)}, {s(sT4)}, {s(sK2)}")
            A(f"s_lshl_b32 {s(sK2)}, {s(sT4)}, 12")
            A(f"s_add_u32 m0, {s(sLD)}, {s(sK2)}")
            A(f"s_add_u32 {s(sT4)}, {s(sT4)}, 1")
            if q: A(f"s_add_u32 {s(sT3)}, {s(sT3)}, 256")
            for k in range(4):
                A(f"buffer_load_dwordx4 v{VX+k}, {s(SRD_X,4)}, {s(sT3)} offen offset:{k*1024} lds ; @x")
                for t in wv[n*per:(n+1)*per]: A(t)
                n += 1
        A(f"s_mul_i32 {s(sLD)}, {s(sW)}, 5120")
        if 'startprof' in self.exp:
            self.stamp('x_issued')
            A("s_waitcnt vmcnt(19)")
            self.stamp('x_first')
            A("s_waitcnt vmcnt(0)")
            self.stamp('x_all')

        def stage_dma(sig):
            so = sK if sig < 10 else sWB
            base = slot_of(sig)*STAGE
            gs = []
            for i in range(5):
                g = []
                if i == 0: g += [f"s_add_u32 m0, {s(sLD)}, {base}", "FILL"]
                if i == 4: g += [f"s_add_u32 m0, {s(sLD)}, {base + 4096}", "FILL"]
                g.append(f"buffer_load_dwordx4 v{VOW+i}, {s(SRD_W,4)}, {s(so)} offen" + (f" offset:{1024*i}" if 1 <= i <= 3 else "") + f" lds ; @st{sig}")
                if i == 4 and sig not in (9, 14):
                    lim = sLK if sig < 10 else sLQ
                    g += [f"s_add_u32 {s(so)}, {s(so)}, {(64 if sig < 10 else 128)*3840}", f"s_cmp_ge_u32 {s(so)}, {s(lim)}",
                          f"s_cselect_b32 {s(sK2)}, {640*3840}, 0", f"s_sub_u32 {s(so)}, {s(so)}, {s(sK2)}"]
                gs.append([x if x != "FILL" else "s_nop 0" for x in g])
            return gs
        if 'pfstart' in self.exp: self.weight_prefetch()
        self.code_prefetch()
        self.srd(SRD_CNT, P_WS, WS_CNT, WS_CNT_SZ)
        self.srd(SRD_DBG, P_DBG, 0, 256)
        self.srd(SRD_T, P_WS, WS_DBG, WS_DBG_SZ)
        A("v_bfe_u32 v2, v1, 2, 2")
        A("v_bfe_u32 v3, v1, 4, 1")
        A("v_lshl_add_u32 v2, v3, 2, v2")
        A("v_bfe_u32 v3, v1, 5, 1")
        A("v_lshl_add_u32 v2, v3, 4, v2")
        A("v_mul_u32_u24 v2, 160, v2")
        A("v_and_b32 v3, 3, v1")
        A(f"v_lshl_add_u32 v{VTRW}, v3, 3, v2")
        A(f"v_add_u32 v{VTRW+1}, {3*STAGE}, v{VTRW}")
        A(f"v_add_u32 v{VTRW+2}, {6*STAGE}, v{VTRW}")
        A("v_and_b32 v2, 15, v1")
        A("v_lshrrev_b32 v3, 3, v2")
        A("v_lshlrev_b32 v3, 10, v3")
        A("v_and_b32 v4, 7, v2")
        A("v_lshl_add_u32 v3, v4, 7, v3")
        A(f"s_mul_i32 {s(sT0)}, {s(sW)}, {STAGE}")
        A(f"v_add_u32 v3, {s(sT0)}, v3")
        A("v_and_b32 v4, 6, v2")
        A("v_lshrrev_b32 v5, 4, v1")
        A("v_xor_b32 v6, v5, v4")
        A(f"v_lshl_add_u32 v{VXA}, v6, 4, v3")
        A("v_or_b32 v5, 4, v5")
        A("v_xor_b32 v6, v5, v4")
        A(f"v_lshl_add_u32 v{VXA+1}, v6, 4, v3")
        for i in range(4):
            A(f"v_mov_b32 v{ONES+i}, 0x3f803f80")
            A(f"v_mov_b32 v{INIT+i}, 0x358637bd")
        A("v_and_b32 v3, 3, v1")
        A(f"v_cmp_eq_u32 {s(sMASK,2)}, 1, v3")
        A(f"v_cmp_eq_u32 {s(sMASK+2,2)}, 2, v3")
        A(f"v_cmp_eq_u32 {s(sMASK+4,2)}, 3, v3")
        A("v_bfe_u32 v3, v1, 2, 2")
        A("v_lshrrev_b32 v4, 4, v1")
        A(f"v_cmp_eq_u32 {s(sMASK+6,2)}, v3, v4")
        P = self.P = Pacer(A)
        for tk in self.exp.split(','):
            if tk.startswith('slack'): P.slack = float(tk[5:]) / 100
        for sig in range(15):
            need = None if sig < 4 else ('xfree' if sig < 8 else f'bar{sig-8}')
            P.push(stage_dma(sig), 30, need, f'st{sig}')
        if 'dmaonly' in self.exp:
            P.event('xfree')
            for k in range(10): P.event(f'bar{k}')
            A("WAITVM x")
            self.stamp('x_landed')
            for sig in range(15):
                P.flush(f'st{sig}')
                if sig in (3, 9):
                    A(f"WAITVM st{sig}")
                    self.stamp(f'st{sig}')
            A("s_waitcnt vmcnt(0)")
            self.stamp('all')
            self.dump_stamps()
            A("s_endpgm")
            self.early_exit = True
            return
        P.flush('st0')
        self.stamp('issued')
        A("WAITVM x")
        self.zero_report()
        self.stamp('x_landed')
        for m in range(8):
            A(f"ds_read_b128 {v(XF+4*m,4)}, v{VXA+(m&1)} offset:{(m>>1)*2048} ; @xf{m}")
        for m in range(20):
            xf = v(XF+4*m,4)
            if m % 2 == 0: P.emit(f"WAITLG xf{m+1}", feed=False)
            P.emit(f"{MF} {v(SUM,4)}, {v(ONES,4)}, {xf}, {'0' if m == 0 else v(SUM,4)}")
            if m + 8 < 20:
                P.emit(f"ds_read_b128 {v(XF+4*(m+8),4)}, v{VXA+(m&1)} offset:{((m+8)>>1)*2048} ; @xf{m+8}")
            P.emit(f"{MF} {v(GRAM,4)}, {xf}, {xf}, {'0' if m == 0 else v(GRAM,4)}")
        A("s_barrier")
        P.event('xfree')
        T = KF
        P.emit_all([f"v_cndmask_b32 v{T}, v{GRAM}, v{GRAM+1}, {s(sMASK,2)}",
            f"v_cndmask_b32 v{T}, v{T}, v{GRAM+2}, {s(sMASK+2,2)}",
            f"v_cndmask_b32 v{T}, v{T}, v{GRAM+3}, {s(sMASK+4,2)}",
            f"v_cndmask_b32 v{T}, 0, v{T}, {s(sMASK+6,2)}",
            f"v_mov_b32 v{T+1}, v{T}",
            f"v_mul_f32 v{T+2}, {1.0/640!r}, v{SUM}",
            f"v_permlane16_swap_b32 v{T}, v{T+1}",
            f"v_add_f32 v{T}, v{T}, v{T+1}",
            f"v_mov_b32 v{T+1}, v{T}",
            f"s_mov_b32 {s(sC)}, 0xffff0000",
            f"v_permlane32_swap_b32 v{T}, v{T+1}",
            f"v_add_f32 v{T}, v{T}, v{T+1}",
            f"v_mul_f32 v{T}, {1.0/640!r}, v{T}",
            f"v_fma_f32 v{T}, -v{T+2}, v{T+2}, v{T}",
            f"v_max_f32 v{T}, 0, v{T}",
            f"v_add_f32 v{T}, 0x3727c5ac, v{T}",
            f"v_rsq_f32 v{T+4}, v{T}",
            f"v_mul_f32 v{T+6}, v{T+2}, v{T+4}"])
        norm = []
        for r in range(80):
            x = XF + r; u = T + 8 + 2*(r & 3)
            norm.append([f"v_lshlrev_b32 v{u}, 16, v{x}", f"v_and_b32 v{u+1}, {s(sC)}, v{x}",
                         f"v_pk_fma_f32 {v(u,2)}, {v(u,2)}, {v(T+4,2)}, {v(T+6,2)} op_sel_hi:[1,0,0] neg_lo:[0,0,1] neg_hi:[0,0,1]",
                         f"v_cvt_pk_bf16_f32 v{x}, v{u}, v{u+1}"])
        for b in range(0, 80, 4):
            for k in range(4):
                for r in range(4): P.emit(norm[b+r][k])
        self.stamp('normed')

        def rd(buf, sec, j, sig, h, second):
            sl = slot_of(sig)
            dst = KF + buf*40 + sec*20 + j*4 + 2*second
            return f"ds_read_b64_tr_b16 {v(dst,2)}, v{VTRW + sl // 3} offset:{(sl % 3)*STAGE + (sec*2+h)*5120 + j*32 + second*1280} ; @r{2*sig+h}_{j}"
        def reads(buf, sig, h):
            return [rd(buf, sec, j, sig, h, sec2) for j in range(5) for sec in range(2) for sec2 in range(2)]
        def phase(buf, m, rds):
            first = (m == 0)
            xf = v(XF+4*m,4)
            for j in range(5):
                kf = v(KF+buf*40+j*4,4); vf = v(KF+buf*40+20+j*4,4)
                if j in (0, 3): P.emit(f"WAITLG r{m}_{2 if j == 0 else 4}", feed=False)
                P.emit(f"{MF} {v(ACK+4*j,4)}, {xf}, {kf}, {v(INIT,4) if first else v(ACK+4*j,4)}")
                P.emit_all(rds[4*j:4*j+2], feed=False)
                P.emit(f"{MF} {v(ACV+4*j,4)}, {xf}, {vf}, {'0' if first else v(ACV+4*j,4)}")
                P.emit_all(rds[4*j+2:4*j+4], feed=False)

        if 'pfnorm' in self.exp: self.weight_prefetch()
        P.flush('st0')
        A("WAITVM st0")
        A("s_barrier")
        for t in reads(0, 0, 0): A(t)
        for sig in range(10):
            phase(0, 2*sig, reads(1, sig, 1))
            for tk in self.exp.split(','):
                if tk == f'pfsig{sig}': self.weight_prefetch()
            if sig == 3:
                A("v_mov_b32 v2, 0")
                A(f"buffer_load_dword a{AZERO}, v2, {s(SRD_DBG,4)}, 0 offen sc1 ; @zero")
            if sig < 9:
                P.flush(f'st{sig+1}')
                A(f"WAITVM st{sig+1}")
            A("s_barrier")
            P.event(f'bar{sig-1}')
            phase(1, 2*sig+1, reads(0, sig + 1, 0) if sig < 9 else [])
        self.stamp('p1a_loop')

        T = KF
        VFR = T
        Y, E, PK = T + 4, T + 8, T + 12
        A(f"s_lshr_b32 {s(sT1)}, {s(sW)}, 1")
        A(f"s_lshl_b32 {s(sT1)}, {s(sT1)}, 10")
        A(f"s_add_u32 {s(sT0)}, {s(sT1)}, {FR + 20*1024}")
        A(f"v_lshl_add_u32 v5, v1, 4, {s(sT0)}")
        A(f"ds_write_b128 v5, {v(ONES,4)}")
        A(f"s_and_b32 {s(sT2)}, {s(sW)}, 1")
        A(f"s_lshl_b32 {s(sT2)}, {s(sT2)}, 3")
        A(f"s_add_u32 {s(sT1)}, {s(sT1)}, {s(sT2)}")
        A(f"s_add_u32 {s(sT1)}, {s(sT1)}, {FR}")
        A(f"v_lshl_add_u32 v{VFR}, v1, 4, {s(sT1)}")
        A(f"s_mov_b32 {s(sC2)}, {f32bits(LOG2E)}")
        A(f"s_mov_b32 {s(sC2+1)}, {f32bits(LOG2E)}")
        A(f"s_mov_b32 {s(sC)}, 0x358637bd")
        def phi_tile(acc, dst, E=E):
            out = []
            for p in range(2): out.append(f"v_pk_mul_f32 {v(E+2*p,2)}, {v(acc+2*p,2)}, {s(sC2,2)}")
            for r in range(4): out.append(f"v_exp_f32 v{E+r}, v{E+r} clamp")
            for r in range(4): out.append(f"v_max_f32 v{acc+r}, {s(sC)}, v{acc+r}")
            for p in range(2): out.append(f"v_pk_add_f32 {v(acc+2*p,2)}, {v(acc+2*p,2)}, {v(E+2*p,2)}")
            out.append(f"v_cvt_pk_bf16_f32 v{dst}, v{acc}, v{acc+1}")
            out.append(f"v_cvt_pk_bf16_f32 v{dst+1}, v{acc+2}, v{acc+3}")
            return out
        self.phi_tile = phi_tile
        for j in range(5):
            b = PK + 4*(j & 1)
            P.emit(f"v_cvt_pk_bf16_f32 v{b+2}, v{ACV+4*j}, v{ACV+4*j+1}")
            P.emit(f"v_cvt_pk_bf16_f32 v{b+3}, v{ACV+4*j+2}, v{ACV+4*j+3}")
            P.emit(f"ds_write_b64 v{VFR}, {v(b+2,2)} offset:{5*2048 + j*2048}")
            P.emit_all(phi_tile(ACK+4*j, b))
            P.emit(f"ds_write_b64 v{VFR}, {v(b,2)} offset:{j*2048}")
        ia = sum(JOBS[k][0] << (3*k) for k in range(18))
        ib = sum(JOBS[k][1] << (3*k) for k in range(18))
        self.srd(SRD_B, P_WS, WS_PART, WS_PART_SZ)
        A(f"s_lshl_b32 {s(sT4)}, {s(sG)}, 5")
        A(f"s_add_u32 {s(sT4)}, {s(sT4)}, {s(sR)}")
        A(f"s_mul_i32 {s(sT4)}, {s(sT4)}, {18*1024}")
        A("v_lshlrev_b32 v2, 4, v1")
        JADDR = T + 20
        A(f"s_mul_i32 {s(sT1)}, {s(sW)}, 3")
        A(f"s_mov_b32 {s(sC)}, {ia & 0xffffffff}")
        A(f"s_mov_b32 {s(sC+1)}, {ia >> 32}")
        A(f"s_lshr_b64 {s(sC,2)}, {s(sC,2)}, {s(sT1)}")
        A(f"s_mov_b32 {s(sC2)}, {ib & 0xffffffff}")
        A(f"s_mov_b32 {s(sC2+1)}, {ib >> 32}")
        A(f"s_lshr_b64 {s(sC2,2)}, {s(sC2,2)}, {s(sT1)}")
        for q in range(5):
            A(f"s_and_b32 {s(sT2)}, {s(sC)}, 7")
            A(f"s_and_b32 {s(sT3)}, {s(sC2)}, 7")
            A(f"s_lshl_b32 {s(sT2)}, {s(sT2)}, 11")
            A(f"s_lshl_b32 {s(sT3)}, {s(sT3)}, 11")
            A(f"s_add_u32 {s(sT2)}, {s(sT2)}, {FR}")
            A(f"s_add_u32 {s(sT3)}, {s(sT3)}, {FR + 5*2048}")
            A(f"v_add_u32 v{JADDR+2*q}, {s(sT2)}, v2")
            A(f"v_add_u32 v{JADDR+2*q+1}, {s(sT3)}, v2")
            if q < 4:
                A(f"s_lshr_b64 {s(sC,2)}, {s(sC,2)}, 12")
                A(f"s_lshr_b64 {s(sC2,2)}, {s(sC2,2)}, 12")
        A("s_waitcnt lgkmcnt(0)")
        A("s_barrier")
        JF = T + 32
        JD = 96
        def jreads(q, base):
            return [f"ds_read_b128 {v(base,4)}, v{JADDR+2*q}", f"ds_read_b128 {v(base+4,4)}, v{JADDR+2*q+1}",
                    f"ds_read_b128 {v(base+8,4)}, v{JADDR+2*q} offset:1024", f"ds_read_b128 {v(base+12,4)}, v{JADDR+2*q+1} offset:1024"]
        for q in range(3):
            for t in jreads(q, JF + 16*q): A(t)
        A(f"s_lshl_b32 {s(sT0)}, {s(sW)}, 10")
        A(f"s_add_u32 {s(sT0)}, {s(sT0)}, {s(sT4)}")
        for q in range(5):
            b = JF + 16*(q % 3)
            A(f"s_waitcnt lgkmcnt({min(8, 4*(min(q+3,5)-q-1))})")
            A(f"{MF} {v(JD+4*q,4)}, {v(b,4)}, {v(b+4,4)}, 0")
            A(f"{MF} {v(JD+4*q,4)}, {v(b+8,4)}, {v(b+12,4)}, {v(JD+4*q,4)}")
            if q + 3 < 5:
                for t in jreads(q + 3, b): A(t)
        for q in range(5):
            if q == 4:
                A(f"s_cmp_lt_u32 {s(sW)}, 2")
                A(f"s_cselect_b32 {s(sT0)}, {s(sT0)}, {OOB}")
            A(f"buffer_store_dwordx4 {v(JD+4*q,4)}, v2, {s(SRD_B,4)}, {s(sT0)} offen sc1 ; @part")
            if q < 4: A(f"s_add_u32 {s(sT0)}, {s(sT0)}, 4096")
        self.stamp('p1a_epi')

        ACQ = 116
        QF = KF
        def rdq(buf, j, ks, second):
            sl = slot_of(10 + ks // 4)
            return f"ds_read_b64_tr_b16 {v(QF+buf*20+j*4+2*second,2)}, v{VTRW + sl // 3} offset:{(sl % 3)*STAGE + (ks % 4)*5120 + j*32 + second*1280} ; @q{ks}_{j}"
        def readsq(buf, ks): return [rdq(buf, j, ks, sec2) for j in range(5) for sec2 in range(2)]
        def mfq(buf, m):
            return [f"{MF} {v(ACQ+4*j,4)}, {v(QF+buf*20+j*4,4)}, {v(XF+4*m,4)}, {v(INIT,4) if m == 0 else v(ACQ+4*j,4)}" for j in range(5)]
        P.event('bar8'); P.event('bar9')
        P.flush('st11')
        A("WAITVM st11")
        A("s_barrier")
        for t in readsq(0, 0): A(t)
        self.map_p3()
        P.push(self.w3_groups(), 19, 'w3ok', 'w3')
        for ks in range(20):
            if ks in (7, 11, 15):
                P.flush(f'st{12 + (ks - 7)//4}')
                A(f"WAITVM st{12 + (ks - 7)//4}" + (" lgkmcnt(0)" if ks == 7 else ""))
                A("s_barrier")
                if ks == 7: P.event('w3ok')
            if ks == 4:
                A("WAITVM part")
                A("s_barrier")
                self.check_zero_done()
                A(f"s_add_u32 {s(sT0)}, {s(sG)}, {C_A}")
                self.signal(sT0, 2)
            if ks == 5 and 'pflate' in self.exp: self.weight_prefetch(late=True)
            rd_ = readsq((ks+1) & 1, ks+1) if ks < 19 else []
            for j, t in enumerate(mfq(ks & 1, ks)):
                if j in (0, 3): P.emit(f"WAITLG q{ks}_{2 if j == 0 else 4}", feed=False)
                P.emit(t)
                P.emit_all(rd_[2*j:2*j+2], feed=False)
        P.flush('w3')
        self.ACQ = ACQ
        self.stamp('p1b_loop')

    def check_zero_done(self):
        A = self.A
        L = A.newlabel('zok')
        A(f"v_accvgpr_read_b32 v2, a{AZERO}")
        A("s_nop 0")
        A(f"v_readfirstlane_b32 {s(sT0)}, v2")
        A(f"s_cmp_ge_u32 {s(sT0)}, {NZERO}")
        A(f"s_cbranch_scc1 {L}")
        self.poll(SRD_DBG, lambda: A("v_mov_b32 v2, 0"), 1, NZERO, 2, barrier=False)
        A.label(L)

    def q_epilogue(self):
        A = self.A
        PQ = self.PQ = 232
        A(f"s_mov_b32 {s(sC2)}, {f32bits(LOG2E)}")
        A(f"s_mov_b32 {s(sC2+1)}, {f32bits(LOG2E)}")
        A(f"s_mov_b32 {s(sC)}, 0x358637bd")
        for j in range(5):
            for t in self.phi_tile(self.ACQ+4*j, PQ+2*j, E=200 + 4*(j & 1)): A(t)
        A(f"v_mov_b32 v{PQ+10}, 0")
        A(f"v_mov_b32 v{PQ+11}, 0")
        if self.dbg:
            A(f"s_lshl_b32 {s(sT0)}, s2, 2")
            A(f"s_add_u32 {s(sT0)}, {s(sT0)}, {s(sW)}")
            A(f"s_mul_i32 {s(sT0)}, {s(sT0)}, {5*512}")
            A("v_lshlrev_b32 v2, 3, v1")
            for j in range(5):
                A(f"buffer_store_dwordx2 {v(PQ+2*j,2)}, v2, {s(SRD_T,4)}, {s(sT0)} offen offset:{j*512}")

    def map_p3(self):
        A = self.A
        A(f"s_lshr_b32 {s(sT0)}, {s(sXCD)}, 1")
        A(f"s_mul_i32 {s(sT1)}, {s(sJ)}, 52")
        A(f"s_lshr_b32 {s(sT1)}, {s(sT1)}, 8")
        A(f"s_mul_i32 {s(sT2)}, {s(sT1)}, 5")
        A(f"s_sub_u32 {s(sT2)}, {s(sJ)}, {s(sT2)}")
        A(f"s_and_b32 {s(sT3)}, {s(sXCD)}, 1")
        A(f"s_mul_i32 {s(sT3)}, {s(sT3)}, 5")
        A(f"s_add_u32 {s(sC3)}, {s(sT2)}, {s(sT3)}")
        A(f"s_mul_i32 {s(sT2)}, {s(sT0)}, 6")
        A(f"s_cmp_eq_u32 {s(sT0)}, 3")
        A(f"s_cselect_b32 {s(sT3)}, 1, 0")
        A(f"s_sub_u32 {s(sT2)}, {s(sT2)}, {s(sT3)}")
        A(f"s_add_u32 {s(sR3)}, {s(sT2)}, {s(sT1)}")
        A(f"s_cmp_ge_u32 {s(sT0)}, 2")
        A(f"s_cselect_b32 {s(sT3)}, 5, 6")
        A(f"s_cmp_lt_u32 {s(sT1)}, {s(sT3)}")
        A(f"s_cselect_b32 {s(sV3)}, 1, 0")
        A(f"s_lshr_b32 {s(sT0)}, {s(sXCD)}, 2")
        A(f"s_lshl_b32 {s(sT0)}, {s(sT0)}, 2")
        A(f"s_and_b32 {s(sT1)}, {s(sJ)}, 3")
        A(f"s_add_u32 {s(sR4)}, {s(sT0)}, {s(sT1)}")
        A(f"s_and_b32 {s(sT0)}, {s(sXCD)}, 3")
        A(f"s_lshr_b32 {s(sT1)}, {s(sJ)}, 2")
        A(f"s_mul_i32 {s(sT2)}, {s(sT0)}, 7")
        A(f"s_add_u32 {s(sS4)}, {s(sT2)}, {s(sT1)}")
        A(f"s_cmp_eq_u32 {s(sT0)}, 3")
        A(f"s_cselect_b32 {s(sT2)}, 6, 7")
        A(f"s_cmp_lt_u32 {s(sT1)}, {s(sT2)}")
        A(f"s_cselect_b32 {s(sV4)}, 1, 0")

    def slab_voffset_l(self, dst, rowstride, n=1):
        o = ["v_lshrrev_b32 v2, 3, v1", "v_bfe_u32 v3, v1, 4, 2", "v_lshlrev_b32 v3, 1, v3", "v_and_b32 v4, 7, v1",
             "v_xor_b32 v3, v3, v4", "v_lshlrev_b32 v3, 4, v3", f"v_mul_u32_u24 v2, {rowstride}, v2",
             f"v_add_u32 v{dst}, v2, v3"]
        for k in range(1, n): o.append(f"v_add_u32 v{dst+k}, {k*(8*rowstride - 1024)}, v{dst}")
        return o

    def tr_addrs4(self, dst):
        A = self.A
        A("v_bfe_u32 v2, v1, 2, 2")
        A("v_lshrrev_b32 v3, 4, v1")
        A("v_lshl_add_u32 v2, v3, 2, v2")
        A("v_bfe_u32 v3, v2, 1, 2")
        A("v_and_b32 v4, 3, v1")
        A("v_lshlrev_b32 v4, 3, v4")
        A("v_and_b32 v5, 7, v2")
        A("v_lshl_add_u32 v4, v5, 7, v4")
        A("v_lshrrev_b32 v5, 3, v2")
        A("v_lshl_add_u32 v2, v5, 11, v4")
        for ct in range(4):
            A(f"v_xor_b32 v4, {ct}, v3")
            A(f"v_lshl_add_u32 v{dst+ct}, v4, 5, v2")

    def tr_addrs(self, dst, base, perm_sgpr=None):
        A = self.A
        A("v_bfe_u32 v2, v1, 2, 2")
        A("v_lshrrev_b32 v3, 4, v1")
        A("v_lshl_add_u32 v2, v3, 2, v2")
        A("v_bfe_u32 v3, v2, 1, 2")
        A("v_and_b32 v4, 3, v1")
        A("v_lshlrev_b32 v4, 3, v4")
        A("v_lshl_add_u32 v2, v2, 7, v4")
        A(f"v_add_u32 v2, {base}, v2")
        if perm_sgpr is not None: A(f"v_xor_b32 v3, {s(perm_sgpr)}, v3")
        for ct in range(4):
            A(f"v_xor_b32 v4, {ct}, v3")
            A(f"v_lshl_add_u32 v{dst+ct}, v4, 5, v2")

    def slab4(self, srd, so, lds_sgpr, lds_off, rowstride, tag):
        gs = []
        for k in range(4):
            g = [f"s_add_u32 m0, {s(lds_sgpr)}, {lds_off}", "s_nop 0"] if k == 0 else []
            g.append(f"buffer_load_dwordx4 v{VSL+k}, {s(srd,4)}, {s(so)} offen" + (f" offset:{k*1024}" if k else "") + f" lds ; @{tag}")
            if k == 3: g.append(f"s_add_u32 {s(so)}, {s(so)}, {32*rowstride}")
            gs.append(g)
        return gs

    def w3_groups(self):
        pre = self.slab_voffset_l(VSL, 1280, 4) + self.srd_l(SRD_W2, P_WO, 0, 640 * 1280) + [
            f"s_mul_i32 {s(sK2)}, {s(sW)}, {160*1280}", f"s_lshl_b32 {s(sK3)}, {s(sC3)}, 7",
            f"s_add_u32 {s(sK2)}, {s(sK2)}, {s(sK3)}",
            f"s_cmp_eq_u32 {s(sV3)}, 0", f"s_cselect_b32 {s(sK2)}, {OOB}, {s(sK2)}",
            f"s_add_u32 {s(sK3)}, {s(sW)}, 4", f"s_mul_i32 {s(sK3)}, {s(sK3)}, {STAGE}"]
        gs = []
        for mm in range(5): gs += self.slab4(SRD_W2, sK2, sK3, mm*4096, 1280, 'w3')
        gs[0] = pre + gs[0]
        return gs

    def w4_groups(self, m0, m1):
        pre = [f"s_lshl_b32 {s(sK2)}, {s(sW)}, 3", f"s_add_u32 {s(sK2)}, {s(sK2)}, {32*m0}",
               f"s_mul_i32 {s(sK2)}, {s(sK2)}, 3456", f"s_lshl_b32 {s(sK3)}, {s(sS4)}, 7",
               f"s_add_u32 {s(sK2)}, {s(sK2)}, {s(sK3)}",
               f"s_cmp_eq_u32 {s(sV4)}, 0", f"s_cselect_b32 {s(sK2)}, {OOB}, {s(sK2)}",
               f"s_lshl_b32 {s(sK3)}, {s(sW)}, 11"]
        gs = []
        for m in range(m0, m1):
            gs.append((pre if m == m0 else []) + [f"s_add_u32 m0, {s(sK3)}, {m*8192}", "s_nop 0",
                      f"buffer_load_dwordx4 v{VSLAB4}, {s(SRD_W,4)}, {s(sK2)} offen lds ; @w4"])
            gs.append([f"buffer_load_dwordx4 v{VSLAB4}, {s(SRD_W2,4)}, {s(sK2)} offen offset:1024 lds ; @w4",
                      f"s_add_u32 {s(sK2)}, {s(sK2)}, {32*3456}"])
        return gs

    def w5_groups(self, m0, m1, tag, region_a=None):
        base = 81920 if m0 >= 10 else 0
        pre = []
        if m0 == 0:
            pre += self.srd_l(SRD_W, P_WD, 0, 1728 * 1280)
        pre += [f"s_mul_i32 {s(sK2)}, {s(sW)}, 14", f"s_add_u32 {s(sK2)}, {s(sK2)}, {m0}",
                f"s_mul_i32 {s(sK2)}, {s(sK2)}, {32*1280}", f"s_lshl_b32 {s(sK3)}, {s(sC3)}, 7",
                f"s_add_u32 {s(sK2)}, {s(sK2)}, {s(sK3)}",
                f"s_cmp_eq_u32 {s(sV3)}, 0", f"s_cselect_b32 {s(sK2)}, {OOB}, {s(sK2)}",
                f"s_mul_i32 {s(sK3)}, {s(sW)}, 20480"]
        gs = []
        for mm in range(m0, m1): gs += self.slab4(SRD_W, sK2, sK3, base + (mm-m0)*4096, 1280, tag)
        gs[0] = pre + gs[0]
        return gs

    def colsum_part(self, m0, m1, VB, TMP):
        A = self.A
        A("v_bfe_u32 v2, v1, 2, 2")
        A("v_lshrrev_b32 v3, 4, v1")
        A("v_lshl_add_u32 v2, v3, 2, v2")
        A("v_bfe_u32 v3, v2, 1, 2")
        A(f"v_xor_b32 v3, {s(sW)}, v3")
        A("v_and_b32 v4, 3, v1")
        A("v_lshlrev_b32 v4, 3, v4")
        A("v_and_b32 v5, 7, v2")
        A("v_lshl_add_u32 v4, v5, 7, v4")
        A("v_lshrrev_b32 v5, 3, v2")
        A("v_lshl_add_u32 v2, v5, 11, v4")
        A(f"v_lshl_add_u32 v{VB}, v3, 5, v2")
        if m0: A(f"v_add_u32 v{VB}, {m0*8192}, v{VB}")
        for i in range(4): A(f"v_mov_b32 v{TMP+i}, 0x3f803f80")
        NB = 3
        def rd(m):
            k = m - m0; b = TMP + 4 + (k % NB) * 8
            pre = [f"v_add_u32 v{VB}, 57344, v{VB}"] if (k and k % 7 == 0) else []
            return pre + [f"ds_read_b64_tr_b16 {v(b+sec*4+2*h,2)}, v{VB} offset:{(k % 7)*8192 + sec*1024 + h*4096}" for sec in range(2) for h in range(2)]
        for m in range(m0, min(m0 + NB - 1, m1)):
            for t in rd(m): A(t)
        for m in range(m0, m1):
            if m + NB - 1 < m1:
                for t in rd(m + NB - 1): A(t)
            A(f"s_waitcnt lgkmcnt({4*min(NB - 1, m1 - 1 - m)})")
            b = TMP + 4 + ((m - m0) % NB) * 8
            for sec in range(2):
                A(f"{MF} {a(ACS+4*sec,4)}, {v(b+sec*4,4)}, {v(TMP,4)}, {'0' if m == 0 else a(ACS+4*sec,4)}")

    def emit_groups(self, gs):
        for g in gs:
            for t in g: self.A(t)

    def p2(self):
        A = self.A
        ti = sum(JOBS[k][0] << (3*k) for k in range(13))
        tj = sum(JOBS[k][1] << (3*k) for k in range(13))
        A(f"s_min_u32 {s(sT3)}, {s(sR)}, 17")
        A(f"s_min_u32 {s(sT0)}, {s(sR)}, 13")
        A(f"s_mul_i32 {s(sT0)}, {s(sT0)}, 3")
        A(f"s_mov_b32 {s(sC)}, {ti & 0xffffffff}")
        A(f"s_mov_b32 {s(sC+1)}, {ti >> 32}")
        A(f"s_lshr_b64 {s(sC,2)}, {s(sC,2)}, {s(sT0)}")
        A(f"s_and_b32 {s(sT1)}, {s(sC)}, 7")
        A(f"s_mov_b32 {s(sC)}, {tj & 0xffffffff}")
        A(f"s_mov_b32 {s(sC+1)}, {tj >> 32}")
        A(f"s_lshr_b64 {s(sC,2)}, {s(sC,2)}, {s(sT0)}")
        A(f"s_and_b32 {s(sT2)}, {s(sC)}, 7")
        self.srd(SRD_A, P_WS, WS_PART, WS_PART_SZ)
        A(f"s_lshl_b32 {s(sT4)}, {s(sG)}, 5")
        A(f"s_lshl_b32 {s(sT0)}, {s(sW)}, 3")
        A(f"s_add_u32 {s(sT4)}, {s(sT4)}, {s(sT0)}")
        A(f"s_mul_i32 {s(sT4)}, {s(sT4)}, 18")
        A(f"s_add_u32 {s(sT4)}, {s(sT4)}, {s(sT3)}")
        A(f"s_lshl_b32 {s(sK)}, {s(sT4)}, 10")
        A(f"s_mov_b32 {s(sC)}, 3277")
        A("v_and_b32 v3, 15, v1")
        A(f"s_lshl_b32 {s(sT0)}, {s(sT2)}, 4")
        A(f"v_add_u32 v3, {s(sT0)}, v3")
        A(f"v_mul_lo_u32 v3, v3, {s(sC)}")
        A("v_lshrrev_b32 v3, 16, v3")
        A("v_lshrrev_b32 v4, 4, v1")
        A(f"s_lshl_b32 {s(sT0)}, {s(sT1)}, 4")
        A(f"v_lshl_add_u32 v4, v4, 2, {s(sT0)}")
        for r in range(4):
            A(f"v_add_u32 v5, {r}, v4")
            A(f"v_mul_lo_u32 v5, v5, {s(sC)}")
            A("v_lshrrev_b32 v5, 16, v5")
            A(f"v_cmp_eq_u32 {s(sMASK+2*r,2)}, v5, v3")
        A(f"s_cmp_ge_u32 {s(sR)}, 13")
        for r in range(4): A(f"s_cselect_b64 {s(sMASK+2*r,2)}, -1, {s(sMASK+2*r,2)}")
        def setupA():
            A(f"s_add_u32 {s(sT0)}, {s(sG)}, {C_A}")
            A(f"s_lshl_b32 {s(sT0)}, {s(sT0)}, 7")
            A(f"v_mov_b32 v2, {s(sT0)}")
        self.poll(SRD_CNT, setupA, 1, 32, 2)
        self.stamp('cA')
        T = 164
        A("v_lshlrev_b32 v6, 4, v1")
        for k in range(8):
            A(f"buffer_load_dwordx4 {v(T+4*k,4)}, v6, {s(SRD_A,4)}, {s(sK)} offen sc1")
            if k < 7: A(f"s_add_u32 {s(sK)}, {s(sK)}, {18*1024}")
        self.q_epilogue()
        self.stamp('q_epi')
        A("s_waitcnt vmcnt(0)")
        for k in (4, 2, 1):
            for b in range(k):
                for p in range(2):
                    A(f"v_pk_add_f32 {v(T+4*b+2*p,2)}, {v(T+4*b+2*p,2)}, {v(T+4*(b+k)+2*p,2)}")
        A(f"s_lshl_b32 {s(sT0)}, {s(sW)}, 10")
        A(f"s_add_u32 {s(sT0)}, {s(sT0)}, {RED2}")
        A(f"v_add_u32 v3, {s(sT0)}, v6")
        A(f"ds_write_b128 v3, {v(T,4)}")
        A("s_waitcnt lgkmcnt(0)")
        A("s_barrier")
        Lr = A.newlabel('red')
        A(f"s_cmp_lg_u32 {s(sW)}, 0")
        A(f"s_cbranch_scc1 {Lr}")
        A(f"v_add_u32 v3, {RED2}, v6")
        for k in range(4):
            A(f"ds_read_b128 {v(T+4*k,4)}, v3 offset:{k*1024}")
        self.srd(SRD_B, P_WS, WS_KVF, WS_KVF_SZ)
        A(f"s_lshl_b32 {s(sT0)}, {s(sG)}, 14")
        A(f"s_lshl_b32 {s(sT1)}, {s(sR)}, 9")
        A(f"s_add_u32 {s(sT0)}, {s(sT0)}, {s(sT1)}")
        A(f"s_cmp_lt_u32 {s(sR)}, 18")
        A(f"s_cselect_b32 {s(sT0)}, {s(sT0)}, {OOB}")
        A("v_lshlrev_b32 v5, 3, v1")
        A("s_waitcnt lgkmcnt(0)")
        for p in range(2):
            A(f"v_pk_add_f32 {v(T+2*p,2)}, {v(T+2*p,2)}, {v(T+4+2*p,2)}")
            A(f"v_pk_add_f32 {v(T+8+2*p,2)}, {v(T+8+2*p,2)}, {v(T+12+2*p,2)}")
        for p in range(2):
            A(f"v_pk_add_f32 {v(T+2*p,2)}, {v(T+2*p,2)}, {v(T+8+2*p,2)}")
        for r in range(4):
            A(f"v_cndmask_b32 v{T+r}, 0, v{T+r}, {s(sMASK+2*r,2)}")
        A(f"v_cvt_pk_bf16_f32 v{T}, v{T}, v{T+1}")
        A(f"v_cvt_pk_bf16_f32 v{T+1}, v{T+2}, v{T+3}")
        A(f"buffer_store_dwordx2 {v(T,2)}, v5, {s(SRD_B,4)}, {s(sT0)} offen sc1 ; @nocount")
        A("s_waitcnt vmcnt(0)")
        A(f"s_add_u32 {s(sT0)}, {s(sG)}, {C_B}")
        self.signal(sT0, 4)
        A.label(Lr)
        self.stamp('red_done')
        for t in self.slab_voffset_l(VSLAB4, 3456): A(t)
        self.srd(SRD_W, P_WG, 0, 640 * 3456)
        A(f"s_sub_u32 {s(SRD_W2)}, {s(P_WU)}, 1024")
        A(f"s_subb_u32 {s(SRD_W2+1)}, {s(P_WU+1)}, 0")
        A(f"s_mov_b32 {s(SRD_W2+2)}, {640 * 3456 + 1024}")
        A(f"s_mov_b32 {s(SRD_W2+3)}, 0x20000")
        self.emit_groups(self.w4_groups(0, W4_E1))
        A(f"s_add_u32 {s(sT0)}, {s(sW)}, 4")
        A(f"s_mul_i32 {s(sT0)}, {s(sT0)}, {STAGE}")
        A(f"s_and_b32 {s(sT1)}, {s(sW)}, 1")
        A(f"s_lshl_b32 {s(sT1)}, {s(sT1)}, 1")
        self.tr_addrs(VTR3, s(sT0), perm_sgpr=sT1)
        for mm, rows in enumerate(((0, 16), (32, 48), (80, 96), (112, 128), (64, 144))):
            for ct in range(4):
                for sec in range(2):
                    A(f"ds_read_b64_tr_b16 {a(mm*16+ct*4+2*sec,2)}, v{VTR3+ct} offset:{rows[sec]*128}")
        A("WAITVM w4 lgkmcnt(0)")
        A("s_barrier")
        self.colsum_part(0, W4_E1, 6, 196)
        MK = 136
        A("v_and_b32 v2, 15, v1")
        A("v_lshrrev_b32 v3, 4, v1")
        A(f"s_mov_b32 {s(sC)}, 3277")
        for j in range(5):
            A(f"v_add_u32 v4, {16*j}, v2")
            A(f"v_mul_lo_u32 v4, v4, {s(sC)}")
            A(f"v_lshrrev_b32 v{150+j}, 16, v4")
            A(f"v_lshl_add_u32 v4, v3, 2, {16*j}")
            A(f"v_mul_lo_u32 v4, v4, {s(sC)}")
            A(f"v_lshrrev_b32 v{155+j}, 16, v4")
        for k, (ii, jj) in enumerate(JOBS[:13]):
            A(f"v_cmp_eq_u32 vcc, v{155+ii}, v{150+jj}")
            A(f"v_cndmask_b32 v{MK+k}, 0, -1, vcc")
        for f in (2, 4, 6):
            A(f"v_mov_b32 v{164+4*f+2}, 0"); A(f"v_mov_b32 v{164+4*f+3}, 0")
        self.srd(SRD_A, P_WS, WS_KVF, WS_KVF_SZ)
        A("v_lshlrev_b32 v6, 4, v1")
        def setupB():
            A(f"s_add_u32 {s(sT0)}, {s(sG)}, {C_B}")
            A(f"s_lshl_b32 {s(sT0)}, {s(sT0)}, 7")
            A(f"v_mov_b32 v2, {s(sT0)}")
        A("s_waitcnt lgkmcnt(0)")
        self.poll(SRD_CNT, setupB, 1, 32, 2)
        self.stamp('cB')
        PQ = self.PQ
        KV, ZP, DF = 164, 200, 212
        plan = [(0, 0, 1), (1, 0, 1), (1, 2, None), (2, 1, 2), (2, 3, None), (3, 2, 3), (3, 4, None), (4, 3, 4)]
        A("v_lshlrev_b32 v5, 3, v1")
        A(f"s_lshl_b32 {s(sT0)}, {s(sG)}, 14")
        A(f"s_add_u32 {s(sT1)}, {s(sT0)}, 4096")
        A(f"s_add_u32 {s(sT2)}, {s(sT0)}, 8192")
        def item_load(dst, item, tag):
            so, off = (sT0, sT1, sT2)[item // 8], (item % 8)*512
            return f"buffer_load_dwordx2 {v(dst,2)}, v5, {s(SRD_A,4)}, {s(so)} offen offset:{off} sc1 ; @{tag}"
        for i in range(5): A(item_load(ZP + 2*i, 13 + i, 'z'))
        for f, (j, i0_, i1_) in enumerate(plan):
            A(item_load(KV + 4*f, 2*i0_ + j, f'kv{f}'))
            if i1_ is not None: A(item_load(KV + 4*f + 2, 2*i1_ + j, f'kv{f}'))
        NUM, DEN = 96, 116
        self.srd(SRD_B, P_WS, WS_O, WS_O_SZ)
        A(f"s_lshl_b32 {s(sT0)}, {s(sR)}, 2")
        A(f"s_add_u32 {s(sT0)}, {s(sT0)}, {s(sW)}")
        A(f"s_mul_i32 {s(sT0)}, {s(sT0)}, {20*1024}")
        A(f"s_lshr_b32 {s(sT1)}, {s(sG)}, 1")
        A(f"s_mul_i32 {s(sT1)}, {s(sT1)}, 5120")
        A(f"s_add_u32 {s(sT0)}, {s(sT0)}, {s(sT1)}")
        A(f"s_and_b32 {s(sT1)}, {s(sG)}, 1")
        A(f"s_lshl_b32 {s(sT2)}, {s(sT1)}, 11")
        A(f"s_add_u32 {s(sT2)}, {s(sT2)}, {s(sT0)}")
        A(f"s_lshl_b32 {s(sT3)}, {s(sT1)}, 9")
        A(f"s_add_u32 {s(sT3)}, {s(sT3)}, {s(sT0)}")
        A(f"s_add_u32 {s(sT3)}, {s(sT3)}, 4096")
        A(f"s_mov_b32 {s(sC)}, 0x358637bd")
        A(f"s_mov_b32 {s(sC+1)}, 0x358637bd")
        A("WAITVM z")
        for f, (j, i0_, i1_) in enumerate(plan):
            first = (f == 0 or plan[f-1][0] != j)
            d = DF + 4*(f & 1)
            for h, ii in enumerate((i0_, i1_)):
                if ii is None:
                    A(f"v_mov_b32 v{d+2*h}, 0"); A(f"v_mov_b32 v{d+2*h+1}, 0")
                else:
                    mk = MK + [k for k, jb in enumerate(JOBS[:13]) if jb == (ii, j)][0]
                    A(f"v_and_b32 v{d+2*h}, v{ZP+2*ii}, v{mk}"); A(f"v_and_b32 v{d+2*h+1}, v{ZP+2*ii+1}, v{mk}")
            A(f"{MF} {v(DEN+4*j,4)}, {v(d,4)}, {v(PQ+2*i0_,4)}, {'0' if first else v(DEN+4*j,4)}")
        for f, (j, i0_, i1_) in enumerate(plan):
            first = (f == 0 or plan[f-1][0] != j)
            A(f"WAITVM kv{f}")
            A(f"{MF} {v(NUM+4*j,4)}, {v(KV+4*f,4)}, {v(PQ+2*i0_,4)}, {'0' if first else v(NUM+4*j,4)}")
        for j in range(5):
            for p in range(2):
                A(f"v_pk_add_f32 {v(DEN+4*j+2*p,2)}, {v(DEN+4*j+2*p,2)}, {s(sC,2)}")
        for j in range(5):
            for r in range(4):
                A(f"v_rcp_f32 v{DEN+4*j+r}, v{DEN+4*j+r}")
        OP = 164
        for j in range(5):
            for p in range(2):
                A(f"v_pk_mul_f32 {v(NUM+4*j+2*p,2)}, {v(NUM+4*j+2*p,2)}, {v(DEN+4*j+2*p,2)}")
            A(f"v_cvt_pk_bf16_f32 v{OP+2*j}, v{NUM+4*j}, v{NUM+4*j+1}")
            A(f"v_cvt_pk_bf16_f32 v{OP+2*j+1}, v{NUM+4*j+2}, v{NUM+4*j+3}")
            if j == 1: A(f"buffer_store_dwordx4 {v(OP,4)}, v6, {s(SRD_B,4)}, {s(sT2)} offen sc1")
            if j == 3: A(f"buffer_store_dwordx4 {v(OP+4,4)}, v6, {s(SRD_B,4)}, {s(sT2)} offen offset:1024 sc1")
            if j == 4: A(f"buffer_store_dwordx2 {v(OP+8,2)}, v5, {s(SRD_B,4)}, {s(sT3)} offen sc1")
        A("s_waitcnt vmcnt(0)")
        A("s_barrier")
        A(f"s_add_u32 {s(sT0)}, {s(sR)}, {C_O}")
        self.signal(sT0, 4)
        self.stamp('o_sig')
        self.emit_groups(self.w4_groups(W4_E1, W4_E2))

    def slot_tile(self, a_, b_): return (a_*4 + b_)
    def reduce_writes(self, ACC, rels):
        out = []
        for a_ in range(6):
            for b_ in range(4):
                rel = (a_ // 3) * 2 + (b_ >> 1)
                if rel in rels:
                    idx = (a_ % 3) * 2 + (b_ & 1)
                    out.append(f"ds_write_b128 v{self.VRW+rel-1}, {v(ACC + (a_*4+b_)*4, 4)} offset:{idx*1024}")
        return out
    def reduce_setup(self, VRW, VRR):
        A = self.A
        self.VRW, self.VRR = VRW, VRR
        for rel in range(1, 4):
            A(f"s_xor_b32 {s(sT0)}, {s(sW)}, {rel}")
            A(f"s_mul_i32 {s(sT0)}, {s(sT0)}, {3*6144}")
            A(f"s_add_u32 {s(sT0)}, {s(sT0)}, {RED3 + (rel-1)*6144}")
            A(f"v_lshl_add_u32 v{VRW+rel-1}, v1, 4, {s(sT0)}")
        A(f"s_mul_i32 {s(sT0)}, {s(sW)}, {3*6144}")
        A(f"s_add_u32 {s(sT0)}, {s(sT0)}, {RED3}")
        A(f"v_lshl_add_u32 v{VRR}, v1, 4, {s(sT0)}")
    def reduce_finish(self, ACC, TMP):
        A = self.A
        for rel in range(1, 4):
            for idx in range(6):
                A(f"ds_read_b128 {v(TMP + ((rel-1)*6+idx)*4, 4)}, v{self.VRR} offset:{(rel-1)*6144 + idx*1024}")
        for rel in range(1, 4):
            A(f"s_waitcnt lgkmcnt({min(15, 6*(3-rel))})")
            for idx in range(6):
                d = ACC + ((idx // 2)*4 + (idx & 1))*4; t = TMP + ((rel-1)*6+idx)*4
                for p in range(2):
                    A(f"v_pk_add_f32 {v(d+2*p,2)}, {v(d+2*p,2)}, {v(t+2*p,2)}")

    def p3(self):
        A = self.A
        Lend = A.newlabel('p3end')
        A(f"s_cmp_eq_u32 {s(sV3)}, 0")
        A(f"s_cbranch_scc1 {Lend}")
        ACC, XR = 16, 112
        A("v_and_b32 v2, 15, v1")
        A("v_mul_u32_u24 v2, 1280, v2")
        A("v_lshrrev_b32 v3, 4, v1")
        A(f"v_lshl_add_u32 v{VXR}, v3, 3, v2")
        A(f"s_lshr_b32 {s(sT0)}, {s(sW)}, 1")
        A(f"s_mul_i32 {s(sT0)}, {s(sT0)}, 3")
        A(f"s_mul_i32 {s(sT1)}, {s(sR3)}, 6")
        A(f"s_add_u32 {s(sTT)}, {s(sT0)}, {s(sT1)}")
        A(f"s_mul_i32 {s(sT0)}, {s(sTT)}, {16*1280}")
        A(f"s_lshl_b32 {s(sT1)}, {s(sC3)}, 7")
        A(f"s_add_u32 {s(sT0)}, {s(sT0)}, {s(sT1)}")
        A(f"s_and_b32 {s(sT1)}, {s(sW)}, 1")
        A(f"s_lshl_b32 {s(sT1)}, {s(sT1)}, 6")
        A(f"s_add_u32 {s(sXO)}, {s(sT0)}, {s(sT1)}")
        A(f"s_add_u32 {s(sT0)}, {s(sXO)}, 2048")
        for i in range(3):
            for c in range(2):
                A(f"buffer_load_dwordx2 {v(XR+4*i+2*c,2)}, v{VXR}, {s(SRD_X,4)}, {s(sT0)} offen offset:{32*c}")
            if i < 2: A(f"s_add_u32 {s(sT0)}, {s(sT0)}, {16*1280}")
        self.reduce_setup(124, 127)
        self.srd(SRD_A, P_WS, WS_O, WS_O_SZ)
        VA = 128
        A("v_lshlrev_b32 v2, 4, v1")
        A(f"s_lshr_b32 {s(sT0)}, {s(sW)}, 1")
        A(f"s_mul_i32 {s(sT0)}, {s(sT0)}, {3*20*1024}")
        for a_ in range(6):
            if a_ < 3:
                A(f"s_add_u32 {s(sT1)}, {s(sT0)}, {a_*20*1024}")
            else:
                A(f"s_sub_u32 {s(sT1)}, {a_*20*1024}, {s(sT0)}")
                A(f"s_cmp_ge_u32 {s(sT1)}, {3*20*1024}")
            A(f"v_add_u32 v{VA+a_}, {s(sT1)}, v2")
        A(f"s_mul_i32 {s(sK)}, {s(sR3)}, {6*20*1024}")
        A(f"s_mul_i32 {s(sT1)}, {s(sW)}, {5*1024}")
        A(f"s_add_u32 {s(sK)}, {s(sK)}, {s(sT1)}")
        def setup():
            A(f"s_mul_i32 {s(sT0)}, {s(sR3)}, 3")
            A(f"s_lshr_b32 {s(sT0)}, {s(sT0)}, 1")
            A(f"v_add_u32 v2, {s(sT0)}, v1")
            A("v_min_u32 v2, 31, v2")
            A(f"v_add_u32 v2, {C_O}, v2")
            A("v_lshlrev_b32 v2, 7, v2")
        self.poll(SRD_CNT, setup, 2, 8, 2)
        self.stamp('cO')
        OF = 80
        VB8 = 208
        order = [3, 4, 5, 0, 1, 2]
        A(f"s_add_u32 {s(sK3)}, {s(sK)}, 4096")
        A("v_lshlrev_b32 v3, 3, v1")
        A("v_lshlrev_b32 v4, 4, v1")
        A("v_sub_u32 v3, v3, v4")
        for a_ in range(6): A(f"v_add_u32 v{VB8+a_}, v{VA+a_}, v3")
        for a_ in order:
            for mm in range(4):
                A(f"buffer_load_dwordx4 {a(OF+(a_*5+mm)*4,4)}, v{VA+a_}, {s(SRD_A,4)}, {s(sK)} offen offset:{mm*1024} sc1 ; @o{a_}")
            for h in range(2):
                A(f"buffer_load_dwordx2 {a(OF+(a_*5+4)*4+2*h,2)}, v{VB8+a_}, {s(SRD_A,4)}, {s(sK3)} offen offset:{h*512} sc1 ; @o{a_}")
        def mm_tile(a_, b_, mm):
            d = ACC + (a_*4+b_)*4
            return f"{MF} {v(d,4)}, {a(mm*16+b_*4,4)}, {a(OF+(a_*5+mm)*4,4)}, {'0' if mm == 0 else v(d,4)}"
        for n, a_ in enumerate((3, 4, 5)):
            A(f"WAITVM o{a_}")
            for mm in range(5):
                for b_ in range(4): A(mm_tile(a_, b_, mm))
        main = []
        for n, a_ in enumerate((0, 1, 2)):
            blk = [mm_tile(a_, b_, mm) for mm in range(5) for b_ in (2, 3)]
            main += [f"WAITVM o{a_}"] + blk
        wr = self.reduce_writes(ACC, (2, 3))
        for t in weave(main, [([[x] for x in wr], 8, len(main))]): A(t)
        main = [mm_tile(a_, b_, mm) for a_ in range(3) for mm in range(5) for b_ in (0, 1)]
        wr = self.reduce_writes(ACC, (1,))
        for t in weave(main, [([[x] for x in wr], 6, 24)]): A(t)
        self.stamp('p3_mfma')
        A("s_waitcnt lgkmcnt(0)")
        A("s_barrier")
        self.reduce_finish(ACC, 136)
        self.stamp('p3_red')
        T = 136; HR = 148
        self.srd(SRD_B, P_WS, WS_H, WS_H_SZ)
        A(f"s_mul_i32 {s(sT0)}, {s(sTT)}, 20")
        A(f"s_lshl_b32 {s(sT1)}, {s(sC3)}, 1")
        A(f"s_add_u32 {s(sT0)}, {s(sT0)}, {s(sT1)}")
        A(f"s_and_b32 {s(sT1)}, {s(sW)}, 1")
        A(f"s_add_u32 {s(sT0)}, {s(sT0)}, {s(sT1)}")
        A(f"s_lshl_b32 {s(sT1)}, {s(sT0)}, 10")
        A(f"s_lshl_b32 {s(sT2)}, {s(sTT)}, 7")
        A(f"s_add_u32 {s(sT2)}, {s(sT2)}, {WS_ST2}")
        A(f"s_cmp_lt_u32 {s(sTT)}, 128")
        A(f"s_cselect_b32 {s(sT2)}, {s(sT2)}, {OOB}")
        A("v_lshlrev_b32 v4, 4, v1")
        A("v_and_b32 v5, 15, v1")
        A("v_lshlrev_b32 v5, 3, v5")
        A("v_bfe_u32 v6, v1, 4, 1")
        A(f"v_cmp_eq_u32 {s(sMASK,2)}, 1, v6")
        A("v_lshl_add_u32 v5, v6, 2, v5")
        for i in range(3):
            for c in range(2):
                o = ACC + (i*4+c)*4
                for hreg in range(2):
                    x = XR + 4*i + 2*c + hreg
                    A(f"v_lshlrev_b32 v{T}, 16, v{x}")
                    A(f"v_and_b32 v{T+1}, 0xffff0000, v{x}")
                    A(f"v_pk_add_f32 {v(o+2*hreg,2)}, {v(o+2*hreg,2)}, {v(T,2)}")
            o = ACC + i*16
            for k in range(4):
                A(f"v_cvt_pk_bf16_f32 v{HR+4*i+k}, v{o+2*k}, v{o+2*k+1}")
            A(f"buffer_store_dwordx4 {v(HR+4*i,4)}, v4, {s(SRD_B,4)}, {s(sT1)} offen sc1")
            if i < 2: A(f"s_add_u32 {s(sT1)}, {s(sT1)}, {20*1024}")
        for i in range(3):
            o = ACC + i*16
            A(f"v_pk_mul_f32 {v(T+2,2)}, {v(o,2)}, {v(o,2)}")
            A(f"v_pk_add_f32 {v(T,2)}, {v(o,2)}, {v(o+2,2)}")
            A(f"v_pk_fma_f32 {v(T+2,2)}, {v(o+2,2)}, {v(o+2,2)}, {v(T+2,2)}")
            for k in (4, 6):
                A(f"v_pk_add_f32 {v(T,2)}, {v(T,2)}, {v(o+k,2)}")
                A(f"v_pk_fma_f32 {v(T+2,2)}, {v(o+k,2)}, {v(o+k,2)}, {v(T+2,2)}")
            A(f"v_add_f32 v{T}, v{T}, v{T+1}")
            A(f"v_add_f32 v{T+1}, v{T+2}, v{T+3}")
            for sw in ('v_permlane16_swap_b32', 'v_permlane32_swap_b32'):
                A(f"v_mov_b32 v{T+2}, v{T}")
                A(f"v_mov_b32 v{T+3}, v{T+1}")
                A(f"{sw} v{T}, v{T+2}")
                A(f"{sw} v{T+1}, v{T+3}")
                A(f"v_pk_add_f32 {v(T,2)}, {v(T,2)}, {v(T+2,2)}")
            A(f"v_cndmask_b32 v{T+4+i}, v{T}, v{T+1}, {s(sMASK,2)}")
            A("s_mov_b64 exec, 0xffffffff")
            A(f"buffer_atomic_add_f32 v{T+4+i}, v5, {s(SRD_CNT,4)}, {s(sT2)} offen sc1")
            A("s_mov_b64 exec, -1")
            if i < 2:
                A(f"s_add_u32 {s(sT2)}, {s(sT2)}, 128")
                A(f"s_cmp_lt_u32 {s(sT2)}, {WS_ST2 + 2048*8}")
                A(f"s_cselect_b32 {s(sT2)}, {s(sT2)}, {OOB}")
        for k in range(12):
            A(f"v_accvgpr_write_b32 a{AHRES+k}, v{HR+k}")
        A("s_waitcnt vmcnt(0)")
        A("s_barrier")
        A(f"s_add_u32 {s(sT0)}, {s(sR3)}, {C_H}")
        self.signal(sT0, 4)
        A.label(Lend)
        self.stamp('h_sig')

    def p4(self):
        A = self.A
        Lend = A.newlabel('p4end')
        A(f"s_cmp_eq_u32 {s(sV4)}, 0")
        A(f"s_cbranch_scc1 {Lend}")
        ACC = 16; CSR = 160; T = 208
        WF = 0; AF = 64; D = 5
        self.emit_groups(self.w4_groups(W4_E2, 20))
        self.tr_addrs4(VTR4)
        self.srd(SRD_A, P_WS, WS_H, WS_H_SZ)
        VA = T + 20
        A("v_lshlrev_b32 v4, 4, v1")
        for i in range(4): A(f"v_add_u32 v{VA+i}, {i*20*1024}, v4")
        A(f"s_lshl_b32 {s(sT0)}, {s(sR4)}, 4")
        A(f"s_lshl_b32 {s(sT1)}, {s(sW)}, 2")
        A(f"s_add_u32 {s(sTT4)}, {s(sT0)}, {s(sT1)}")
        A(f"s_mul_i32 {s(sK)}, {s(sTT4)}, {20*1024}")
        A("v_and_b32 v3, 15, v1")
        A("v_lshlrev_b32 v3, 3, v3")
        A(f"v_mov_b32 v{VA+4}, v3")
        def wreads(buf, m):
            return [f"ds_read_b64_tr_b16 {a(WF+buf*32+(sec*4+ct)*4+2*h,2)}, v{VTR4+ct} offset:{(m % 8)*8192 + sec*1024 + h*4096}"
                    for sec in range(2) for ct in range(4) for h in range(2)]
        for t in wreads(0, 0): A(t)
        A("WAITVM w4 lgkmcnt(0)")
        A("s_barrier")
        self.stamp('w4_landed')
        self.colsum_part(W4_E1, 20, 6, 16)
        A("v_lshrrev_b32 v2, 4, v1")
        A("v_lshlrev_b32 v2, 4, v2")
        A(f"s_lshl_b32 {s(sT0)}, {s(sW)}, 6")
        A(f"v_add_u32 v3, {s(sT0)}, v2")
        A(f"ds_write_b128 v3, {a(ACS,4)}")
        A(f"ds_write_b128 v3, {a(ACS+4,4)} offset:256")
        A("s_waitcnt lgkmcnt(0)")
        A("s_barrier")
        for k in range(8):
            A(f"ds_read_b128 {v(CSR+4*k,4)}, v2 offset:{k*64}")
        self.stamp('colsum')
        def setup():
            A(f"s_lshl_b32 {s(sT0)}, {s(sR4)}, 4")
            A(f"s_mul_i32 {s(sT1)}, {s(sT0)}, 43")
            A(f"s_lshr_b32 {s(sT1)}, {s(sT1)}, 8")
            A(f"s_add_u32 {s(sT0)}, {s(sT0)}, 15")
            A(f"s_mul_i32 {s(sT0)}, {s(sT0)}, 43")
            A(f"s_lshr_b32 {s(sT0)}, {s(sT0)}, 8")
            A(f"v_add_u32 v2, {s(sT1)}, v1")
            A(f"v_min_u32 v2, {s(sT0)}, v2")
            A(f"v_add_u32 v2, {C_H}, v2")
            A("v_lshlrev_b32 v2, 7, v2")
        self.poll(SRD_CNT, setup, 4, 10, 2)
        self.stamp('cH')
        def aload_groups(m):
            gs = [[f"buffer_load_dwordx4 {a(AF+(m % D)*16+4*i,4)}, v{VA+i}, {s(SRD_A,4)}, {s(sK)} offen sc1 ; @a{m}"] for i in range(4)]
            gs[-1].append(f"s_add_u32 {s(sK)}, {s(sK)}, 1024")
            return gs
        NPRE = 3
        for m in range(NPRE): self.emit_groups(aload_groups(m))
        MEAN, RS2 = 192, 200
        A(f"s_lshl_b32 {s(sT0)}, {s(sTT4)}, 7")
        A(f"s_add_u32 {s(sT0)}, {s(sT0)}, {WS_ST2}")
        for i in range(4):
            A(f"buffer_load_dwordx2 {v(T+2*i,2)}, v{VA+4}, {s(SRD_CNT,4)}, {s(sT0)} offen offset:{i*128} sc1 ; @stat")
        def stat_math():
            o = []
            for i in range(4):
                o += [f"v_mul_f32 v{MEAN+2*i}, {1.0/640!r}, v{T+2*i}", f"v_mul_f32 v{T+2*i+1}, {1.0/640!r}, v{T+2*i+1}"]
            for i in range(4): o.append(f"v_fma_f32 v{T+2*i+1}, -v{MEAN+2*i}, v{MEAN+2*i}, v{T+2*i+1}")
            for i in range(4): o.append(f"v_max_f32 v{T+2*i+1}, 0, v{T+2*i+1}")
            for i in range(4): o.append(f"v_add_f32 v{T+2*i+1}, 0x3727c5ac, v{T+2*i+1}")
            for i in range(4): o.append(f"v_rcp_f32 v{RS2+2*i}, v{T+2*i+1}")
            return o
        P = Pacer(A)
        P.slack = 0.8
        w5a = self.w5_groups(0, 5, 'w5a')
        w5b = self.w5_groups(5, 10, 'w5b', region_a=True)
        for m in range(NPRE, 20):
            P.push(aload_groups(m), 19, None if m < D else f'it{m-D}', f'a{m}')
            if m >= 12 and m < 17: P.push(w5a[(m-12)*4:(m-11)*4], 19, 'w5ok', 'w5a')
        P.push(w5b, 19, 'w5a_read', 'w5b')
        A(f"s_mul_i32 {s(sT0)}, {s(sW)}, 20480")
        A(f"s_and_b32 {s(sT1)}, {s(sW)}, 1")
        A(f"s_lshl_b32 {s(sT1)}, {s(sT1)}, 1")
        self.tr_addrs(VTR3, s(sT0), perm_sgpr=sT1)
        def w5a_reads(mm):
            return [f"ds_read_b64_tr_b16 {a(W5A+mm*16+ct*4+2*h,2)}, v{VTR3+ct} offset:{mm*4096 + h*2048}" for ct in range(4) for h in range(2)]
        for m in range(20):
            buf = m & 1
            P.flush(f'a{m}')
            self.lstamp_pre(f'p4k{m}')
            A(f"WAITVM a{m} lgkmcnt(0)")
            self.lstamp_post()
            if m == 10:
                A("s_barrier")
                P.event('w5ok')
            side = []
            if m + 1 < 20:
                if (m + 1) in (8, 16):
                    side += [f"v_add_u32 v{VTR4+ct}, 65536, v{VTR4+ct}" for ct in range(4)]
                side += wreads(buf ^ 1, m + 1)
            if m == 3:
                A("WAITVM stat")
                side += stat_math()
            if m == 16:
                P.flush('w5a')
                A("WAITVM w5a")
            if m in (16, 17):
                for mm in (range(0, 3) if m == 16 else range(3, 5)): side += w5a_reads(mm)
            if m == 18: P.event('w5a_read')
            k = 0
            for n in range(32):
                i, sec, ct = n // 8, (n // 4) % 2, n % 4
                d = ACC + n*4
                P.emit(f"{MF} {v(d,4)}, {a(WF+buf*32+(sec*4+ct)*4,4)}, {a(AF+(m % D)*16+4*i,4)}, {'0' if m == 0 else v(d,4)}", feed=True)
                want = min(len(side), n + 1) if len(side) <= 28 else min(len(side), ((n + 1) * len(side) + 27) // 28)
                while k < want:
                    P.emit(side[k], feed=False); k += 1
            P.event(f'it{m}')
        P.flush('w5b')
        self.stamp('p4_loop')
        self.srd(SRD_B, P_WS, WS_HH, WS_HH_SZ)
        A(f"s_mul_i32 {s(sT0)}, {s(sTT4)}, 54")
        A(f"s_lshl_b32 {s(sT1)}, {s(sS4)}, 1")
        A(f"s_add_u32 {s(sT0)}, {s(sT0)}, {s(sT1)}")
        A(f"s_lshl_b32 {s(sK)}, {s(sT0)}, 10")
        A("v_lshlrev_b32 v6, 4, v1")
        body = []
        for i in range(4):
            for pair in range(2):
                P = T + 8 + ((i*2+pair) & 1) * 4
                for c in range(2):
                    ct = 2*pair + c
                    g = ACC + (i*8 + ct)*4; u = ACC + (i*8 + 4 + ct)*4
                    for p in range(2):
                        body.append(f"v_pk_fma_f32 {v(g+2*p,2)}, {v(CSR+4*ct+2*p,2)}, {v(MEAN+2*i,2)}, {v(g+2*p,2)} op_sel_hi:[1,0,1] neg_lo:[1,0,0] neg_hi:[1,0,0]")
                        body.append(f"v_pk_fma_f32 {v(u+2*p,2)}, {v(CSR+16+4*ct+2*p,2)}, {v(MEAN+2*i,2)}, {v(u+2*p,2)} op_sel_hi:[1,0,1] neg_lo:[1,0,0] neg_hi:[1,0,0]")
                    for r in range(4):
                        body.append(f"v_max_f32 v{g+r}, 0, v{g+r}")
                    for p in range(2):
                        body.append(f"v_pk_mul_f32 {v(u+2*p,2)}, {v(u+2*p,2)}, {v(RS2+2*i,2)} op_sel_hi:[1,0]")
                    for p in range(2):
                        body.append(f"v_pk_mul_f32 {v(g+2*p,2)}, {v(g+2*p,2)}, {v(u+2*p,2)}")
                    body.append(f"v_cvt_pk_bf16_f32 v{P+2*c}, v{g}, v{g+1}")
                    body.append(f"v_cvt_pk_bf16_f32 v{P+2*c+1}, v{g+2}, v{g+3}")
                body.append(f"buffer_store_dwordx4 {v(P,4)}, v6, {s(SRD_B,4)}, {s(sK)} offen offset:{pair*1024} sc1 ; @hh")
            if i < 3: body.append(f"s_add_u32 {s(sK)}, {s(sK)}, {54*1024}")
        for t in body: A(t)
        A("s_waitcnt vmcnt(0)")
        A("s_barrier")
        A(f"s_add_u32 {s(sT0)}, {s(sR4)}, {C_HH}")
        self.signal(sT0, 4)
        self.stamp('hh_sig')
        Lj = A.newlabel('p4join')
        A(f"s_branch {Lj}")
        A.label(Lend)
        A("s_waitcnt vmcnt(0)")
        A("s_barrier")
        self.emit_groups(self.w5_groups(0, 5, 'w5a'))
        A(f"s_mul_i32 {s(sT0)}, {s(sW)}, 20480")
        A(f"s_and_b32 {s(sT1)}, {s(sW)}, 1")
        A(f"s_lshl_b32 {s(sT1)}, {s(sT1)}, 1")
        self.tr_addrs(VTR3, s(sT0), perm_sgpr=sT1)
        A("s_waitcnt vmcnt(0)")
        for mm in range(5):
            for ct in range(4):
                for h in range(2):
                    A(f"ds_read_b64_tr_b16 {a(W5A+mm*16+ct*4+2*h,2)}, v{VTR3+ct} offset:{mm*4096 + h*2048}")
        A("s_waitcnt lgkmcnt(0)")
        self.emit_groups(self.w5_groups(5, 10, 'w5b', region_a=True))
        A("s_waitcnt vmcnt(0)")
        A.label(Lj)

    def p5(self):
        A = self.A
        Lend = A.newlabel('p5end')
        A(f"s_cmp_eq_u32 {s(sV3)}, 0")
        A(f"s_cbranch_scc1 {Lend}")
        ACC = 16
        AF = 112; D = 8
        self.emit_groups(self.w5_groups(10, 14, 'w5c'))
        for ct in range(4): A(f"v_add_u32 v{VTR4+ct}, 81920, v{VTR3+ct}")
        def w5reg(mm): return W5A + mm*16 if mm < 5 else (mm - 5)*16
        def w5reads(m0, m1):
            base = VTR4 if m0 >= 10 else VTR3
            for mm in range(m0, m1):
                for ct in range(4):
                    for h in range(2):
                        A(f"ds_read_b64_tr_b16 {a(w5reg(mm)+ct*4+2*h,2)}, v{base+ct} offset:{(mm-m0)*4096 + h*2048}")
        w5reads(5, 10)
        self.reduce_setup(232, 235)
        self.srd(SRD_A, P_WS, WS_HH, WS_HH_SZ)
        VA = 236
        A("v_lshlrev_b32 v2, 4, v1")
        A(f"s_lshr_b32 {s(sT0)}, {s(sW)}, 1")
        A(f"s_mul_i32 {s(sT0)}, {s(sT0)}, {3*54*1024}")
        for a_ in range(6):
            if a_ < 3: A(f"s_add_u32 {s(sT1)}, {s(sT0)}, {a_*54*1024}")
            else: A(f"s_sub_u32 {s(sT1)}, {a_*54*1024}, {s(sT0)}")
            A(f"v_add_u32 v{VA+a_}, {s(sT1)}, v2")
        A(f"s_mul_i32 {s(sT0)}, {s(sR3)}, {6*54}")
        A(f"s_mul_i32 {s(sT2)}, {s(sW)}, 14")
        A(f"s_add_u32 {s(sT0)}, {s(sT0)}, {s(sT2)}")
        A(f"s_lshl_b32 {s(sWA)}, {s(sT0)}, 10")
        A("WAITVM w5c")
        w5reads(10, 14)
        A("s_waitcnt lgkmcnt(0)")
        def setup():
            A(f"s_mul_i32 {s(sT0)}, {s(sR3)}, 6")
            A(f"s_lshr_b32 {s(sT1)}, {s(sT0)}, 4")
            A(f"s_add_u32 {s(sT0)}, {s(sT0)}, 5")
            A(f"s_min_u32 {s(sT0)}, {s(sT0)}, 127")
            A(f"s_lshr_b32 {s(sT0)}, {s(sT0)}, 4")
            A(f"v_add_u32 v2, {s(sT1)}, v1")
            A(f"v_min_u32 v2, {s(sT0)}, v2")
            A(f"v_add_u32 v2, {C_HH}, v2")
            A("v_lshlrev_b32 v2, 7, v2")
        self.stamp('w5_regs')
        self.poll(SRD_CNT, setup, 2, 27, 2)
        self.stamp('cHH')
        A(f"s_mul_i32 {s(sWB)}, {s(sW)}, 14")
        def aload_groups(n):
            ps, mm = divmod(n, 14)
            a0 = 3 if ps == 0 else 0
            pre = []
            if mm == 0: pre.append(f"s_mov_b32 {s(sK)}, {s(sWA)}")
            so = sK
            if mm >= 12:
                pre += [f"s_add_u32 {s(sK2)}, {s(sWB)}, {mm}", f"s_cmp_lt_u32 {s(sK2)}, 54",
                        f"s_cselect_b32 {s(sK2)}, {s(sK)}, {OOB}"]
                so = sK2
            gs = [[f"buffer_load_dwordx4 {v(AF+(n % D)*12+4*i,4)}, v{VA+a0+i}, {s(SRD_A,4)}, {s(so)} offen sc1 ; @b{n}"] for i in range(3)]
            gs[0] = pre + gs[0]
            gs[-1].append(f"s_add_u32 {s(sK)}, {s(sK)}, 1024")
            return gs
        NPRE = 6
        for n in range(NPRE): self.emit_groups(aload_groups(n))
        P = Pacer(A)
        P.slack = 0.6
        for n in range(NPRE, 28):
            P.push(aload_groups(n), 19, None if n < D else f'it{n-D}', f'b{n}')
        wr1 = self.reduce_writes(ACC, (2, 3))
        for n in range(28):
            ps, mm = divmod(n, 14)
            a0 = 3 if ps == 0 else 0
            P.flush(f'b{n}')
            A(f"WAITVM b{n}")
            k = 0
            for i in range(3):
                for b_ in (2, 3, 0, 1):
                    d = ACC + ((a0+i)*4+b_)*4
                    P.emit(f"{MF} {v(d,4)}, {a(w5reg(mm)+b_*4,4)}, {v(AF+(n % D)*12+4*i,4)}, {'0' if mm == 0 else v(d,4)}")
                    k += 1
                    if k == 6 and ps == 1 and 1 <= mm <= 12: P.emit(wr1[mm-1], feed=False)
            P.event(f'it{n}')
        self.stamp('p5_mfma')
        for t in self.reduce_writes(ACC, (1,)): A(t)
        self.srd(SRD_B, P_OUT, 0, 2048 * 1280)
        A("s_waitcnt lgkmcnt(0)")
        A("s_barrier")
        self.reduce_finish(ACC, 112)
        self.stamp('p5_red')
        T = 200
        A(f"s_mov_b32 {s(sT0)}, {s(sXO)}")
        for i in range(3):
            for c in range(2):
                o = ACC + (i*4+c)*4
                for hreg in range(2):
                    A(f"v_accvgpr_read_b32 v{T+2}, a{AHRES + 4*i + 2*c + hreg}")
                    A(f"v_lshlrev_b32 v{T}, 16, v{T+2}")
                    A(f"v_and_b32 v{T+1}, 0xffff0000, v{T+2}")
                    A(f"v_pk_add_f32 {v(o+2*hreg,2)}, {v(o+2*hreg,2)}, {v(T,2)}")
                A(f"v_cvt_pk_bf16_f32 v{o}, v{o}, v{o+1}")
                A(f"v_cvt_pk_bf16_f32 v{o+1}, v{o+2}, v{o+3}")
                A(f"buffer_store_dwordx2 {v(o,2)}, v{VXR}, {s(SRD_B,4)}, {s(sT0)} offen offset:{32*c}" + (" sc1" if 'outsc1' in self.exp else " nt" if 'outnt' in self.exp else ""))
            if i < 2: A(f"s_add_u32 {s(sT0)}, {s(sT0)}, {16*1280}")
        A.label(Lend)

    def finish(self):
        A = self.A
        if self.prof:
            A("s_waitcnt vmcnt(0)")
            self.stamp('end')
            self.dump_stamps()
        if 'hdbg' in self.exp:
            A("s_waitcnt vmcnt(0)")
            self.stamp('end')
            self.hreport()
        A.label("L_end")
        A("s_endpgm")

    def build(self):
        self.prologue()
        self.p1()
        if not getattr(self, 'early_exit', False):
            self.p2()
            self.p3()
            self.p4()
            self.p5()
            self.finish()
        else:
            self.A.label("L_end")
            self.A("s_endpgm")
        n = self.A.fix_hazards()
        hdr = open('cdna_kernels/' + NAME + '.s.ref').read().split('; Override launch')[0]
        out = hdr
        out += "; Override launch geometry by editing the next line.\n"
        out += f"; @launch grid=(256,1,1) block=(256,1,1) lds={LDS_BYTES}\n"
        out += '.amdgcn_target "amdgcn-amd-amdhsa--gfx950"\n.text\n'
        out += f".globl {KNAME}\n.p2align 8\n.type {KNAME},@function\n{KNAME}:\n"
        out += self.A.text()
        out += f""".section .rodata,"a"
.p2align 6
.amdhsa_kernel {KNAME}
  .amdhsa_next_free_vgpr 512
  .amdhsa_next_free_sgpr 102
  .amdhsa_accum_offset 256
  .amdhsa_group_segment_fixed_size 0
  .amdhsa_kernarg_size 80
  .amdhsa_user_sgpr_count 2
  .amdhsa_user_sgpr_kernarg_segment_ptr 1
  .amdhsa_system_sgpr_workgroup_id_x 1
.end_amdhsa_kernel
"""
        return out, n

sTT4 = 81
sLK, sLQ = 76, 77

def issued_at_zero(sig):
    return 99

if __name__ == '__main__':
    dbg = '--dbg' in sys.argv
    out = [a for a in sys.argv[1:] if not a.startswith('--')]
    g = G(dbg=dbg, prof='--prof' in sys.argv, exp=next((a.split('=')[1] for a in sys.argv if a.startswith('--exp=')), ''))
    txt, n = g.build()
    path = out[0] if out else 'k.s'
    open(path, 'w').write(txt)
    if g.prof: json.dump(g.stamps, open(path + '.stamps', 'w'))
    print('wrote', path, 'nops inserted', n, 'lines', txt.count('\n'))
```

```python
import sys, json
from asmlib import *

NAME = 'sequential_preLN__linear_attn_block__glu_gated_reglu__prompt'
KNAME = NAME + '_kernel'

WS_CNT, WS_CNT_SZ = 0x0, 0x8000
WS_ST2 = 0x4000
WS_KVF, WS_KVF_SZ = 0x10000, 8 * 16384
WS_HST, WS_HST_SZ = 0x40000, 128 * 20 * 128
WS_PART, WS_PART_SZ = 0x100000, 8 * 32 * 18 * 1024
WS_O, WS_O_SZ = 0x600000, 128 * 20 * 1024
WS_H, WS_H_SZ = 0x900000, 128 * 20 * 1024
WS_HH, WS_HH_SZ = 0xC00000, 128 * 54 * 1024
WS_DBG, WS_DBG_SZ = 0x1400000, 0x1000000
C_A, C_B, C_O, C_H, C_HH = 0, 8, 16, 48, 72
NZERO = 32
OOB = 0x7ff00000

JOBS = [(0,0),(0,1),(1,0),(1,1),(1,2),(2,1),(2,2),(2,3),(3,2),(3,3),(3,4),(4,3),(4,4)] + [(i,5) for i in range(5)]

SRD_X, SRD_W, SRD_W2, SRD_A, SRD_B, SRD_CNT, SRD_T, SRD_DBG = 4, 8, 12, 16, 20, 24, 28, 32
P_X, P_WQKV, P_WO, P_WG, P_WU, P_WD, P_OUT, P_DBG, P_WS = 40, 42, 44, 48, 50, 52, 54, 56, 58
sK2, sK3 = 46, 47
sW, sR, sG, sRHO, sXCD, sJ = 60, 61, 62, 63, 64, 65
sT0, sT1, sT2, sT3, sT4, sT5 = 66, 67, 68, 69, 70, 71
sWA, sWB, sK, sLD = 72, 73, 74, 75
sROT = 76
sMASK = 82
sC = 92
sC2 = 90
sC3, sR3, sV3, sR4, sS4, sV4, sTT, sXO = 94, 95, 96, 97, 98, 99, 100, 101
VSL = 252
VSLAB4, VXR = 8, 15
VTR3, VTR4 = 244, 248
AHRES = 240
AZERO = 253

LDS_BYTES = 163840
STAGE = 20480
def slot_of(sig): return (sig + 4) % 8
FR = 3 * STAGE
CS = FR + 22528
ST = CS + 1024
RED2 = 73728
RED3 = 90112
W4_E1, W4_E2 = 9, 11
W5A = 144
ACS = 232
MF = "v_mfma_f32_16x16x32_bf16"
LOG2E = 1.4426950408889634

def f32bits(x):
    import struct
    return struct.unpack('<I', struct.pack('<f', x))[0]

class G:
    def __init__(self, stop=None, dbg=False, prof=False, exp=''):
        self.exp = exp
        self.A = Asm(); self.stop = stop; self.dbg = dbg; self.prof = prof
        self.stamps = []

    def stamp(self, name):
        if 'hdbg' in self.exp:
            self.hstamp(name); return
        if not self.prof: return
        A = self.A
        i = len(self.stamps); self.stamps.append(name)
        A("s_memrealtime s[36:37]")
        A("s_memtime s[38:39]")
        A("v_accvgpr_read_b32 v7, a252" if i else "v_mov_b32 v7, 0")
        A("s_waitcnt lgkmcnt(0)")
        A(f"v_writelane_b32 v7, s36, {i}")
        A("v_accvgpr_write_b32 a252, v7")
        A("v_accvgpr_read_b32 v7, a254" if i else "v_mov_b32 v7, 0")
        A(f"v_writelane_b32 v7, s38, {i}")
        A("v_accvgpr_write_b32 a254, v7")

    HSTAMPS = ['start', 'x_landed', 'normed', 'p1a_loop', 'p1b_loop', 'cA', 'cB', 'o_sig', 'cO', 'h_sig', 'cH', 'p4_loop', 'cHH', 'p5_mfma', 'end']
    def hstamp(self, name):
        if name not in self.HSTAMPS: return
        A = self.A
        i = self.HSTAMPS.index(name)
        A("s_memrealtime s[36:37]")
        A("v_accvgpr_read_b32 v7, a252" if i else "v_mov_b32 v7, 0")
        A("s_waitcnt lgkmcnt(0)")
        A(f"v_writelane_b32 v7, s36, {i}")
        A("v_accvgpr_write_b32 a252, v7")
    def hreport(self):
        A = self.A
        L = A.newlabel('noh')
        A(f"s_cmp_lg_u32 {s(sW)}, 0")
        A(f"s_cbranch_scc1 {L}")
        A("v_accvgpr_read_b32 v7, a252")
        A("v_not_b32 v6, v7")
        A("v_cmp_eq_u32 vcc, 0, v1")
        A("v_cndmask_b32 v7, v7, v6, vcc")
        A("v_lshlrev_b32 v2, 2, v1")
        A("v_add_u32 v2, 4, v2")
        A("s_mov_b64 exec, 0x7fff")
        A(f"buffer_atomic_umax v7, v2, {s(SRD_DBG,4)}, 0 offen sc1")
        A("s_mov_b64 exec, -1")
        A.label(L)

    def lstamp_pre(self, name):
        if not (self.prof and 'fine' in self.exp): return
        self.A("s_memrealtime s[36:37]")
        self._ls = name
    def lstamp_post(self):
        if not (self.prof and 'fine' in self.exp): return
        i = len(self.stamps); self.stamps.append(self._ls)
        self.A("v_accvgpr_read_b32 v7, a252")
        self.A(f"v_writelane_b32 v7, s36, {i}")
        self.A("v_accvgpr_write_b32 a252, v7")

    def dump_stamps(self):
        A = self.A
        L = A.newlabel('nost')
        A(f"s_cmp_lg_u32 {s(sW)}, 0")
        A(f"s_cbranch_scc1 {L}")
        self.srd(SRD_T, P_WS, WS_DBG + 0x800000, 0x20000)
        A("v_accvgpr_read_b32 v7, a252")
        A("v_lshlrev_b32 v2, 2, v1")
        A(f"s_lshl_b32 {s(sT0)}, s2, 8")
        A(f"buffer_store_dword v7, v2, {s(SRD_T,4)}, {s(sT0)} offen")
        A("v_accvgpr_read_b32 v6, a254")
        A(f"s_add_u32 {s(sT0)}, {s(sT0)}, 0x10000")
        A(f"buffer_store_dword v6, v2, {s(SRD_T,4)}, {s(sT0)} offen")
        A.label(L)

    def srd_l(self, dst, ptr, off, size):
        out = []
        if off:
            out += [f"s_add_u32 {s(dst)}, {s(ptr)}, {off}", f"s_addc_u32 {s(dst+1)}, {s(ptr+1)}, 0"]
        else:
            out += [f"s_mov_b32 {s(dst)}, {s(ptr)}", f"s_mov_b32 {s(dst+1)}, {s(ptr+1)}"]
        out += [f"s_mov_b32 {s(dst+2)}, {size}", f"s_mov_b32 {s(dst+3)}, 0x20000"]
        return out
    def srd(self, dst, ptr, off, size):
        for t in self.srd_l(dst, ptr, off, size): self.A(t)

    def prologue(self):
        A = self.A
        A("s_cmp_ge_u32 s2, 256")
        A("s_cbranch_scc1 L_end")
        A("s_load_dwordx16 s[40:55], s[0:1], 0")
        A("s_load_dwordx4 s[56:59], s[0:1], 64")
        A("v_and_b32 v1, 63, v0")
        self.stamp('start')
        A("v_lshrrev_b32 v2, 6, v0")
        A(f"s_and_b32 {s(sXCD)}, s2, 7")
        A(f"v_readfirstlane_b32 {s(sW)}, v2")
        A(f"s_lshr_b32 {s(sJ)}, s2, 3")
        A(f"s_and_b32 {s(sRHO)}, {s(sJ)}, 7")
        A(f"s_lshr_b32 {s(sT0)}, {s(sXCD)}, 1")
        A(f"s_lshl_b32 {s(sT0)}, {s(sT0)}, 3")
        A(f"s_add_u32 {s(sR)}, {s(sT0)}, {s(sRHO)}")
        A(f"s_and_b32 {s(sT0)}, {s(sXCD)}, 1")
        A(f"s_lshl_b32 {s(sT0)}, {s(sT0)}, 2")
        A(f"s_lshr_b32 {s(sT1)}, {s(sJ)}, 3")
        A(f"s_add_u32 {s(sG)}, {s(sT0)}, {s(sT1)}")
        A(f"s_cmp_ge_u32 {s(sRHO)}, 5")
        A(f"s_cselect_b32 {s(sT0)}, 5, 0")
        A(f"s_sub_u32 {s(sRHO)}, {s(sRHO)}, {s(sT0)}")
        A(f"s_lshl_b32 {s(sRHO)}, {s(sRHO)}, 1")
        if 'rot0' in self.exp: A(f"s_mov_b32 {s(sRHO)}, 0")

    def code_prefetch(self):
        A = self.A
        A("s_getpc_b64 s[36:37]")
        A.label("L_pc0")
        A(f"s_lshl_b32 {s(sT0)}, {s(sJ)}, 2")
        A(f"s_add_u32 {s(sT0)}, {s(sT0)}, {s(sW)}")
        A(f"s_lshl_b32 {s(sT0)}, {s(sT0)}, 10")
        A(f"s_min_u32 {s(sT0)}, {s(sT0)}, L_end-L_pc0-1024")
        A(f"v_lshl_add_u32 v6, v1, 4, {s(sT0)}")
        A("global_load_dwordx4 a[244:247], v6, s[36:37]")

    def weight_prefetch(self, late=False):
        A = self.A
        if late:
            L = A.newlabel('nopf')
            A(f"s_cmp_eq_u32 {s(sW)}, 0")
            A(f"s_cbranch_scc1 {L}")
            for rep in range(2):
                A(f"s_mul_i32 {s(sT0)}, s2, 3")
                A(f"s_add_u32 {s(sT0)}, {s(sT0)}, {s(sW)}")
                A(f"s_add_u32 {s(sT0)}, {s(sT0)}, {768*rep - 1}" if rep else f"s_sub_u32 {s(sT0)}, {s(sT0)}, 1")
                self._pf_one(nocount=True)
            A.label(L)
            return
        A(f"s_lshl_b32 {s(sT0)}, s2, 2")
        A(f"s_add_u32 {s(sT0)}, {s(sT0)}, {s(sW)}")
        self._pf_one()

    def page_touch(self, wave_only=None):
        A = self.A
        L = A.newlabel('notouch')
        if wave_only is not None:
            A(f"s_cmp_lg_u32 {s(sW)}, {wave_only}")
            A(f"s_cbranch_scc1 {L}")
        A("v_lshlrev_b32 v6, 20, v1")
        A("s_mov_b64 exec, 0xfffff")
        A(f"global_load_dword a250, v6, s[{P_WS}:{P_WS+1}] ; @nocount")
        A("s_mov_b64 exec, 7")
        A(f"global_load_dword a250, v6, s[{P_OUT}:{P_OUT+1}] ; @nocount")
        A("s_mov_b64 exec, -1")
        A.label(L)

    def wqkv_prefetch(self):
        A = self.A
        A(f"s_lshl_b32 {s(sT0)}, s2, 2")
        A(f"s_add_u32 {s(sT0)}, {s(sT0)}, {s(sW)}")
        A(f"s_mul_i32 {s(sT0)}, {s(sT0)}, {19*128}")
        A(f"v_lshl_add_u32 v6, v1, 7, {s(sT0)}")
        A(f"v_min_u32 v6, {640*3840 - 128}, v6")
        A("s_mov_b64 exec, 0x7ffff")
        A(f"global_load_dword a249, v6, s[{P_WQKV}:{P_WQKV+1}]")
        A("s_mov_b64 exec, -1")

    def _pf_one(self, nocount=False):
        A = self.A
        A(f"s_mov_b32 s36, {s(P_WO)}")
        A(f"s_mov_b32 s37, {s(P_WO+1)}")
        A(f"s_mov_b32 {s(sT1)}, {640*1280 - 128}")
        for lo, ptr, size in ((100, P_WG, 640*3456), (370, P_WU, 640*3456), (640, P_WD, 1728*1280)):
            A(f"s_cmp_ge_u32 {s(sT0)}, {lo}")
            A(f"s_cselect_b32 s36, {s(ptr)}, s36")
            A(f"s_cselect_b32 s37, {s(ptr+1)}, s37")
            A(f"s_cselect_b32 {s(sT1)}, {size - 128}, {s(sT1)}")
        A(f"s_mov_b32 {s(sT2)}, 0")
        for lo in (100, 370, 640):
            A(f"s_cmp_ge_u32 {s(sT0)}, {lo}")
            A(f"s_cselect_b32 {s(sT2)}, {lo}, {s(sT2)}")
        A(f"s_sub_u32 {s(sT0)}, {s(sT0)}, {s(sT2)}")
        A(f"s_lshl_b32 {s(sT0)}, {s(sT0)}, 13")
        A(f"v_lshl_add_u32 v6, v1, 7, {s(sT0)}")
        A(f"v_min_u32 v6, {s(sT1)}, v6")
        A("global_load_dword a248, v6, s[36:37]" + (" ; @nocount" if nocount else ""))

    def zero_store(self):
        A = self.A
        L = A.newlabel('nz')
        A(f"s_cmp_ge_u32 s2, {NZERO}")
        A(f"s_cbranch_scc1 {L}")
        A(f"s_cmp_lg_u32 {s(sW)}, 3")
        A(f"s_cbranch_scc1 {L}")
        self.srd(SRD_CNT, P_WS, WS_CNT, WS_CNT_SZ)
        A("v_lshlrev_b32 v2, 4, v1")
        A(f"s_lshl_b32 {s(sT5)}, s2, 10")
        for i in range(4): A(f"v_mov_b32 v{4+i}, 0")
        A(f"buffer_store_dwordx4 v[4:7], v2, {s(SRD_CNT,4)}, {s(sT5)} offen sc1 ; @nocount")
        A.label(L)

    def zero_report(self):
        A = self.A
        L = A.newlabel('nzr')
        A(f"s_cmp_ge_u32 s2, {NZERO}")
        A(f"s_cbranch_scc1 {L}")
        A(f"s_cmp_lg_u32 {s(sW)}, 3")
        A(f"s_cbranch_scc1 {L}")
        A("v_mov_b32 v4, 1")
        A("v_mov_b32 v2, 0")
        A("s_mov_b64 exec, 1")
        A(f"buffer_atomic_add v4, v2, {s(SRD_DBG,4)}, 0 offen sc1 ; @nocount")
        A("s_mov_b64 exec, -1")
        A.label(L)

    def poll(self, srd, voff_setup, nlanes, target, tmp, barrier=True):
        A = self.A
        Lskip, Lp, Lgot = A.newlabel('pskip'), A.newlabel('poll'), A.newlabel('got')
        A(f"s_cmp_lg_u32 {s(sW)}, 0")
        A(f"s_cbranch_scc1 {Lskip}")
        voff_setup()
        A(f"s_mov_b64 exec, {(1 << nlanes) - 1}")
        A(f"s_mov_b32 {s(sT5)}, 0")
        A.label(Lp)
        A(f"buffer_load_dword v{tmp+1}, v{tmp}, {s(srd,4)}, 0 offen sc1 ; @nocount")
        A(f"s_add_u32 {s(sT5)}, {s(sT5)}, 1")
        A("s_waitcnt vmcnt(0)")
        A(f"v_cmp_gt_u32 vcc, {target}, v{tmp+1}")
        A(f"s_cbranch_vccz {Lgot}")
        A(f"s_cmp_lt_u32 {s(sT5)}, 0x40000")
        A(f"s_cbranch_scc1 {Lp}")
        A.label(Lgot)
        A("s_mov_b64 exec, -1")
        A.label(Lskip)
        if barrier: A("s_barrier")

    def signal(self, cidx_sgpr, tmp, wave=0):
        A = self.A
        L = A.newlabel('sig')
        A(f"s_cmp_lg_u32 {s(sW)}, {wave}")
        A(f"s_cbranch_scc1 {L}")
        A(f"s_lshl_b32 {s(sT5)}, {s(cidx_sgpr)}, 7")
        A(f"v_mov_b32 v{tmp}, {s(sT5)}")
        A(f"v_mov_b32 v{tmp+1}, 1")
        A("s_mov_b64 exec, 1")
        A(f"buffer_atomic_add v{tmp+1}, v{tmp}, {s(SRD_CNT,4)}, 0 offen sc1 ; @nocount")
        A("s_mov_b64 exec, -1")
        A.label(L)

    def p1(self):
        A = self.A
        XF = 16
        ACK, ACV = 96, 116
        INIT, SUM, GRAM, ONES = 136, 140, 144, 148
        KF = 152
        VTRW = 232
        VOW = 250; VOX = 255; VXA = 10
        VX = 240
        A(f"s_mov_b32 {s(sC2)}, 2048")
        A("v_lshrrev_b32 v2, 3, v1")
        A("v_and_b32 v3, 6, v2")
        A("v_and_b32 v4, 7, v1")
        A("v_xor_b32 v3, v3, v4")
        A("v_lshlrev_b32 v3, 4, v3")
        A("v_mul_u32_u24 v2, 1280, v2")
        A(f"v_add3_u32 v{VX}, v2, v3, {s(sC2)}")
        A(f"v_add_u32 v{VX+1}, {8*1280 - 1024}, v{VX}")
        A(f"v_subrev_u32 v{VX+2}, {2048 - 128}, v{VX}")
        A(f"v_add_u32 v{VX+3}, {8*1280 + 128 - 3072}, v{VX}")
        A(f"s_lshl_b32 {s(sT0)}, {s(sR)}, 6")
        A(f"s_lshl_b32 {s(sT1)}, {s(sW)}, 4")
        A(f"s_add_u32 {s(sT0)}, {s(sT0)}, {s(sT1)}")
        A(f"s_mul_i32 {s(sT3)}, {s(sT0)}, 1280")
        A(f"s_mul_i32 {s(sLD)}, {s(sW)}, {STAGE}")
        A(f"s_mov_b32 {s(sC)}, 6554")
        A(f"s_mov_b32 {s(sC+1)}, 3840")
        A("s_waitcnt lgkmcnt(0)")
        if 'startprof' in self.exp: self.stamp('karg')
        self.zero_store()
        if 'pfq' in self.exp: self.wqkv_prefetch()
        A(f"s_sub_u32 {s(SRD_X)}, {s(P_X)}, 2048")
        A(f"s_subb_u32 {s(SRD_X+1)}, {s(P_X+1)}, 0")
        A(f"s_mov_b32 {s(SRD_X+2)}, {2048 * 1280 + 2048}")
        A(f"s_mov_b32 {s(SRD_X+3)}, 0x20000")
        wv = []
        for i in range(5):
            wv += [f"v_add_u32 v2, {64*i}, v1", f"v_mul_lo_u32 v3, v2, {s(sC)}", "v_lshrrev_b32 v3, 16, v3",
                   "v_mul_u32_u24 v4, 10, v3", "v_sub_u32 v4, v2, v4", "v_and_b32 v5, 0x13, v3", "v_and_b32 v6, 4, v3",
                   "v_lshlrev_b32 v6, 1, v6", "v_and_b32 v7, 8, v3", "v_lshrrev_b32 v7, 1, v7", "v_or3_b32 v5, v5, v6, v7",
                   f"v_mul_lo_u32 v5, v5, {s(sC+1)}", f"v_lshl_add_u32 v{VOW+i}, v4, 4, v5"]
            if 1 <= i <= 3: wv.append(f"v_subrev_u32 v{VOW+i}, {1024*i}, v{VOW+i}")
        wv += self.srd_l(SRD_W, P_WQKV, 0, 640 * 3840)
        wv += [f"s_and_b32 {s(sT0)}, {s(sW)}, 1", f"s_mul_i32 {s(sT0)}, {s(sT0)}, {32*3840}", f"s_mul_i32 {s(sT1)}, {s(sG)}, 160",
               f"s_add_u32 {s(sWB)}, {s(sT0)}, {s(sT1)}", f"s_lshr_b32 {s(sT0)}, {s(sW)}, 1", f"s_add_u32 {s(sT2)}, {s(sT0)}, 1",
               f"s_mul_i32 {s(sT2)}, {s(sT2)}, 1280", f"s_add_u32 {s(sK)}, {s(sWB)}, {s(sT2)}",
               f"s_mul_i32 {s(sT0)}, {s(sT0)}, {64*3840}", f"s_add_u32 {s(sWB)}, {s(sWB)}, {s(sT0)}",
               f"s_add_u32 {s(sLK)}, {s(sK)}, {640*3840}", f"s_add_u32 {s(sLQ)}, {s(sWB)}, {640*3840}",
               f"s_mul_i32 {s(sT0)}, {s(sRHO)}, {64*3840}", f"s_add_u32 {s(sK)}, {s(sK)}, {s(sT0)}",
               f"s_add_u32 {s(sWB)}, {s(sWB)}, {s(sT0)}"]
        per = -(-len(wv) // 20)
        n = 0
        A(f"s_lshr_b32 {s(sT4)}, {s(sRHO)}, 1")
        A(f"s_sub_u32 {s(sT4)}, 5, {s(sT4)}")
        for q in range(5):
            A(f"s_cmp_ge_u32 {s(sT4)}, 5")
            A(f"s_cselect_b32 {s(sK2)}, 5, 0")
            A(f"s_sub_u32 {s(sT4)}, {s(sT4)}, {s(sK2)}")
            A(f"s_lshl_b32 {s(sK2)}, {s(sT4)}, 12")
            A(f"s_add_u32 m0, {s(sLD)}, {s(sK2)}")
            A(f"s_add_u32 {s(sT4)}, {s(sT4)}, 1")
            if q: A(f"s_add_u32 {s(sT3)}, {s(sT3)}, 256")
            for k in range(4):
                A(f"buffer_load_dwordx4 v{VX+k}, {s(SRD_X,4)}, {s(sT3)} offen offset:{k*1024} lds ; @x")
                for t in wv[n*per:(n+1)*per]: A(t)
                n += 1
        A(f"s_mul_i32 {s(sLD)}, {s(sW)}, 5120")
        if 'startprof' in self.exp:
            self.stamp('x_issued')
            A("s_waitcnt vmcnt(19)")
            self.stamp('x_first')
            A("s_waitcnt vmcnt(0)")
            self.stamp('x_all')

        def stage_dma(sig):
            so = sK if sig < 10 else sWB
            base = slot_of(sig)*STAGE
            gs = []
            for i in range(5):
                g = []
                if i == 0: g += [f"s_add_u32 m0, {s(sLD)}, {base}", "FILL"]
                if i == 4: g += [f"s_add_u32 m0, {s(sLD)}, {base + 4096}", "FILL"]
                g.append(f"buffer_load_dwordx4 v{VOW+i}, {s(SRD_W,4)}, {s(so)} offen" + (f" offset:{1024*i}" if 1 <= i <= 3 else "") + f" lds ; @st{sig}")
                if i == 4 and sig not in (9, 14):
                    lim = sLK if sig < 10 else sLQ
                    g += [f"s_add_u32 {s(so)}, {s(so)}, {(64 if sig < 10 else 128)*3840}", f"s_cmp_ge_u32 {s(so)}, {s(lim)}",
                          f"s_cselect_b32 {s(sK2)}, {640*3840}, 0", f"s_sub_u32 {s(so)}, {s(so)}, {s(sK2)}"]
                gs.append([x if x != "FILL" else "s_nop 0" for x in g])
            return gs
        if 'pfstart' in self.exp: self.weight_prefetch()
        self.code_prefetch()
        self.srd(SRD_CNT, P_WS, WS_CNT, WS_CNT_SZ)
        self.srd(SRD_DBG, P_DBG, 0, 256)
        self.srd(SRD_T, P_WS, WS_DBG, WS_DBG_SZ)
        A("v_bfe_u32 v2, v1, 2, 2")
        A("v_bfe_u32 v3, v1, 4, 1")
        A("v_lshl_add_u32 v2, v3, 2, v2")
        A("v_bfe_u32 v3, v1, 5, 1")
        A("v_lshl_add_u32 v2, v3, 4, v2")
        A("v_mul_u32_u24 v2, 160, v2")
        A("v_and_b32 v3, 3, v1")
        A(f"v_lshl_add_u32 v{VTRW}, v3, 3, v2")
        A(f"v_add_u32 v{VTRW+1}, {3*STAGE}, v{VTRW}")
        A(f"v_add_u32 v{VTRW+2}, {6*STAGE}, v{VTRW}")
        A("v_and_b32 v2, 15, v1")
        A("v_lshrrev_b32 v3, 3, v2")
        A("v_lshlrev_b32 v3, 10, v3")
        A("v_and_b32 v4, 7, v2")
        A("v_lshl_add_u32 v3, v4, 7, v3")
        A(f"s_mul_i32 {s(sT0)}, {s(sW)}, {STAGE}")
        A(f"v_add_u32 v3, {s(sT0)}, v3")
        A("v_and_b32 v4, 6, v2")
        A("v_lshrrev_b32 v5, 4, v1")
        A("v_xor_b32 v6, v5, v4")
        A(f"v_lshl_add_u32 v{VXA}, v6, 4, v3")
        A("v_or_b32 v5, 4, v5")
        A("v_xor_b32 v6, v5, v4")
        A(f"v_lshl_add_u32 v{VXA+1}, v6, 4, v3")
        for i in range(4):
            A(f"v_mov_b32 v{ONES+i}, 0x3f803f80")
            A(f"v_mov_b32 v{INIT+i}, 0x358637bd")
        A("v_and_b32 v3, 3, v1")
        A(f"v_cmp_eq_u32 {s(sMASK,2)}, 1, v3")
        A(f"v_cmp_eq_u32 {s(sMASK+2,2)}, 2, v3")
        A(f"v_cmp_eq_u32 {s(sMASK+4,2)}, 3, v3")
        A("v_bfe_u32 v3, v1, 2, 2")
        A("v_lshrrev_b32 v4, 4, v1")
        A(f"v_cmp_eq_u32 {s(sMASK+6,2)}, v3, v4")
        P = self.P = Pacer(A)
        for tk in self.exp.split(','):
            if tk.startswith('slack'): P.slack = float(tk[5:]) / 100
        for sig in range(15):
            need = None if sig < 4 else ('xfree' if sig < 8 else f'bar{sig-8}')
            for tk in self.exp.split(','):
                if tk.startswith('holdq') and sig >= 10 + int(tk[5:]): need = 'parted'
            P.push(stage_dma(sig), 30, need, f'st{sig}')
        if 'dmaonly' in self.exp:
            P.event('xfree')
            for k in range(10): P.event(f'bar{k}')
            A("WAITVM x")
            self.stamp('x_landed')
            for sig in range(15):
                P.flush(f'st{sig}')
                if sig in (3, 9):
                    A(f"WAITVM st{sig}")
                    self.stamp(f'st{sig}')
            A("s_waitcnt vmcnt(0)")
            self.stamp('all')
            self.dump_stamps()
            A("s_endpgm")
            self.early_exit = True
            return
        P.flush('st0')
        self.stamp('issued')
        A("WAITVM x")
        self.zero_report()
        self.stamp('x_landed')
        for m in range(8):
            A(f"ds_read_b128 {v(XF+4*m,4)}, v{VXA+(m&1)} offset:{(m>>1)*2048} ; @xf{m}")
        for m in range(20):
            xf = v(XF+4*m,4)
            if m % 2 == 0: P.emit(f"WAITLG xf{m+1}", feed=False)
            P.emit(f"{MF} {v(SUM,4)}, {v(ONES,4)}, {xf}, {'0' if m == 0 else v(SUM,4)}")
            if m + 8 < 20:
                P.emit(f"ds_read_b128 {v(XF+4*(m+8),4)}, v{VXA+(m&1)} offset:{((m+8)>>1)*2048} ; @xf{m+8}")
            P.emit(f"{MF} {v(GRAM,4)}, {xf}, {xf}, {'0' if m == 0 else v(GRAM,4)}")
        A("s_barrier")
        P.event('xfree')
        T = KF
        P.emit_all([f"v_cndmask_b32 v{T}, v{GRAM}, v{GRAM+1}, {s(sMASK,2)}",
            f"v_cndmask_b32 v{T}, v{T}, v{GRAM+2}, {s(sMASK+2,2)}",
            f"v_cndmask_b32 v{T}, v{T}, v{GRAM+3}, {s(sMASK+4,2)}",
            f"v_cndmask_b32 v{T}, 0, v{T}, {s(sMASK+6,2)}",
            f"v_mov_b32 v{T+1}, v{T}",
            f"v_mul_f32 v{T+2}, {1.0/640!r}, v{SUM}",
            f"v_permlane16_swap_b32 v{T}, v{T+1}",
            f"v_add_f32 v{T}, v{T}, v{T+1}",
            f"v_mov_b32 v{T+1}, v{T}",
            f"s_mov_b32 {s(sC)}, 0xffff0000",
            f"v_permlane32_swap_b32 v{T}, v{T+1}",
            f"v_add_f32 v{T}, v{T}, v{T+1}",
            f"v_mul_f32 v{T}, {1.0/640!r}, v{T}",
            f"v_fma_f32 v{T}, -v{T+2}, v{T+2}, v{T}",
            f"v_max_f32 v{T}, 0, v{T}",
            f"v_add_f32 v{T}, 0x3727c5ac, v{T}",
            f"v_rsq_f32 v{T+4}, v{T}",
            f"v_mul_f32 v{T+6}, v{T+2}, v{T+4}"])
        norm = []
        for r in range(80):
            x = XF + r; u = T + 8 + 2*(r & 3)
            norm.append([f"v_lshlrev_b32 v{u}, 16, v{x}", f"v_and_b32 v{u+1}, {s(sC)}, v{x}",
                         f"v_pk_fma_f32 {v(u,2)}, {v(u,2)}, {v(T+4,2)}, {v(T+6,2)} op_sel_hi:[1,0,0] neg_lo:[0,0,1] neg_hi:[0,0,1]",
                         f"v_cvt_pk_bf16_f32 v{x}, v{u}, v{u+1}"])
        for b in range(0, 80, 4):
            for k in range(4):
                for r in range(4): P.emit(norm[b+r][k])
        self.stamp('normed')

        def rd(buf, sec, j, sig, h, second):
            sl = slot_of(sig)
            dst = KF + buf*40 + sec*20 + j*4 + 2*second
            return f"ds_read_b64_tr_b16 {v(dst,2)}, v{VTRW + sl // 3} offset:{(sl % 3)*STAGE + (sec*2+h)*5120 + j*32 + second*1280} ; @r{2*sig+h}_{j}"
        def reads(buf, sig, h):
            return [rd(buf, sec, j, sig, h, sec2) for j in range(5) for sec in range(2) for sec2 in range(2)]
        def phase(buf, m, rds):
            first = (m == 0)
            xf = v(XF+4*m,4)
            for j in range(5):
                kf = v(KF+buf*40+j*4,4); vf = v(KF+buf*40+20+j*4,4)
                if j in (0, 3): P.emit(f"WAITLG r{m}_{2 if j == 0 else 4}", feed=False)
                P.emit(f"{MF} {v(ACK+4*j,4)}, {xf}, {kf}, {v(INIT,4) if first else v(ACK+4*j,4)}")
                P.emit_all(rds[4*j:4*j+2], feed=False)
                P.emit(f"{MF} {v(ACV+4*j,4)}, {xf}, {vf}, {'0' if first else v(ACV+4*j,4)}")
                P.emit_all(rds[4*j+2:4*j+4], feed=False)

        if 'pfnorm' in self.exp: self.weight_prefetch()
        P.flush('st0')
        A("WAITVM st0")
        A("s_barrier")
        for t in reads(0, 0, 0): A(t)
        for sig in range(10):
            phase(0, 2*sig, reads(1, sig, 1))
            for tk in self.exp.split(','):
                if tk == f'pfsig{sig}': self.weight_prefetch()
            if sig == 3:
                A("v_mov_b32 v2, 0")
                A(f"buffer_load_dword a{AZERO}, v2, {s(SRD_DBG,4)}, 0 offen sc1 ; @zero")
            if sig < 9:
                P.flush(f'st{sig+1}')
                A(f"WAITVM st{sig+1}")
            A("s_barrier")
            P.event(f'bar{sig-1}')
            phase(1, 2*sig+1, reads(0, sig + 1, 0) if sig < 9 else [])
        self.stamp('p1a_loop')

        T = KF
        VFR = T
        Y, E, PK = T + 4, T + 8, T + 12
        A(f"s_lshr_b32 {s(sT1)}, {s(sW)}, 1")
        A(f"s_lshl_b32 {s(sT1)}, {s(sT1)}, 10")
        A(f"s_add_u32 {s(sT0)}, {s(sT1)}, {FR + 20*1024}")
        A(f"v_lshl_add_u32 v5, v1, 4, {s(sT0)}")
        A(f"ds_write_b128 v5, {v(ONES,4)}")
        A(f"s_and_b32 {s(sT2)}, {s(sW)}, 1")
        A(f"s_lshl_b32 {s(sT2)}, {s(sT2)}, 3")
        A(f"s_add_u32 {s(sT1)}, {s(sT1)}, {s(sT2)}")
        A(f"s_add_u32 {s(sT1)}, {s(sT1)}, {FR}")
        A(f"v_lshl_add_u32 v{VFR}, v1, 4, {s(sT1)}")
        A(f"s_mov_b32 {s(sC2)}, {f32bits(LOG2E)}")
        A(f"s_mov_b32 {s(sC2+1)}, {f32bits(LOG2E)}")
        A(f"s_mov_b32 {s(sC)}, 0x358637bd")
        def phi_tile(acc, dst, E=E):
            out = []
            for p in range(2): out.append(f"v_pk_mul_f32 {v(E+2*p,2)}, {v(acc+2*p,2)}, {s(sC2,2)}")
            for r in range(4): out.append(f"v_exp_f32 v{E+r}, v{E+r} clamp")
            for r in range(4): out.append(f"v_max_f32 v{acc+r}, {s(sC)}, v{acc+r}")
            for p in range(2): out.append(f"v_pk_add_f32 {v(acc+2*p,2)}, {v(acc+2*p,2)}, {v(E+2*p,2)}")
            out.append(f"v_cvt_pk_bf16_f32 v{dst}, v{acc}, v{acc+1}")
            out.append(f"v_cvt_pk_bf16_f32 v{dst+1}, v{acc+2}, v{acc+3}")
            return out
        self.phi_tile = phi_tile
        for j in range(5):
            b = PK + 4*(j & 1)
            P.emit(f"v_cvt_pk_bf16_f32 v{b+2}, v{ACV+4*j}, v{ACV+4*j+1}")
            P.emit(f"v_cvt_pk_bf16_f32 v{b+3}, v{ACV+4*j+2}, v{ACV+4*j+3}")
            P.emit(f"ds_write_b64 v{VFR}, {v(b+2,2)} offset:{5*2048 + j*2048}")
            P.emit_all(phi_tile(ACK+4*j, b))
            P.emit(f"ds_write_b64 v{VFR}, {v(b,2)} offset:{j*2048}")
        ia = sum(JOBS[k][0] << (3*k) for k in range(18))
        ib = sum(JOBS[k][1] << (3*k) for k in range(18))
        self.srd(SRD_B, P_WS, WS_PART, WS_PART_SZ)
        A(f"s_lshl_b32 {s(sT4)}, {s(sG)}, 5")
        A(f"s_add_u32 {s(sT4)}, {s(sT4)}, {s(sR)}")
        A(f"s_mul_i32 {s(sT4)}, {s(sT4)}, {18*1024}")
        A("v_lshlrev_b32 v2, 4, v1")
        JADDR = T + 20
        A(f"s_mul_i32 {s(sT1)}, {s(sW)}, 3")
        A(f"s_mov_b32 {s(sC)}, {ia & 0xffffffff}")
        A(f"s_mov_b32 {s(sC+1)}, {ia >> 32}")
        A(f"s_lshr_b64 {s(sC,2)}, {s(sC,2)}, {s(sT1)}")
        A(f"s_mov_b32 {s(sC2)}, {ib & 0xffffffff}")
        A(f"s_mov_b32 {s(sC2+1)}, {ib >> 32}")
        A(f"s_lshr_b64 {s(sC2,2)}, {s(sC2,2)}, {s(sT1)}")
        for q in range(5):
            A(f"s_and_b32 {s(sT2)}, {s(sC)}, 7")
            A(f"s_and_b32 {s(sT3)}, {s(sC2)}, 7")
            A(f"s_lshl_b32 {s(sT2)}, {s(sT2)}, 11")
            A(f"s_lshl_b32 {s(sT3)}, {s(sT3)}, 11")
            A(f"s_add_u32 {s(sT2)}, {s(sT2)}, {FR}")
            A(f"s_add_u32 {s(sT3)}, {s(sT3)}, {FR + 5*2048}")
            A(f"v_add_u32 v{JADDR+2*q}, {s(sT2)}, v2")
            A(f"v_add_u32 v{JADDR+2*q+1}, {s(sT3)}, v2")
            if q < 4:
                A(f"s_lshr_b64 {s(sC,2)}, {s(sC,2)}, 12")
                A(f"s_lshr_b64 {s(sC2,2)}, {s(sC2,2)}, 12")
        A("s_waitcnt lgkmcnt(0)")
        A("s_barrier")
        JF = T + 32
        JD = 96
        def jreads(q, base):
            return [f"ds_read_b128 {v(base,4)}, v{JADDR+2*q}", f"ds_read_b128 {v(base+4,4)}, v{JADDR+2*q+1}",
                    f"ds_read_b128 {v(base+8,4)}, v{JADDR+2*q} offset:1024", f"ds_read_b128 {v(base+12,4)}, v{JADDR+2*q+1} offset:1024"]
        for q in range(3):
            for t in jreads(q, JF + 16*q): A(t)
        A(f"s_lshl_b32 {s(sT0)}, {s(sW)}, 10")
        A(f"s_add_u32 {s(sT0)}, {s(sT0)}, {s(sT4)}")
        for q in range(5):
            b = JF + 16*(q % 3)
            A(f"s_waitcnt lgkmcnt({min(8, 4*(min(q+3,5)-q-1))})")
            A(f"{MF} {v(JD+4*q,4)}, {v(b,4)}, {v(b+4,4)}, 0")
            A(f"{MF} {v(JD+4*q,4)}, {v(b+8,4)}, {v(b+12,4)}, {v(JD+4*q,4)}")
            if q + 3 < 5:
                for t in jreads(q + 3, b): A(t)
        for q in range(5):
            if q == 4:
                A(f"s_cmp_lt_u32 {s(sW)}, 2")
                A(f"s_cselect_b32 {s(sT0)}, {s(sT0)}, {OOB}")
            A(f"buffer_store_dwordx4 {v(JD+4*q,4)}, v2, {s(SRD_B,4)}, {s(sT0)} offen sc1 ; @part")
            if q < 4: A(f"s_add_u32 {s(sT0)}, {s(sT0)}, 4096")
        self.stamp('p1a_epi')

        ACQ = 116
        QF = KF
        def rdq(buf, j, ks, second):
            sl = slot_of(10 + ks // 4)
            return f"ds_read_b64_tr_b16 {v(QF+buf*20+j*4+2*second,2)}, v{VTRW + sl // 3} offset:{(sl % 3)*STAGE + (ks % 4)*5120 + j*32 + second*1280} ; @q{ks}_{j}"
        def readsq(buf, ks): return [rdq(buf, j, ks, sec2) for j in range(5) for sec2 in range(2)]
        def mfq(buf, m):
            return [f"{MF} {v(ACQ+4*j,4)}, {v(QF+buf*20+j*4,4)}, {v(XF+4*m,4)}, {v(INIT,4) if m == 0 else v(ACQ+4*j,4)}" for j in range(5)]
        P.event('bar8'); P.event('bar9'); P.event('parted')
        P.flush('st11')
        A("WAITVM st11")
        A("s_barrier")
        for t in readsq(0, 0): A(t)
        self.map_p3()
        P.push(self.w3_groups(), 19, 'w3ok', 'w3')
        for ks in range(20):
            if ks in (7, 11, 15):
                P.flush(f'st{12 + (ks - 7)//4}')
                A(f"WAITVM st{12 + (ks - 7)//4}" + (" lgkmcnt(0)" if ks == 7 else ""))
                A("s_barrier")
                if ks == 7: P.event('w3ok')
            if ks == 4:
                A("WAITVM part")
                A("s_barrier")
                self.check_zero_done()
                A(f"s_add_u32 {s(sT0)}, {s(sG)}, {C_A}")
                self.signal(sT0, 2)
            if ks == 5 and 'pflate' in self.exp: self.weight_prefetch(late=True)
            rd_ = readsq((ks+1) & 1, ks+1) if ks < 19 else []
            for j, t in enumerate(mfq(ks & 1, ks)):
                if j in (0, 3): P.emit(f"WAITLG q{ks}_{2 if j == 0 else 4}", feed=False)
                P.emit(t)
                P.emit_all(rd_[2*j:2*j+2], feed=False)
        P.flush('w3')
        self.ACQ = ACQ
        self.stamp('p1b_loop')

    def check_zero_done(self):
        A = self.A
        L = A.newlabel('zok')
        A(f"v_accvgpr_read_b32 v2, a{AZERO}")
        A("s_nop 0")
        A(f"v_readfirstlane_b32 {s(sT0)}, v2")
        A(f"s_cmp_ge_u32 {s(sT0)}, {NZERO}")
        A(f"s_cbranch_scc1 {L}")
        self.poll(SRD_DBG, lambda: A("v_mov_b32 v2, 0"), 1, NZERO, 2, barrier=False)
        A.label(L)

    def q_epilogue(self):
        A = self.A
        PQ = self.PQ = 232
        A(f"s_mov_b32 {s(sC2)}, {f32bits(LOG2E)}")
        A(f"s_mov_b32 {s(sC2+1)}, {f32bits(LOG2E)}")
        A(f"s_mov_b32 {s(sC)}, 0x358637bd")
        for j in range(5):
            for t in self.phi_tile(self.ACQ+4*j, PQ+2*j, E=200 + 4*(j & 1)): A(t)
        A(f"v_mov_b32 v{PQ+10}, 0")
        A(f"v_mov_b32 v{PQ+11}, 0")
        if self.dbg:
            A(f"s_lshl_b32 {s(sT0)}, s2, 2")
            A(f"s_add_u32 {s(sT0)}, {s(sT0)}, {s(sW)}")
            A(f"s_mul_i32 {s(sT0)}, {s(sT0)}, {5*512}")
            A("v_lshlrev_b32 v2, 3, v1")
            for j in range(5):
                A(f"buffer_store_dwordx2 {v(PQ+2*j,2)}, v2, {s(SRD_T,4)}, {s(sT0)} offen offset:{j*512}")

    def map_p3(self):
        A = self.A
        if 'map3rows' in self.exp:
            A(f"s_mul_i32 {s(sT1)}, {s(sJ)}, 26")
            A(f"s_lshr_b32 {s(sT1)}, {s(sT1)}, 8")
            A(f"s_mul_i32 {s(sT2)}, {s(sT1)}, 10")
            A(f"s_sub_u32 {s(sC3)}, {s(sJ)}, {s(sT2)}")
            A(f"s_mul_i32 {s(sT2)}, {s(sXCD)}, 3")
            A(f"s_cmp_eq_u32 {s(sXCD)}, 7")
            A(f"s_cselect_b32 {s(sT3)}, 1, 0")
            A(f"s_sub_u32 {s(sT2)}, {s(sT2)}, {s(sT3)}")
            A(f"s_add_u32 {s(sR3)}, {s(sT2)}, {s(sT1)}")
            A(f"s_cmp_ge_u32 {s(sXCD)}, 6")
            A(f"s_cselect_b32 {s(sT3)}, 2, 3")
            A(f"s_cmp_lt_u32 {s(sT1)}, {s(sT3)}")
            A(f"s_cselect_b32 {s(sV3)}, 1, 0")
        else:
            A(f"s_lshr_b32 {s(sT0)}, {s(sXCD)}, 1")
            A(f"s_mul_i32 {s(sT1)}, {s(sJ)}, 52")
            A(f"s_lshr_b32 {s(sT1)}, {s(sT1)}, 8")
            A(f"s_mul_i32 {s(sT2)}, {s(sT1)}, 5")
            A(f"s_sub_u32 {s(sT2)}, {s(sJ)}, {s(sT2)}")
            A(f"s_and_b32 {s(sT3)}, {s(sXCD)}, 1")
            A(f"s_mul_i32 {s(sT3)}, {s(sT3)}, 5")
            A(f"s_add_u32 {s(sC3)}, {s(sT2)}, {s(sT3)}")
            A(f"s_mul_i32 {s(sT2)}, {s(sT0)}, 6")
            A(f"s_cmp_eq_u32 {s(sT0)}, 3")
            A(f"s_cselect_b32 {s(sT3)}, 1, 0")
            A(f"s_sub_u32 {s(sT2)}, {s(sT2)}, {s(sT3)}")
            A(f"s_add_u32 {s(sR3)}, {s(sT2)}, {s(sT1)}")
            A(f"s_cmp_ge_u32 {s(sT0)}, 2")
            A(f"s_cselect_b32 {s(sT3)}, 5, 6")
            A(f"s_cmp_lt_u32 {s(sT1)}, {s(sT3)}")
            A(f"s_cselect_b32 {s(sV3)}, 1, 0")
        A(f"s_lshr_b32 {s(sT0)}, {s(sXCD)}, 2")
        A(f"s_lshl_b32 {s(sT0)}, {s(sT0)}, 2")
        A(f"s_and_b32 {s(sT1)}, {s(sJ)}, 3")
        A(f"s_add_u32 {s(sR4)}, {s(sT0)}, {s(sT1)}")
        A(f"s_and_b32 {s(sT0)}, {s(sXCD)}, 3")
        A(f"s_lshr_b32 {s(sT1)}, {s(sJ)}, 2")
        A(f"s_mul_i32 {s(sT2)}, {s(sT0)}, 7")
        A(f"s_add_u32 {s(sS4)}, {s(sT2)}, {s(sT1)}")
        A(f"s_cmp_eq_u32 {s(sT0)}, 3")
        A(f"s_cselect_b32 {s(sT2)}, 6, 7")
        A(f"s_cmp_lt_u32 {s(sT1)}, {s(sT2)}")
        A(f"s_cselect_b32 {s(sV4)}, 1, 0")

    def slab_voffset_l(self, dst, rowstride, n=1):
        o = ["v_lshrrev_b32 v2, 3, v1", "v_bfe_u32 v3, v1, 4, 2", "v_lshlrev_b32 v3, 1, v3", "v_and_b32 v4, 7, v1",
             "v_xor_b32 v3, v3, v4", "v_lshlrev_b32 v3, 4, v3", f"v_mul_u32_u24 v2, {rowstride}, v2",
             f"v_add_u32 v{dst}, v2, v3"]
        for k in range(1, n): o.append(f"v_add_u32 v{dst+k}, {k*(8*rowstride - 1024)}, v{dst}")
        return o

    def tr_addrs4(self, dst):
        A = self.A
        A("v_bfe_u32 v2, v1, 2, 2")
        A("v_lshrrev_b32 v3, 4, v1")
        A("v_lshl_add_u32 v2, v3, 2, v2")
        A("v_bfe_u32 v3, v2, 1, 2")
        A("v_and_b32 v4, 3, v1")
        A("v_lshlrev_b32 v4, 3, v4")
        A("v_and_b32 v5, 7, v2")
        A("v_lshl_add_u32 v4, v5, 7, v4")
        A("v_lshrrev_b32 v5, 3, v2")
        A("v_lshl_add_u32 v2, v5, 11, v4")
        for ct in range(4):
            A(f"v_xor_b32 v4, {ct}, v3")
            A(f"v_lshl_add_u32 v{dst+ct}, v4, 5, v2")

    def tr_addrs(self, dst, base, perm_sgpr=None):
        A = self.A
        A("v_bfe_u32 v2, v1, 2, 2")
        A("v_lshrrev_b32 v3, 4, v1")
        A("v_lshl_add_u32 v2, v3, 2, v2")
        A("v_bfe_u32 v3, v2, 1, 2")
        A("v_and_b32 v4, 3, v1")
        A("v_lshlrev_b32 v4, 3, v4")
        A("v_lshl_add_u32 v2, v2, 7, v4")
        A(f"v_add_u32 v2, {base}, v2")
        if perm_sgpr is not None: A(f"v_xor_b32 v3, {s(perm_sgpr)}, v3")
        for ct in range(4):
            A(f"v_xor_b32 v4, {ct}, v3")
            A(f"v_lshl_add_u32 v{dst+ct}, v4, 5, v2")

    def slab4(self, srd, so, lds_sgpr, lds_off, rowstride, tag):
        gs = []
        for k in range(4):
            g = [f"s_add_u32 m0, {s(lds_sgpr)}, {lds_off}", "s_nop 0"] if k == 0 else []
            g.append(f"buffer_load_dwordx4 v{VSL+k}, {s(srd,4)}, {s(so)} offen" + (f" offset:{k*1024}" if k else "") + f" lds ; @{tag}")
            if k == 3: g.append(f"s_add_u32 {s(so)}, {s(so)}, {32*rowstride}")
            gs.append(g)
        return gs

    def w3_groups(self):
        pre = self.slab_voffset_l(VSL, 1280, 4) + self.srd_l(SRD_W2, P_WO, 0, 640 * 1280) + [
            f"s_mul_i32 {s(sK2)}, {s(sW)}, {160*1280}", f"s_lshl_b32 {s(sK3)}, {s(sC3)}, 7",
            f"s_add_u32 {s(sK2)}, {s(sK2)}, {s(sK3)}",
            f"s_cmp_eq_u32 {s(sV3)}, 0", f"s_cselect_b32 {s(sK2)}, {OOB}, {s(sK2)}",
            f"s_add_u32 {s(sK3)}, {s(sW)}, 4", f"s_mul_i32 {s(sK3)}, {s(sK3)}, {STAGE}"]
        gs = []
        for mm in range(5): gs += self.slab4(SRD_W2, sK2, sK3, mm*4096, 1280, 'w3')
        gs[0] = pre + gs[0]
        return gs

    def w4_groups(self, m0, m1):
        pre = [f"s_lshl_b32 {s(sK2)}, {s(sW)}, 3", f"s_add_u32 {s(sK2)}, {s(sK2)}, {32*m0}",
               f"s_mul_i32 {s(sK2)}, {s(sK2)}, 3456", f"s_lshl_b32 {s(sK3)}, {s(sS4)}, 7",
               f"s_add_u32 {s(sK2)}, {s(sK2)}, {s(sK3)}",
               f"s_cmp_eq_u32 {s(sV4)}, 0", f"s_cselect_b32 {s(sK2)}, {OOB}, {s(sK2)}",
               f"s_lshl_b32 {s(sK3)}, {s(sW)}, 11"]
        gs = []
        for m in range(m0, m1):
            gs.append((pre if m == m0 else []) + [f"s_add_u32 m0, {s(sK3)}, {m*8192}", "s_nop 0",
                      f"buffer_load_dwordx4 v{VSLAB4}, {s(SRD_W,4)}, {s(sK2)} offen lds ; @w4"])
            gs.append([f"buffer_load_dwordx4 v{VSLAB4}, {s(SRD_W2,4)}, {s(sK2)} offen offset:1024 lds ; @w4",
                      f"s_add_u32 {s(sK2)}, {s(sK2)}, {32*3456}"])
        return gs

    def w5_groups(self, m0, m1, tag, region_a=None):
        base = 81920 if m0 >= 10 else 0
        pre = []
        if m0 == 0:
            pre += self.srd_l(SRD_W, P_WD, 0, 1728 * 1280)
        pre += [f"s_mul_i32 {s(sK2)}, {s(sW)}, 14", f"s_add_u32 {s(sK2)}, {s(sK2)}, {m0}",
                f"s_mul_i32 {s(sK2)}, {s(sK2)}, {32*1280}", f"s_lshl_b32 {s(sK3)}, {s(sC3)}, 7",
                f"s_add_u32 {s(sK2)}, {s(sK2)}, {s(sK3)}",
                f"s_cmp_eq_u32 {s(sV3)}, 0", f"s_cselect_b32 {s(sK2)}, {OOB}, {s(sK2)}",
                f"s_mul_i32 {s(sK3)}, {s(sW)}, 20480"]
        gs = []
        for mm in range(m0, m1): gs += self.slab4(SRD_W, sK2, sK3, base + (mm-m0)*4096, 1280, tag)
        gs[0] = pre + gs[0]
        return gs

    def colsum_part(self, m0, m1, VB, TMP):
        A = self.A
        A("v_bfe_u32 v2, v1, 2, 2")
        A("v_lshrrev_b32 v3, 4, v1")
        A("v_lshl_add_u32 v2, v3, 2, v2")
        A("v_bfe_u32 v3, v2, 1, 2")
        A(f"v_xor_b32 v3, {s(sW)}, v3")
        A("v_and_b32 v4, 3, v1")
        A("v_lshlrev_b32 v4, 3, v4")
        A("v_and_b32 v5, 7, v2")
        A("v_lshl_add_u32 v4, v5, 7, v4")
        A("v_lshrrev_b32 v5, 3, v2")
        A("v_lshl_add_u32 v2, v5, 11, v4")
        A(f"v_lshl_add_u32 v{VB}, v3, 5, v2")
        if m0: A(f"v_add_u32 v{VB}, {m0*8192}, v{VB}")
        for i in range(4): A(f"v_mov_b32 v{TMP+i}, 0x3f803f80")
        NB = 3
        def rd(m):
            k = m - m0; b = TMP + 4 + (k % NB) * 8
            pre = [f"v_add_u32 v{VB}, 57344, v{VB}"] if (k and k % 7 == 0) else []
            return pre + [f"ds_read_b64_tr_b16 {v(b+sec*4+2*h,2)}, v{VB} offset:{(k % 7)*8192 + sec*1024 + h*4096}" for sec in range(2) for h in range(2)]
        for m in range(m0, min(m0 + NB - 1, m1)):
            for t in rd(m): A(t)
        for m in range(m0, m1):
            if m + NB - 1 < m1:
                for t in rd(m + NB - 1): A(t)
            A(f"s_waitcnt lgkmcnt({4*min(NB - 1, m1 - 1 - m)})")
            b = TMP + 4 + ((m - m0) % NB) * 8
            for sec in range(2):
                A(f"{MF} {a(ACS+4*sec,4)}, {v(b+sec*4,4)}, {v(TMP,4)}, {'0' if m == 0 else a(ACS+4*sec,4)}")

    def emit_groups(self, gs):
        for g in gs:
            for t in g: self.A(t)

    def p2(self):
        A = self.A
        ti = sum(JOBS[k][0] << (3*k) for k in range(13))
        tj = sum(JOBS[k][1] << (3*k) for k in range(13))
        A(f"s_min_u32 {s(sT3)}, {s(sR)}, 17")
        A(f"s_min_u32 {s(sT0)}, {s(sR)}, 13")
        A(f"s_mul_i32 {s(sT0)}, {s(sT0)}, 3")
        A(f"s_mov_b32 {s(sC)}, {ti & 0xffffffff}")
        A(f"s_mov_b32 {s(sC+1)}, {ti >> 32}")
        A(f"s_lshr_b64 {s(sC,2)}, {s(sC,2)}, {s(sT0)}")
        A(f"s_and_b32 {s(sT1)}, {s(sC)}, 7")
        A(f"s_mov_b32 {s(sC)}, {tj & 0xffffffff}")
        A(f"s_mov_b32 {s(sC+1)}, {tj >> 32}")
        A(f"s_lshr_b64 {s(sC,2)}, {s(sC,2)}, {s(sT0)}")
        A(f"s_and_b32 {s(sT2)}, {s(sC)}, 7")
        self.srd(SRD_A, P_WS, WS_PART, WS_PART_SZ)
        A(f"s_lshl_b32 {s(sT4)}, {s(sG)}, 5")
        A(f"s_lshl_b32 {s(sT0)}, {s(sW)}, 3")
        A(f"s_add_u32 {s(sT4)}, {s(sT4)}, {s(sT0)}")
        A(f"s_mul_i32 {s(sT4)}, {s(sT4)}, 18")
        A(f"s_add_u32 {s(sT4)}, {s(sT4)}, {s(sT3)}")
        A(f"s_lshl_b32 {s(sK)}, {s(sT4)}, 10")
        A(f"s_mov_b32 {s(sC)}, 3277")
        A("v_and_b32 v3, 15, v1")
        A(f"s_lshl_b32 {s(sT0)}, {s(sT2)}, 4")
        A(f"v_add_u32 v3, {s(sT0)}, v3")
        A(f"v_mul_lo_u32 v3, v3, {s(sC)}")
        A("v_lshrrev_b32 v3, 16, v3")
        A("v_lshrrev_b32 v4, 4, v1")
        A(f"s_lshl_b32 {s(sT0)}, {s(sT1)}, 4")
        A(f"v_lshl_add_u32 v4, v4, 2, {s(sT0)}")
        for r in range(4):
            A(f"v_add_u32 v5, {r}, v4")
            A(f"v_mul_lo_u32 v5, v5, {s(sC)}")
            A("v_lshrrev_b32 v5, 16, v5")
            A(f"v_cmp_eq_u32 {s(sMASK+2*r,2)}, v5, v3")
        A(f"s_cmp_ge_u32 {s(sR)}, 13")
        for r in range(4): A(f"s_cselect_b64 {s(sMASK+2*r,2)}, -1, {s(sMASK+2*r,2)}")
        def setupA():
            A(f"s_add_u32 {s(sT0)}, {s(sG)}, {C_A}")
            A(f"s_lshl_b32 {s(sT0)}, {s(sT0)}, 7")
            A(f"v_mov_b32 v2, {s(sT0)}")
        self.poll(SRD_CNT, setupA, 1, 32, 2)
        self.stamp('cA')
        T = 164
        A("v_lshlrev_b32 v6, 4, v1")
        for k in range(8):
            A(f"buffer_load_dwordx4 {v(T+4*k,4)}, v6, {s(SRD_A,4)}, {s(sK)} offen sc1")
            if k < 7: A(f"s_add_u32 {s(sK)}, {s(sK)}, {18*1024}")
        self.q_epilogue()
        self.stamp('q_epi')
        A("s_waitcnt vmcnt(0)")
        for k in (4, 2, 1):
            for b in range(k):
                for p in range(2):
                    A(f"v_pk_add_f32 {v(T+4*b+2*p,2)}, {v(T+4*b+2*p,2)}, {v(T+4*(b+k)+2*p,2)}")
        A(f"s_lshl_b32 {s(sT0)}, {s(sW)}, 10")
        A(f"s_add_u32 {s(sT0)}, {s(sT0)}, {RED2}")
        A(f"v_add_u32 v3, {s(sT0)}, v6")
        A(f"ds_write_b128 v3, {v(T,4)}")
        A("s_waitcnt lgkmcnt(0)")
        A("s_barrier")
        Lr = A.newlabel('red')
        A(f"s_cmp_lg_u32 {s(sW)}, 0")
        A(f"s_cbranch_scc1 {Lr}")
        A(f"v_add_u32 v3, {RED2}, v6")
        for k in range(4):
            A(f"ds_read_b128 {v(T+4*k,4)}, v3 offset:{k*1024}")
        self.srd(SRD_B, P_WS, WS_KVF, WS_KVF_SZ)
        A(f"s_lshl_b32 {s(sT0)}, {s(sG)}, 14")
        A(f"s_lshl_b32 {s(sT1)}, {s(sR)}, 9")
        A(f"s_add_u32 {s(sT0)}, {s(sT0)}, {s(sT1)}")
        A(f"s_cmp_lt_u32 {s(sR)}, 18")
        A(f"s_cselect_b32 {s(sT0)}, {s(sT0)}, {OOB}")
        A("v_lshlrev_b32 v5, 3, v1")
        A("s_waitcnt lgkmcnt(0)")
        for p in range(2):
            A(f"v_pk_add_f32 {v(T+2*p,2)}, {v(T+2*p,2)}, {v(T+4+2*p,2)}")
            A(f"v_pk_add_f32 {v(T+8+2*p,2)}, {v(T+8+2*p,2)}, {v(T+12+2*p,2)}")
        for p in range(2):
            A(f"v_pk_add_f32 {v(T+2*p,2)}, {v(T+2*p,2)}, {v(T+8+2*p,2)}")
        for r in range(4):
            A(f"v_cndmask_b32 v{T+r}, 0, v{T+r}, {s(sMASK+2*r,2)}")
        A(f"v_cvt_pk_bf16_f32 v{T}, v{T}, v{T+1}")
        A(f"v_cvt_pk_bf16_f32 v{T+1}, v{T+2}, v{T+3}")
        A(f"buffer_store_dwordx2 {v(T,2)}, v5, {s(SRD_B,4)}, {s(sT0)} offen sc1 ; @nocount")
        A("s_waitcnt vmcnt(0)")
        A(f"s_add_u32 {s(sT0)}, {s(sG)}, {C_B}")
        self.signal(sT0, 4)
        A.label(Lr)
        self.stamp('red_done')
        for t in self.slab_voffset_l(VSLAB4, 3456): A(t)
        self.srd(SRD_W, P_WG, 0, 640 * 3456)
        A(f"s_sub_u32 {s(SRD_W2)}, {s(P_WU)}, 1024")
        A(f"s_subb_u32 {s(SRD_W2+1)}, {s(P_WU+1)}, 0")
        A(f"s_mov_b32 {s(SRD_W2+2)}, {640 * 3456 + 1024}")
        A(f"s_mov_b32 {s(SRD_W2+3)}, 0x20000")
        self.emit_groups(self.w4_groups(0, W4_E1))
        A(f"s_add_u32 {s(sT0)}, {s(sW)}, 4")
        A(f"s_mul_i32 {s(sT0)}, {s(sT0)}, {STAGE}")
        A(f"s_and_b32 {s(sT1)}, {s(sW)}, 1")
        A(f"s_lshl_b32 {s(sT1)}, {s(sT1)}, 1")
        self.tr_addrs(VTR3, s(sT0), perm_sgpr=sT1)
        for mm, rows in enumerate(((0, 16), (32, 48), (80, 96), (112, 128), (64, 144))):
            for ct in range(4):
                for sec in range(2):
                    A(f"ds_read_b64_tr_b16 {a(mm*16+ct*4+2*sec,2)}, v{VTR3+ct} offset:{rows[sec]*128}")
        A("WAITVM w4 lgkmcnt(0)")
        A("s_barrier")
        self.colsum_part(0, W4_E1, 6, 196)
        MK = 136
        A("v_and_b32 v2, 15, v1")
        A("v_lshrrev_b32 v3, 4, v1")
        A(f"s_mov_b32 {s(sC)}, 3277")
        for j in range(5):
            A(f"v_add_u32 v4, {16*j}, v2")
            A(f"v_mul_lo_u32 v4, v4, {s(sC)}")
            A(f"v_lshrrev_b32 v{150+j}, 16, v4")
            A(f"v_lshl_add_u32 v4, v3, 2, {16*j}")
            A(f"v_mul_lo_u32 v4, v4, {s(sC)}")
            A(f"v_lshrrev_b32 v{155+j}, 16, v4")
        for k, (ii, jj) in enumerate(JOBS[:13]):
            A(f"v_cmp_eq_u32 vcc, v{155+ii}, v{150+jj}")
            A(f"v_cndmask_b32 v{MK+k}, 0, -1, vcc")
        for f in (2, 4, 6):
            A(f"v_mov_b32 v{164+4*f+2}, 0"); A(f"v_mov_b32 v{164+4*f+3}, 0")
        self.srd(SRD_A, P_WS, WS_KVF, WS_KVF_SZ)
        A("v_lshlrev_b32 v6, 4, v1")
        def setupB():
            A(f"s_add_u32 {s(sT0)}, {s(sG)}, {C_B}")
            A(f"s_lshl_b32 {s(sT0)}, {s(sT0)}, 7")
            A(f"v_mov_b32 v2, {s(sT0)}")
        A("s_waitcnt lgkmcnt(0)")
        self.poll(SRD_CNT, setupB, 1, 32, 2)
        self.stamp('cB')
        PQ = self.PQ
        KV, ZP, DF = 164, 200, 212
        plan = [(0, 0, 1), (1, 0, 1), (1, 2, None), (2, 1, 2), (2, 3, None), (3, 2, 3), (3, 4, None), (4, 3, 4)]
        A("v_lshlrev_b32 v5, 3, v1")
        A(f"s_lshl_b32 {s(sT0)}, {s(sG)}, 14")
        A(f"s_add_u32 {s(sT1)}, {s(sT0)}, 4096")
        A(f"s_add_u32 {s(sT2)}, {s(sT0)}, 8192")
        def item_load(dst, item, tag):
            so, off = (sT0, sT1, sT2)[item // 8], (item % 8)*512
            return f"buffer_load_dwordx2 {v(dst,2)}, v5, {s(SRD_A,4)}, {s(so)} offen offset:{off} sc1 ; @{tag}"
        for i in range(5): A(item_load(ZP + 2*i, 13 + i, 'z'))
        for f, (j, i0_, i1_) in enumerate(plan):
            A(item_load(KV + 4*f, 2*i0_ + j, f'kv{f}'))
            if i1_ is not None: A(item_load(KV + 4*f + 2, 2*i1_ + j, f'kv{f}'))
        NUM, DEN = 96, 116
        self.srd(SRD_B, P_WS, WS_O, WS_O_SZ)
        A(f"s_lshl_b32 {s(sT0)}, {s(sR)}, 2")
        A(f"s_add_u32 {s(sT0)}, {s(sT0)}, {s(sW)}")
        A(f"s_mul_i32 {s(sT0)}, {s(sT0)}, {20*1024}")
        A(f"s_lshr_b32 {s(sT1)}, {s(sG)}, 1")
        A(f"s_mul_i32 {s(sT1)}, {s(sT1)}, 5120")
        A(f"s_add_u32 {s(sT0)}, {s(sT0)}, {s(sT1)}")
        A(f"s_and_b32 {s(sT1)}, {s(sG)}, 1")
        A(f"s_lshl_b32 {s(sT2)}, {s(sT1)}, 11")
        A(f"s_add_u32 {s(sT2)}, {s(sT2)}, {s(sT0)}")
        A(f"s_lshl_b32 {s(sT3)}, {s(sT1)}, 9")
        A(f"s_add_u32 {s(sT3)}, {s(sT3)}, {s(sT0)}")
        A(f"s_add_u32 {s(sT3)}, {s(sT3)}, 4096")
        A(f"s_mov_b32 {s(sC)}, 0x358637bd")
        A(f"s_mov_b32 {s(sC+1)}, 0x358637bd")
        A("WAITVM z")
        for f, (j, i0_, i1_) in enumerate(plan):
            first = (f == 0 or plan[f-1][0] != j)
            d = DF + 4*(f & 1)
            for h, ii in enumerate((i0_, i1_)):
                if ii is None:
                    A(f"v_mov_b32 v{d+2*h}, 0"); A(f"v_mov_b32 v{d+2*h+1}, 0")
                else:
                    mk = MK + [k for k, jb in enumerate(JOBS[:13]) if jb == (ii, j)][0]
                    A(f"v_and_b32 v{d+2*h}, v{ZP+2*ii}, v{mk}"); A(f"v_and_b32 v{d+2*h+1}, v{ZP+2*ii+1}, v{mk}")
            A(f"{MF} {v(DEN+4*j,4)}, {v(d,4)}, {v(PQ+2*i0_,4)}, {'0' if first else v(DEN+4*j,4)}")
        for f, (j, i0_, i1_) in enumerate(plan):
            first = (f == 0 or plan[f-1][0] != j)
            A(f"WAITVM kv{f}")
            A(f"{MF} {v(NUM+4*j,4)}, {v(KV+4*f,4)}, {v(PQ+2*i0_,4)}, {'0' if first else v(NUM+4*j,4)}")
        for j in range(5):
            for p in range(2):
                A(f"v_pk_add_f32 {v(DEN+4*j+2*p,2)}, {v(DEN+4*j+2*p,2)}, {s(sC,2)}")
        for j in range(5):
            for r in range(4):
                A(f"v_rcp_f32 v{DEN+4*j+r}, v{DEN+4*j+r}")
        OP = 164
        for j in range(5):
            for p in range(2):
                A(f"v_pk_mul_f32 {v(NUM+4*j+2*p,2)}, {v(NUM+4*j+2*p,2)}, {v(DEN+4*j+2*p,2)}")
            A(f"v_cvt_pk_bf16_f32 v{OP+2*j}, v{NUM+4*j}, v{NUM+4*j+1}")
            A(f"v_cvt_pk_bf16_f32 v{OP+2*j+1}, v{NUM+4*j+2}, v{NUM+4*j+3}")
            if j == 1: A(f"buffer_store_dwordx4 {v(OP,4)}, v6, {s(SRD_B,4)}, {s(sT2)} offen sc1")
            if j == 3: A(f"buffer_store_dwordx4 {v(OP+4,4)}, v6, {s(SRD_B,4)}, {s(sT2)} offen offset:1024 sc1")
            if j == 4: A(f"buffer_store_dwordx2 {v(OP+8,2)}, v5, {s(SRD_B,4)}, {s(sT3)} offen sc1")
        A("s_waitcnt vmcnt(0)")
        A("s_barrier")
        A(f"s_add_u32 {s(sT0)}, {s(sR)}, {C_O}")
        self.signal(sT0, 4)
        self.stamp('o_sig')
        self.emit_groups(self.w4_groups(W4_E1, W4_E2))

    def slot_tile(self, a_, b_): return (a_*4 + b_)
    def reduce_writes(self, ACC, rels):
        out = []
        for a_ in range(6):
            for b_ in range(4):
                rel = (a_ // 3) * 2 + (b_ >> 1)
                if rel in rels:
                    idx = (a_ % 3) * 2 + (b_ & 1)
                    out.append(f"ds_write_b128 v{self.VRW+rel-1}, {v(ACC + (a_*4+b_)*4, 4)} offset:{idx*1024}")
        return out
    def reduce_setup(self, VRW, VRR):
        A = self.A
        self.VRW, self.VRR = VRW, VRR
        for rel in range(1, 4):
            A(f"s_xor_b32 {s(sT0)}, {s(sW)}, {rel}")
            A(f"s_mul_i32 {s(sT0)}, {s(sT0)}, {3*6144}")
            A(f"s_add_u32 {s(sT0)}, {s(sT0)}, {RED3 + (rel-1)*6144}")
            A(f"v_lshl_add_u32 v{VRW+rel-1}, v1, 4, {s(sT0)}")
        A(f"s_mul_i32 {s(sT0)}, {s(sW)}, {3*6144}")
        A(f"s_add_u32 {s(sT0)}, {s(sT0)}, {RED3}")
        A(f"v_lshl_add_u32 v{VRR}, v1, 4, {s(sT0)}")
    def reduce_finish(self, ACC, TMP):
        A = self.A
        for rel in range(1, 4):
            for idx in range(6):
                A(f"ds_read_b128 {v(TMP + ((rel-1)*6+idx)*4, 4)}, v{self.VRR} offset:{(rel-1)*6144 + idx*1024}")
        for rel in range(1, 4):
            A(f"s_waitcnt lgkmcnt({min(15, 6*(3-rel))})")
            for idx in range(6):
                d = ACC + ((idx // 2)*4 + (idx & 1))*4; t = TMP + ((rel-1)*6+idx)*4
                for p in range(2):
                    A(f"v_pk_add_f32 {v(d+2*p,2)}, {v(d+2*p,2)}, {v(t+2*p,2)}")

    def p3(self):
        A = self.A
        Lend = A.newlabel('p3end')
        A(f"s_cmp_eq_u32 {s(sV3)}, 0")
        A(f"s_cbranch_scc1 {Lend}")
        ACC, XR = 16, 112
        A("v_and_b32 v2, 15, v1")
        A("v_mul_u32_u24 v2, 1280, v2")
        A("v_lshrrev_b32 v3, 4, v1")
        A(f"v_lshl_add_u32 v{VXR}, v3, 3, v2")
        A(f"s_lshr_b32 {s(sT0)}, {s(sW)}, 1")
        A(f"s_mul_i32 {s(sT0)}, {s(sT0)}, 3")
        A(f"s_mul_i32 {s(sT1)}, {s(sR3)}, 6")
        A(f"s_add_u32 {s(sTT)}, {s(sT0)}, {s(sT1)}")
        A(f"s_mul_i32 {s(sT0)}, {s(sTT)}, {16*1280}")
        A(f"s_lshl_b32 {s(sT1)}, {s(sC3)}, 7")
        A(f"s_add_u32 {s(sT0)}, {s(sT0)}, {s(sT1)}")
        A(f"s_and_b32 {s(sT1)}, {s(sW)}, 1")
        A(f"s_lshl_b32 {s(sT1)}, {s(sT1)}, 6")
        A(f"s_add_u32 {s(sXO)}, {s(sT0)}, {s(sT1)}")
        A(f"s_add_u32 {s(sT0)}, {s(sXO)}, 2048")
        for i in range(3):
            for c in range(2):
                A(f"buffer_load_dwordx2 {v(XR+4*i+2*c,2)}, v{VXR}, {s(SRD_X,4)}, {s(sT0)} offen offset:{32*c}")
            if i < 2: A(f"s_add_u32 {s(sT0)}, {s(sT0)}, {16*1280}")
        self.reduce_setup(124, 127)
        self.srd(SRD_A, P_WS, WS_O, WS_O_SZ)
        VA = 128
        A("v_lshlrev_b32 v2, 4, v1")
        A(f"s_lshr_b32 {s(sT0)}, {s(sW)}, 1")
        A(f"s_mul_i32 {s(sT0)}, {s(sT0)}, {3*20*1024}")
        for a_ in range(6):
            if a_ < 3:
                A(f"s_add_u32 {s(sT1)}, {s(sT0)}, {a_*20*1024}")
            else:
                A(f"s_sub_u32 {s(sT1)}, {a_*20*1024}, {s(sT0)}")
                A(f"s_cmp_ge_u32 {s(sT1)}, {3*20*1024}")
            A(f"v_add_u32 v{VA+a_}, {s(sT1)}, v2")
        A(f"s_mul_i32 {s(sK)}, {s(sR3)}, {6*20*1024}")
        A(f"s_mul_i32 {s(sT1)}, {s(sW)}, {5*1024}")
        A(f"s_add_u32 {s(sK)}, {s(sK)}, {s(sT1)}")
        def setup():
            A(f"s_mul_i32 {s(sT0)}, {s(sR3)}, 3")
            A(f"s_lshr_b32 {s(sT0)}, {s(sT0)}, 1")
            A(f"v_add_u32 v2, {s(sT0)}, v1")
            A("v_min_u32 v2, 31, v2")
            A(f"v_add_u32 v2, {C_O}, v2")
            A("v_lshlrev_b32 v2, 7, v2")
        self.poll(SRD_CNT, setup, 2, 8, 2)
        self.stamp('cO')
        OF = 80
        VB8 = 208
        order = [3, 4, 5, 0, 1, 2]
        A(f"s_add_u32 {s(sK3)}, {s(sK)}, 4096")
        A("v_lshlrev_b32 v3, 3, v1")
        A("v_lshlrev_b32 v4, 4, v1")
        A("v_sub_u32 v3, v3, v4")
        for a_ in range(6): A(f"v_add_u32 v{VB8+a_}, v{VA+a_}, v3")
        for a_ in order:
            for mm in range(4):
                A(f"buffer_load_dwordx4 {a(OF+(a_*5+mm)*4,4)}, v{VA+a_}, {s(SRD_A,4)}, {s(sK)} offen offset:{mm*1024} sc1 ; @o{a_}")
            for h in range(2):
                A(f"buffer_load_dwordx2 {a(OF+(a_*5+4)*4+2*h,2)}, v{VB8+a_}, {s(SRD_A,4)}, {s(sK3)} offen offset:{h*512} sc1 ; @o{a_}")
        def mm_tile(a_, b_, mm):
            d = ACC + (a_*4+b_)*4
            return f"{MF} {v(d,4)}, {a(mm*16+b_*4,4)}, {a(OF+(a_*5+mm)*4,4)}, {'0' if mm == 0 else v(d,4)}"
        for n, a_ in enumerate((3, 4, 5)):
            A(f"WAITVM o{a_}")
            for mm in range(5):
                for b_ in range(4): A(mm_tile(a_, b_, mm))
        main = []
        for n, a_ in enumerate((0, 1, 2)):
            blk = [mm_tile(a_, b_, mm) for mm in range(5) for b_ in (2, 3)]
            main += [f"WAITVM o{a_}"] + blk
        wr = self.reduce_writes(ACC, (2, 3))
        for t in weave(main, [([[x] for x in wr], 8, len(main))]): A(t)
        main = [mm_tile(a_, b_, mm) for a_ in range(3) for mm in range(5) for b_ in (0, 1)]
        wr = self.reduce_writes(ACC, (1,))
        for t in weave(main, [([[x] for x in wr], 6, 24)]): A(t)
        self.stamp('p3_mfma')
        A("s_waitcnt lgkmcnt(0)")
        A("s_barrier")
        self.reduce_finish(ACC, 136)
        self.stamp('p3_red')
        T = 136; HR = 148
        self.srd(SRD_B, P_WS, WS_H, WS_H_SZ)
        A(f"s_mul_i32 {s(sT0)}, {s(sTT)}, 20")
        A(f"s_lshl_b32 {s(sT1)}, {s(sC3)}, 1")
        A(f"s_add_u32 {s(sT0)}, {s(sT0)}, {s(sT1)}")
        A(f"s_and_b32 {s(sT1)}, {s(sW)}, 1")
        A(f"s_add_u32 {s(sT0)}, {s(sT0)}, {s(sT1)}")
        A(f"s_lshl_b32 {s(sT1)}, {s(sT0)}, 10")
        A(f"s_lshl_b32 {s(sT2)}, {s(sTT)}, 7")
        A(f"s_add_u32 {s(sT2)}, {s(sT2)}, {WS_ST2}")
        A(f"s_cmp_lt_u32 {s(sTT)}, 128")
        A(f"s_cselect_b32 {s(sT2)}, {s(sT2)}, {OOB}")
        A("v_lshlrev_b32 v4, 4, v1")
        A("v_and_b32 v5, 15, v1")
        A("v_lshlrev_b32 v5, 3, v5")
        A("v_bfe_u32 v6, v1, 4, 1")
        A(f"v_cmp_eq_u32 {s(sMASK,2)}, 1, v6")
        A("v_lshl_add_u32 v5, v6, 2, v5")
        for i in range(3):
            for c in range(2):
                o = ACC + (i*4+c)*4
                for hreg in range(2):
                    x = XR + 4*i + 2*c + hreg
                    A(f"v_lshlrev_b32 v{T}, 16, v{x}")
                    A(f"v_and_b32 v{T+1}, 0xffff0000, v{x}")
                    A(f"v_pk_add_f32 {v(o+2*hreg,2)}, {v(o+2*hreg,2)}, {v(T,2)}")
            o = ACC + i*16
            for k in range(4):
                A(f"v_cvt_pk_bf16_f32 v{HR+4*i+k}, v{o+2*k}, v{o+2*k+1}")
            A(f"buffer_store_dwordx4 {v(HR+4*i,4)}, v4, {s(SRD_B,4)}, {s(sT1)} offen sc1")
            if i < 2: A(f"s_add_u32 {s(sT1)}, {s(sT1)}, {20*1024}")
        for i in range(3):
            o = ACC + i*16
            A(f"v_pk_mul_f32 {v(T+2,2)}, {v(o,2)}, {v(o,2)}")
            A(f"v_pk_add_f32 {v(T,2)}, {v(o,2)}, {v(o+2,2)}")
            A(f"v_pk_fma_f32 {v(T+2,2)}, {v(o+2,2)}, {v(o+2,2)}, {v(T+2,2)}")
            for k in (4, 6):
                A(f"v_pk_add_f32 {v(T,2)}, {v(T,2)}, {v(o+k,2)}")
                A(f"v_pk_fma_f32 {v(T+2,2)}, {v(o+k,2)}, {v(o+k,2)}, {v(T+2,2)}")
            A(f"v_add_f32 v{T}, v{T}, v{T+1}")
            A(f"v_add_f32 v{T+1}, v{T+2}, v{T+3}")
            for sw in ('v_permlane16_swap_b32', 'v_permlane32_swap_b32'):
                A(f"v_mov_b32 v{T+2}, v{T}")
                A(f"v_mov_b32 v{T+3}, v{T+1}")
                A(f"{sw} v{T}, v{T+2}")
                A(f"{sw} v{T+1}, v{T+3}")
                A(f"v_pk_add_f32 {v(T,2)}, {v(T,2)}, {v(T+2,2)}")
            A(f"v_cndmask_b32 v{T+4+i}, v{T}, v{T+1}, {s(sMASK,2)}")
            A("s_mov_b64 exec, 0xffffffff")
            A(f"buffer_atomic_add_f32 v{T+4+i}, v5, {s(SRD_CNT,4)}, {s(sT2)} offen sc1")
            A("s_mov_b64 exec, -1")
            if i < 2:
                A(f"s_add_u32 {s(sT2)}, {s(sT2)}, 128")
                A(f"s_cmp_lt_u32 {s(sT2)}, {WS_ST2 + 2048*8}")
                A(f"s_cselect_b32 {s(sT2)}, {s(sT2)}, {OOB}")
        for k in range(12):
            A(f"v_accvgpr_write_b32 a{AHRES+k}, v{HR+k}")
        A("s_waitcnt vmcnt(0)")
        A("s_barrier")
        A(f"s_add_u32 {s(sT0)}, {s(sR3)}, {C_H}")
        self.signal(sT0, 4)
        A.label(Lend)
        self.stamp('h_sig')

    def p4(self):
        A = self.A
        Lend = A.newlabel('p4end')
        A(f"s_cmp_eq_u32 {s(sV4)}, 0")
        A(f"s_cbranch_scc1 {Lend}")
        ACC = 16; CSR = 160; T = 208
        WF = 0; AF = 64; D = 5
        self.emit_groups(self.w4_groups(W4_E2, 20))
        self.tr_addrs4(VTR4)
        self.srd(SRD_A, P_WS, WS_H, WS_H_SZ)
        VA = T + 20
        A("v_lshlrev_b32 v4, 4, v1")
        for i in range(4): A(f"v_add_u32 v{VA+i}, {i*20*1024}, v4")
        A(f"s_lshl_b32 {s(sT0)}, {s(sR4)}, 4")
        A(f"s_lshl_b32 {s(sT1)}, {s(sW)}, 2")
        A(f"s_add_u32 {s(sTT4)}, {s(sT0)}, {s(sT1)}")
        A(f"s_mul_i32 {s(sK)}, {s(sTT4)}, {20*1024}")
        A("v_and_b32 v3, 15, v1")
        A("v_lshlrev_b32 v3, 3, v3")
        A(f"v_mov_b32 v{VA+4}, v3")
        def wreads(buf, m):
            return [f"ds_read_b64_tr_b16 {a(WF+buf*32+(sec*4+ct)*4+2*h,2)}, v{VTR4+ct} offset:{(m % 8)*8192 + sec*1024 + h*4096}"
                    for sec in range(2) for ct in range(4) for h in range(2)]
        for t in wreads(0, 0): A(t)
        A("WAITVM w4 lgkmcnt(0)")
        A("s_barrier")
        self.stamp('w4_landed')
        self.colsum_part(W4_E1, 20, 6, 16)
        A("v_lshrrev_b32 v2, 4, v1")
        A("v_lshlrev_b32 v2, 4, v2")
        A(f"s_lshl_b32 {s(sT0)}, {s(sW)}, 6")
        A(f"v_add_u32 v3, {s(sT0)}, v2")
        A(f"ds_write_b128 v3, {a(ACS,4)}")
        A(f"ds_write_b128 v3, {a(ACS+4,4)} offset:256")
        A("s_waitcnt lgkmcnt(0)")
        A("s_barrier")
        for k in range(8):
            A(f"ds_read_b128 {v(CSR+4*k,4)}, v2 offset:{k*64}")
        self.stamp('colsum')
        def setup():
            A(f"s_lshl_b32 {s(sT0)}, {s(sR4)}, 4")
            A(f"s_mul_i32 {s(sT1)}, {s(sT0)}, 43")
            A(f"s_lshr_b32 {s(sT1)}, {s(sT1)}, 8")
            A(f"s_add_u32 {s(sT0)}, {s(sT0)}, 15")
            A(f"s_mul_i32 {s(sT0)}, {s(sT0)}, 43")
            A(f"s_lshr_b32 {s(sT0)}, {s(sT0)}, 8")
            A(f"v_add_u32 v2, {s(sT1)}, v1")
            A(f"v_min_u32 v2, {s(sT0)}, v2")
            A(f"v_add_u32 v2, {C_H}, v2")
            A("v_lshlrev_b32 v2, 7, v2")
        self.poll(SRD_CNT, setup, 4, 10, 2)
        self.stamp('cH')
        def aload_groups(m):
            gs = [[f"buffer_load_dwordx4 {a(AF+(m % D)*16+4*i,4)}, v{VA+i}, {s(SRD_A,4)}, {s(sK)} offen sc1 ; @a{m}"] for i in range(4)]
            gs[-1].append(f"s_add_u32 {s(sK)}, {s(sK)}, 1024")
            return gs
        NPRE = 3
        for m in range(NPRE): self.emit_groups(aload_groups(m))
        MEAN, RS2 = 192, 200
        A(f"s_lshl_b32 {s(sT0)}, {s(sTT4)}, 7")
        A(f"s_add_u32 {s(sT0)}, {s(sT0)}, {WS_ST2}")
        for i in range(4):
            A(f"buffer_load_dwordx2 {v(T+2*i,2)}, v{VA+4}, {s(SRD_CNT,4)}, {s(sT0)} offen offset:{i*128} sc1 ; @stat")
        def stat_math():
            o = []
            for i in range(4):
                o += [f"v_mul_f32 v{MEAN+2*i}, {1.0/640!r}, v{T+2*i}", f"v_mul_f32 v{T+2*i+1}, {1.0/640!r}, v{T+2*i+1}"]
            for i in range(4): o.append(f"v_fma_f32 v{T+2*i+1}, -v{MEAN+2*i}, v{MEAN+2*i}, v{T+2*i+1}")
            for i in range(4): o.append(f"v_max_f32 v{T+2*i+1}, 0, v{T+2*i+1}")
            for i in range(4): o.append(f"v_add_f32 v{T+2*i+1}, 0x3727c5ac, v{T+2*i+1}")
            for i in range(4): o.append(f"v_rcp_f32 v{RS2+2*i}, v{T+2*i+1}")
            return o
        P = Pacer(A)
        P.slack = 0.8
        w5a = self.w5_groups(0, 5, 'w5a')
        w5b = self.w5_groups(5, 10, 'w5b', region_a=True)
        for m in range(NPRE, 20):
            P.push(aload_groups(m), 19, None if m < D else f'it{m-D}', f'a{m}')
            if m >= 12 and m < 17: P.push(w5a[(m-12)*4:(m-11)*4], 19, 'w5ok', 'w5a')
        P.push(w5b, 19, 'w5a_read', 'w5b')
        A(f"s_mul_i32 {s(sT0)}, {s(sW)}, 20480")
        A(f"s_and_b32 {s(sT1)}, {s(sW)}, 1")
        A(f"s_lshl_b32 {s(sT1)}, {s(sT1)}, 1")
        self.tr_addrs(VTR3, s(sT0), perm_sgpr=sT1)
        def w5a_reads(mm):
            return [f"ds_read_b64_tr_b16 {a(W5A+mm*16+ct*4+2*h,2)}, v{VTR3+ct} offset:{mm*4096 + h*2048}" for ct in range(4) for h in range(2)]
        for m in range(20):
            buf = m & 1
            P.flush(f'a{m}')
            self.lstamp_pre(f'p4k{m}')
            A(f"WAITVM a{m} lgkmcnt(0)")
            self.lstamp_post()
            if m == 10:
                A("s_barrier")
                P.event('w5ok')
            side = []
            if m + 1 < 20:
                if (m + 1) in (8, 16):
                    side += [f"v_add_u32 v{VTR4+ct}, 65536, v{VTR4+ct}" for ct in range(4)]
                side += wreads(buf ^ 1, m + 1)
            if m == 3:
                A("WAITVM stat")
                side += stat_math()
            if m == 16:
                P.flush('w5a')
                A("WAITVM w5a")
            if m in (16, 17):
                for mm in (range(0, 3) if m == 16 else range(3, 5)): side += w5a_reads(mm)
            if m == 18: P.event('w5a_read')
            k = 0
            for n in range(32):
                i, sec, ct = n // 8, (n // 4) % 2, n % 4
                d = ACC + n*4
                P.emit(f"{MF} {v(d,4)}, {a(WF+buf*32+(sec*4+ct)*4,4)}, {a(AF+(m % D)*16+4*i,4)}, {'0' if m == 0 else v(d,4)}", feed=True)
                want = min(len(side), n + 1) if len(side) <= 28 else min(len(side), ((n + 1) * len(side) + 27) // 28)
                while k < want:
                    P.emit(side[k], feed=False); k += 1
            P.event(f'it{m}')
        P.flush('w5b')
        self.stamp('p4_loop')
        self.srd(SRD_B, P_WS, WS_HH, WS_HH_SZ)
        A(f"s_mul_i32 {s(sT0)}, {s(sTT4)}, 54")
        A(f"s_lshl_b32 {s(sT1)}, {s(sS4)}, 1")
        A(f"s_add_u32 {s(sT0)}, {s(sT0)}, {s(sT1)}")
        A(f"s_lshl_b32 {s(sK)}, {s(sT0)}, 10")
        A("v_lshlrev_b32 v6, 4, v1")
        body = []
        for i in range(4):
            for pair in range(2):
                P = T + 8 + ((i*2+pair) & 1) * 4
                for c in range(2):
                    ct = 2*pair + c
                    g = ACC + (i*8 + ct)*4; u = ACC + (i*8 + 4 + ct)*4
                    for p in range(2):
                        body.append(f"v_pk_fma_f32 {v(g+2*p,2)}, {v(CSR+4*ct+2*p,2)}, {v(MEAN+2*i,2)}, {v(g+2*p,2)} op_sel_hi:[1,0,1] neg_lo:[1,0,0] neg_hi:[1,0,0]")
                        body.append(f"v_pk_fma_f32 {v(u+2*p,2)}, {v(CSR+16+4*ct+2*p,2)}, {v(MEAN+2*i,2)}, {v(u+2*p,2)} op_sel_hi:[1,0,1] neg_lo:[1,0,0] neg_hi:[1,0,0]")
                    for r in range(4):
                        body.append(f"v_max_f32 v{g+r}, 0, v{g+r}")
                    for p in range(2):
                        body.append(f"v_pk_mul_f32 {v(u+2*p,2)}, {v(u+2*p,2)}, {v(RS2+2*i,2)} op_sel_hi:[1,0]")
                    for p in range(2):
                        body.append(f"v_pk_mul_f32 {v(g+2*p,2)}, {v(g+2*p,2)}, {v(u+2*p,2)}")
                    body.append(f"v_cvt_pk_bf16_f32 v{P+2*c}, v{g}, v{g+1}")
                    body.append(f"v_cvt_pk_bf16_f32 v{P+2*c+1}, v{g+2}, v{g+3}")
                body.append(f"buffer_store_dwordx4 {v(P,4)}, v6, {s(SRD_B,4)}, {s(sK)} offen offset:{pair*1024} sc1 ; @hh")
            if i < 3: body.append(f"s_add_u32 {s(sK)}, {s(sK)}, {54*1024}")
        for t in body: A(t)
        A("s_waitcnt vmcnt(0)")
        A("s_barrier")
        A(f"s_add_u32 {s(sT0)}, {s(sR4)}, {C_HH}")
        self.signal(sT0, 4)
        self.stamp('hh_sig')
        Lj = A.newlabel('p4join')
        A(f"s_branch {Lj}")
        A.label(Lend)
        A("s_waitcnt vmcnt(0)")
        A("s_barrier")
        self.emit_groups(self.w5_groups(0, 5, 'w5a'))
        A(f"s_mul_i32 {s(sT0)}, {s(sW)}, 20480")
        A(f"s_and_b32 {s(sT1)}, {s(sW)}, 1")
        A(f"s_lshl_b32 {s(sT1)}, {s(sT1)}, 1")
        self.tr_addrs(VTR3, s(sT0), perm_sgpr=sT1)
        A("s_waitcnt vmcnt(0)")
        for mm in range(5):
            for ct in range(4):
                for h in range(2):
                    A(f"ds_read_b64_tr_b16 {a(W5A+mm*16+ct*4+2*h,2)}, v{VTR3+ct} offset:{mm*4096 + h*2048}")
        A("s_waitcnt lgkmcnt(0)")
        self.emit_groups(self.w5_groups(5, 10, 'w5b', region_a=True))
        A("s_waitcnt vmcnt(0)")
        A.label(Lj)

    def p5(self):
        A = self.A
        Lend = A.newlabel('p5end')
        A(f"s_cmp_eq_u32 {s(sV3)}, 0")
        A(f"s_cbranch_scc1 {Lend}")
        ACC = 16
        AF = 112; D = 8
        self.emit_groups(self.w5_groups(10, 14, 'w5c'))
        for ct in range(4): A(f"v_add_u32 v{VTR4+ct}, 81920, v{VTR3+ct}")
        def w5reg(mm): return W5A + mm*16 if mm < 5 else (mm - 5)*16
        def w5reads(m0, m1):
            base = VTR4 if m0 >= 10 else VTR3
            for mm in range(m0, m1):
                for ct in range(4):
                    for h in range(2):
                        A(f"ds_read_b64_tr_b16 {a(w5reg(mm)+ct*4+2*h,2)}, v{base+ct} offset:{(mm-m0)*4096 + h*2048}")
        w5reads(5, 10)
        self.reduce_setup(232, 235)
        self.srd(SRD_A, P_WS, WS_HH, WS_HH_SZ)
        VA = 236
        A("v_lshlrev_b32 v2, 4, v1")
        A(f"s_lshr_b32 {s(sT0)}, {s(sW)}, 1")
        A(f"s_mul_i32 {s(sT0)}, {s(sT0)}, {3*54*1024}")
        for a_ in range(6):
            if a_ < 3: A(f"s_add_u32 {s(sT1)}, {s(sT0)}, {a_*54*1024}")
            else: A(f"s_sub_u32 {s(sT1)}, {a_*54*1024}, {s(sT0)}")
            A(f"v_add_u32 v{VA+a_}, {s(sT1)}, v2")
        A(f"s_mul_i32 {s(sT0)}, {s(sR3)}, {6*54}")
        A(f"s_mul_i32 {s(sT2)}, {s(sW)}, 14")
        A(f"s_add_u32 {s(sT0)}, {s(sT0)}, {s(sT2)}")
        A(f"s_lshl_b32 {s(sWA)}, {s(sT0)}, 10")
        A("WAITVM w5c")
        w5reads(10, 14)
        A("s_waitcnt lgkmcnt(0)")
        def setup():
            A(f"s_mul_i32 {s(sT0)}, {s(sR3)}, 6")
            A(f"s_lshr_b32 {s(sT1)}, {s(sT0)}, 4")
            A(f"s_add_u32 {s(sT0)}, {s(sT0)}, 5")
            A(f"s_min_u32 {s(sT0)}, {s(sT0)}, 127")
            A(f"s_lshr_b32 {s(sT0)}, {s(sT0)}, 4")
            A(f"v_add_u32 v2, {s(sT1)}, v1")
            A(f"v_min_u32 v2, {s(sT0)}, v2")
            A(f"v_add_u32 v2, {C_HH}, v2")
            A("v_lshlrev_b32 v2, 7, v2")
        self.stamp('w5_regs')
        self.poll(SRD_CNT, setup, 2, 27, 2)
        self.stamp('cHH')
        A(f"s_mul_i32 {s(sWB)}, {s(sW)}, 14")
        def aload_groups(n):
            ps, mm = divmod(n, 14)
            a0 = 3 if ps == 0 else 0
            pre = []
            if mm == 0: pre.append(f"s_mov_b32 {s(sK)}, {s(sWA)}")
            so = sK
            if mm >= 12:
                pre += [f"s_add_u32 {s(sK2)}, {s(sWB)}, {mm}", f"s_cmp_lt_u32 {s(sK2)}, 54",
                        f"s_cselect_b32 {s(sK2)}, {s(sK)}, {OOB}"]
                so = sK2
            gs = [[f"buffer_load_dwordx4 {v(AF+(n % D)*12+4*i,4)}, v{VA+a0+i}, {s(SRD_A,4)}, {s(so)} offen sc1 ; @b{n}"] for i in range(3)]
            gs[0] = pre + gs[0]
            gs[-1].append(f"s_add_u32 {s(sK)}, {s(sK)}, 1024")
            return gs
        NPRE = 6
        for n in range(NPRE): self.emit_groups(aload_groups(n))
        P = Pacer(A)
        P.slack = 0.6
        for n in range(NPRE, 28):
            P.push(aload_groups(n), 19, None if n < D else f'it{n-D}', f'b{n}')
        wr1 = self.reduce_writes(ACC, (2, 3))
        for n in range(28):
            ps, mm = divmod(n, 14)
            a0 = 3 if ps == 0 else 0
            P.flush(f'b{n}')
            A(f"WAITVM b{n}")
            k = 0
            for i in range(3):
                for b_ in (2, 3, 0, 1):
                    d = ACC + ((a0+i)*4+b_)*4
                    P.emit(f"{MF} {v(d,4)}, {a(w5reg(mm)+b_*4,4)}, {v(AF+(n % D)*12+4*i,4)}, {'0' if mm == 0 else v(d,4)}")
                    k += 1
                    if k == 6 and ps == 1 and 1 <= mm <= 12: P.emit(wr1[mm-1], feed=False)
            P.event(f'it{n}')
        self.stamp('p5_mfma')
        for t in self.reduce_writes(ACC, (1,)): A(t)
        self.srd(SRD_B, P_OUT, 0, 2048 * 1280)
        A("s_waitcnt lgkmcnt(0)")
        A("s_barrier")
        self.reduce_finish(ACC, 112)
        self.stamp('p5_red')
        T = 200
        A(f"s_mov_b32 {s(sT0)}, {s(sXO)}")
        for i in range(3):
            for c in range(2):
                o = ACC + (i*4+c)*4
                for hreg in range(2):
                    A(f"v_accvgpr_read_b32 v{T+2}, a{AHRES + 4*i + 2*c + hreg}")
                    A(f"v_lshlrev_b32 v{T}, 16, v{T+2}")
                    A(f"v_and_b32 v{T+1}, 0xffff0000, v{T+2}")
                    A(f"v_pk_add_f32 {v(o+2*hreg,2)}, {v(o+2*hreg,2)}, {v(T,2)}")
                A(f"v_cvt_pk_bf16_f32 v{o}, v{o}, v{o+1}")
                A(f"v_cvt_pk_bf16_f32 v{o+1}, v{o+2}, v{o+3}")
                A(f"buffer_store_dwordx2 {v(o,2)}, v{VXR}, {s(SRD_B,4)}, {s(sT0)} offen offset:{32*c}" + (" sc1" if 'outsc1' in self.exp else " nt" if 'outnt' in self.exp else ""))
            if i < 2: A(f"s_add_u32 {s(sT0)}, {s(sT0)}, {16*1280}")
        A.label(Lend)

    def finish(self):
        A = self.A
        if self.prof:
            A("s_waitcnt vmcnt(0)")
            self.stamp('end')
            self.dump_stamps()
        if 'hdbg' in self.exp:
            A("s_waitcnt vmcnt(0)")
            self.stamp('end')
            self.hreport()
        A.label("L_end")
        A("s_endpgm")

    def build(self):
        self.prologue()
        self.p1()
        if not getattr(self, 'early_exit', False):
            self.p2()
            self.p3()
            self.p4()
            self.p5()
            self.finish()
        else:
            self.A.label("L_end")
            self.A("s_endpgm")
        n = self.A.fix_hazards()
        hdr = open('cdna_kernels/' + NAME + '.s.ref').read().split('; Override launch')[0]
        out = hdr
        out += "; Override launch geometry by editing the next line.\n"
        out += f"; @launch grid=(256,1,1) block=(256,1,1) lds={LDS_BYTES}\n"
        out += '.amdgcn_target "amdgcn-amd-amdhsa--gfx950"\n.text\n'
        out += f".globl {KNAME}\n.p2align 8\n.type {KNAME},@function\n{KNAME}:\n"
        out += self.A.text()
        out += f""".section .rodata,"a"
.p2align 6
.amdhsa_kernel {KNAME}
  .amdhsa_next_free_vgpr 512
  .amdhsa_next_free_sgpr 102
  .amdhsa_accum_offset 256
  .amdhsa_group_segment_fixed_size 0
  .amdhsa_kernarg_size 80
  .amdhsa_user_sgpr_count 2
  .amdhsa_user_sgpr_kernarg_segment_ptr 1
  .amdhsa_system_sgpr_workgroup_id_x 1
.end_amdhsa_kernel
"""
        return out, n

sTT4 = 81
sLK, sLQ = 76, 77

def issued_at_zero(sig):
    return 99

if __name__ == '__main__':
    dbg = '--dbg' in sys.argv
    out = [a for a in sys.argv[1:] if not a.startswith('--')]
    g = G(dbg=dbg, prof='--prof' in sys.argv, exp=next((a.split('=')[1] for a in sys.argv if a.startswith('--exp=')), ''))
    txt, n = g.build()
    path = out[0] if out else 'k.s'
    open(path, 'w').write(txt)
    if g.prof: json.dump(g.stamps, open(path + '.stamps', 'w'))
    print('wrote', path, 'nops inserted', n, 'lines', txt.count('\n'))
```

```python
import sys, json
from asmlib import *

NAME = 'sequential_preLN__linear_attn_block__glu_gated_reglu__prompt'
KNAME = NAME + '_kernel'

WS_CNT, WS_CNT_SZ = 0x0, 0x8000
WS_ST2 = 0x4000
WS_KVF, WS_KVF_SZ = 0x10000, 8 * 16384
WS_HST, WS_HST_SZ = 0x40000, 128 * 20 * 128
WS_PART, WS_PART_SZ = 0x100000, 8 * 32 * 18 * 1024
WS_O, WS_O_SZ = 0x600000, 128 * 20 * 1024
WS_H, WS_H_SZ = 0x900000, 128 * 20 * 1024
WS_HH, WS_HH_SZ = 0xC00000, 128 * 54 * 1024
WS_DBG, WS_DBG_SZ = 0x1400000, 0x1000000
C_A, C_B, C_O, C_H, C_HH = 0, 8, 16, 48, 72
NZERO = 32
OOB = 0x7ff00000

JOBS = [(0,0),(0,1),(1,0),(1,1),(1,2),(2,1),(2,2),(2,3),(3,2),(3,3),(3,4),(4,3),(4,4)] + [(i,5) for i in range(5)]

SRD_X, SRD_W, SRD_W2, SRD_A, SRD_B, SRD_CNT, SRD_T, SRD_DBG = 4, 8, 12, 16, 20, 24, 28, 32
P_X, P_WQKV, P_WO, P_WG, P_WU, P_WD, P_OUT, P_DBG, P_WS = 40, 42, 44, 48, 50, 52, 54, 56, 58
sK2, sK3 = 46, 47
sW, sR, sG, sRHO, sXCD, sJ = 60, 61, 62, 63, 64, 65
sT0, sT1, sT2, sT3, sT4, sT5 = 66, 67, 68, 69, 70, 71
sWA, sWB, sK, sLD = 72, 73, 74, 75
sROT = 76
sMASK = 82
sC = 92
sC2 = 90
sC3, sR3, sV3, sR4, sS4, sV4, sTT, sXO = 94, 95, 96, 97, 98, 99, 100, 101
VSL = 252
VSLAB4, VXR = 8, 15
VTR3, VTR4 = 244, 248
AHRES = 240
AZERO = 253

LDS_BYTES = 163840
STAGE = 20480
def slot_of(sig): return (sig + 4) % 8
FR = 3 * STAGE
CS = FR + 22528
ST = CS + 1024
RED2 = 73728
RED3 = 90112
W4_E1, W4_E2 = 9, 11
W5A = 144
ACS = 232
MF = "v_mfma_f32_16x16x32_bf16"
LOG2E = 1.4426950408889634

def f32bits(x):
    import struct
    return struct.unpack('<I', struct.pack('<f', x))[0]

class G:
    def __init__(self, stop=None, dbg=False, prof=False, exp=''):
        self.exp = exp
        self.A = Asm(); self.stop = stop; self.dbg = dbg; self.prof = prof
        self.stamps = []

    def stamp(self, name):
        if 'hdbg' in self.exp:
            self.hstamp(name); return
        if not self.prof: return
        A = self.A
        i = len(self.stamps); self.stamps.append(name)
        A("s_memrealtime s[36:37]")
        A("s_memtime s[38:39]")
        A("v_accvgpr_read_b32 v7, a252" if i else "v_mov_b32 v7, 0")
        A("s_waitcnt lgkmcnt(0)")
        A(f"v_writelane_b32 v7, s36, {i}")
        A("v_accvgpr_write_b32 a252, v7")
        A("v_accvgpr_read_b32 v7, a254" if i else "v_mov_b32 v7, 0")
        A(f"v_writelane_b32 v7, s38, {i}")
        A("v_accvgpr_write_b32 a254, v7")

    HSTAMPS = ['start', 'x_landed', 'normed', 'p1a_loop', 'p1b_loop', 'cA', 'cB', 'o_sig', 'cO', 'h_sig', 'cH', 'p4_loop', 'cHH', 'p5_mfma', 'end']
    def hstamp(self, name):
        if name not in self.HSTAMPS: return
        A = self.A
        i = self.HSTAMPS.index(name)
        A("s_memrealtime s[36:37]")
        A("v_accvgpr_read_b32 v7, a252" if i else "v_mov_b32 v7, 0")
        A("s_waitcnt lgkmcnt(0)")
        A(f"v_writelane_b32 v7, s36, {i}")
        A("v_accvgpr_write_b32 a252, v7")
    def hreport(self):
        A = self.A
        L = A.newlabel('noh')
        A(f"s_cmp_lg_u32 {s(sW)}, 0")
        A(f"s_cbranch_scc1 {L}")
        A("v_accvgpr_read_b32 v7, a252")
        A("v_not_b32 v6, v7")
        A("v_cmp_eq_u32 vcc, 0, v1")
        A("v_cndmask_b32 v7, v7, v6, vcc")
        A("v_lshlrev_b32 v2, 2, v1")
        A("v_add_u32 v2, 4, v2")
        A("s_mov_b64 exec, 0x7fff")
        A(f"buffer_atomic_umax v7, v2, {s(SRD_DBG,4)}, 0 offen sc1")
        A("s_mov_b64 exec, -1")
        A.label(L)

    def lstamp_pre(self, name):
        if not (self.prof and 'fine' in self.exp): return
        self.A("s_memrealtime s[36:37]")
        self._ls = name
    def lstamp_post(self):
        if not (self.prof and 'fine' in self.exp): return
        i = len(self.stamps); self.stamps.append(self._ls)
        self.A("v_accvgpr_read_b32 v7, a252")
        self.A(f"v_writelane_b32 v7, s36, {i}")
        self.A("v_accvgpr_write_b32 a252, v7")

    def dump_stamps(self):
        A = self.A
        L = A.newlabel('nost')
        A(f"s_cmp_lg_u32 {s(sW)}, 0")
        A(f"s_cbranch_scc1 {L}")
        self.srd(SRD_T, P_WS, WS_DBG + 0x800000, 0x20000)
        A("v_accvgpr_read_b32 v7, a252")
        A("v_lshlrev_b32 v2, 2, v1")
        A(f"s_lshl_b32 {s(sT0)}, s2, 8")
        A(f"buffer_store_dword v7, v2, {s(SRD_T,4)}, {s(sT0)} offen")
        A("v_accvgpr_read_b32 v6, a254")
        A(f"s_add_u32 {s(sT0)}, {s(sT0)}, 0x10000")
        A(f"buffer_store_dword v6, v2, {s(SRD_T,4)}, {s(sT0)} offen")
        A.label(L)

    def srd_l(self, dst, ptr, off, size):
        out = []
        if off:
            out += [f"s_add_u32 {s(dst)}, {s(ptr)}, {off}", f"s_addc_u32 {s(dst+1)}, {s(ptr+1)}, 0"]
        else:
            out += [f"s_mov_b32 {s(dst)}, {s(ptr)}", f"s_mov_b32 {s(dst+1)}, {s(ptr+1)}"]
        out += [f"s_mov_b32 {s(dst+2)}, {size}", f"s_mov_b32 {s(dst+3)}, 0x20000"]
        return out
    def srd(self, dst, ptr, off, size):
        for t in self.srd_l(dst, ptr, off, size): self.A(t)

    def prologue(self):
        A = self.A
        A("s_cmp_ge_u32 s2, 256")
        A("s_cbranch_scc1 L_end")
        A("s_load_dwordx16 s[40:55], s[0:1], 0")
        A("s_load_dwordx4 s[56:59], s[0:1], 64")
        A("v_and_b32 v1, 63, v0")
        self.stamp('start')
        A("v_lshrrev_b32 v2, 6, v0")
        A(f"s_and_b32 {s(sXCD)}, s2, 7")
        A(f"v_readfirstlane_b32 {s(sW)}, v2")
        A(f"s_lshr_b32 {s(sJ)}, s2, 3")
        A(f"s_and_b32 {s(sRHO)}, {s(sJ)}, 7")
        A(f"s_lshr_b32 {s(sT0)}, {s(sXCD)}, 1")
        A(f"s_lshl_b32 {s(sT0)}, {s(sT0)}, 3")
        A(f"s_add_u32 {s(sR)}, {s(sT0)}, {s(sRHO)}")
        A(f"s_and_b32 {s(sT0)}, {s(sXCD)}, 1")
        A(f"s_lshl_b32 {s(sT0)}, {s(sT0)}, 2")
        A(f"s_lshr_b32 {s(sT1)}, {s(sJ)}, 3")
        A(f"s_add_u32 {s(sG)}, {s(sT0)}, {s(sT1)}")
        A(f"s_cmp_ge_u32 {s(sRHO)}, 5")
        A(f"s_cselect_b32 {s(sT0)}, 5, 0")
        A(f"s_sub_u32 {s(sRHO)}, {s(sRHO)}, {s(sT0)}")
        A(f"s_lshl_b32 {s(sRHO)}, {s(sRHO)}, 1")
        if 'rot0' in self.exp: A(f"s_mov_b32 {s(sRHO)}, 0")

    def code_prefetch(self):
        A = self.A
        A("s_getpc_b64 s[36:37]")
        A.label("L_pc0")
        A(f"s_lshl_b32 {s(sT0)}, {s(sJ)}, 2")
        A(f"s_add_u32 {s(sT0)}, {s(sT0)}, {s(sW)}")
        A(f"s_lshl_b32 {s(sT0)}, {s(sT0)}, 10")
        A(f"s_min_u32 {s(sT0)}, {s(sT0)}, L_end-L_pc0-1024")
        A(f"v_lshl_add_u32 v6, v1, 4, {s(sT0)}")
        A("global_load_dwordx4 a[244:247], v6, s[36:37]")

    def weight_prefetch(self, late=False):
        A = self.A
        if late:
            L = A.newlabel('nopf')
            A(f"s_cmp_eq_u32 {s(sW)}, 0")
            A(f"s_cbranch_scc1 {L}")
            for rep in range(2):
                A(f"s_mul_i32 {s(sT0)}, s2, 3")
                A(f"s_add_u32 {s(sT0)}, {s(sT0)}, {s(sW)}")
                A(f"s_add_u32 {s(sT0)}, {s(sT0)}, {768*rep - 1}" if rep else f"s_sub_u32 {s(sT0)}, {s(sT0)}, 1")
                self._pf_one(nocount=True)
            A.label(L)
            return
        A(f"s_lshl_b32 {s(sT0)}, s2, 2")
        A(f"s_add_u32 {s(sT0)}, {s(sT0)}, {s(sW)}")
        self._pf_one()

    def page_touch(self, wave_only=None):
        A = self.A
        L = A.newlabel('notouch')
        if wave_only is not None:
            A(f"s_cmp_lg_u32 {s(sW)}, {wave_only}")
            A(f"s_cbranch_scc1 {L}")
        A("v_lshlrev_b32 v6, 20, v1")
        A("s_mov_b64 exec, 0xfffff")
        A(f"global_load_dword a250, v6, s[{P_WS}:{P_WS+1}] ; @nocount")
        A("s_mov_b64 exec, 7")
        A(f"global_load_dword a250, v6, s[{P_OUT}:{P_OUT+1}] ; @nocount")
        A("s_mov_b64 exec, -1")
        A.label(L)

    def wqkv_prefetch(self):
        A = self.A
        A(f"s_lshl_b32 {s(sT0)}, s2, 2")
        A(f"s_add_u32 {s(sT0)}, {s(sT0)}, {s(sW)}")
        A(f"s_mul_i32 {s(sT0)}, {s(sT0)}, {19*128}")
        A(f"v_lshl_add_u32 v6, v1, 7, {s(sT0)}")
        A(f"v_min_u32 v6, {640*3840 - 128}, v6")
        A("s_mov_b64 exec, 0x7ffff")
        A(f"global_load_dword a249, v6, s[{P_WQKV}:{P_WQKV+1}]")
        A("s_mov_b64 exec, -1")

    def _pf_one(self, nocount=False):
        A = self.A
        A(f"s_mov_b32 s36, {s(P_WO)}")
        A(f"s_mov_b32 s37, {s(P_WO+1)}")
        A(f"s_mov_b32 {s(sT1)}, {640*1280 - 128}")
        for lo, ptr, size in ((100, P_WG, 640*3456), (370, P_WU, 640*3456), (640, P_WD, 1728*1280)):
            A(f"s_cmp_ge_u32 {s(sT0)}, {lo}")
            A(f"s_cselect_b32 s36, {s(ptr)}, s36")
            A(f"s_cselect_b32 s37, {s(ptr+1)}, s37")
            A(f"s_cselect_b32 {s(sT1)}, {size - 128}, {s(sT1)}")
        A(f"s_mov_b32 {s(sT2)}, 0")
        for lo in (100, 370, 640):
            A(f"s_cmp_ge_u32 {s(sT0)}, {lo}")
            A(f"s_cselect_b32 {s(sT2)}, {lo}, {s(sT2)}")
        A(f"s_sub_u32 {s(sT0)}, {s(sT0)}, {s(sT2)}")
        A(f"s_lshl_b32 {s(sT0)}, {s(sT0)}, 13")
        A(f"v_lshl_add_u32 v6, v1, 7, {s(sT0)}")
        A(f"v_min_u32 v6, {s(sT1)}, v6")
        A("global_load_dword a248, v6, s[36:37]" + (" ; @nocount" if nocount else ""))

    def zero_store(self):
        A = self.A
        L = A.newlabel('nz')
        A(f"s_cmp_ge_u32 s2, {NZERO}")
        A(f"s_cbranch_scc1 {L}")
        A(f"s_cmp_lg_u32 {s(sW)}, 3")
        A(f"s_cbranch_scc1 {L}")
        self.srd(SRD_CNT, P_WS, WS_CNT, WS_CNT_SZ)
        A("v_lshlrev_b32 v2, 4, v1")
        A(f"s_lshl_b32 {s(sT5)}, s2, 10")
        for i in range(4): A(f"v_mov_b32 v{4+i}, 0")
        A(f"buffer_store_dwordx4 v[4:7], v2, {s(SRD_CNT,4)}, {s(sT5)} offen sc1 ; @nocount")
        A.label(L)

    def zero_report(self):
        A = self.A
        L = A.newlabel('nzr')
        A(f"s_cmp_ge_u32 s2, {NZERO}")
        A(f"s_cbranch_scc1 {L}")
        A(f"s_cmp_lg_u32 {s(sW)}, 3")
        A(f"s_cbranch_scc1 {L}")
        A("v_mov_b32 v4, 1")
        A("v_mov_b32 v2, 0")
        A("s_mov_b64 exec, 1")
        A(f"buffer_atomic_add v4, v2, {s(SRD_DBG,4)}, 0 offen sc1 ; @nocount")
        A("s_mov_b64 exec, -1")
        A.label(L)

    def poll(self, srd, voff_setup, nlanes, target, tmp, barrier=True):
        A = self.A
        NP = 1
        for tk in self.exp.split(','):
            if tk.startswith('poll'): NP = int(tk[4:])
        Lskip, Lp, Lgot = A.newlabel('pskip'), A.newlabel('poll'), A.newlabel('got')
        A(f"s_cmp_lg_u32 {s(sW)}, 0")
        A(f"s_cbranch_scc1 {Lskip}")
        voff_setup()
        A(f"v_mov_b32 v11, v{tmp}")
        A(f"s_mov_b64 exec, {(1 << nlanes) - 1}")
        A(f"s_mov_b32 {s(sT5)}, 0")
        ld = lambda k: f"buffer_load_dword v{12+k}, v11, {s(srd,4)}, 0 offen sc1 ; @nocount"
        for k in range(NP):
            A(ld(k))
            if k + 1 < NP: A(f"s_sleep {6 // NP}")
        A.label(Lp)
        for k in range(NP):
            A(f"s_waitcnt vmcnt({NP-1})")
            A(f"v_cmp_gt_u32 vcc, {target}, v{12+k}")
            A(f"s_cbranch_vccz {Lgot}")
            A(ld(k))
        A(f"s_add_u32 {s(sT5)}, {s(sT5)}, 1")
        A(f"s_cmp_lt_u32 {s(sT5)}, 0x40000")
        A(f"s_cbranch_scc1 {Lp}")
        A.label(Lgot)
        A("s_mov_b64 exec, -1")
        A.label(Lskip)
        if barrier: A("s_barrier")

    def signal(self, cidx_sgpr, tmp, wave=0):
        A = self.A
        L = A.newlabel('sig')
        A(f"s_cmp_lg_u32 {s(sW)}, {wave}")
        A(f"s_cbranch_scc1 {L}")
        A(f"s_lshl_b32 {s(sT5)}, {s(cidx_sgpr)}, 7")
        A(f"v_mov_b32 v{tmp}, {s(sT5)}")
        A(f"v_mov_b32 v{tmp+1}, 1")
        A("s_mov_b64 exec, 1")
        A(f"buffer_atomic_add v{tmp+1}, v{tmp}, {s(SRD_CNT,4)}, 0 offen sc1 ; @nocount")
        A("s_mov_b64 exec, -1")
        A.label(L)

    def p1(self):
        A = self.A
        XF = 16
        ACK, ACV = 96, 116
        INIT, SUM, GRAM, ONES = 136, 140, 144, 148
        KF = 152
        VTRW = 232
        VOW = 250; VOX = 255; VXA = 10
        VX = 240
        A(f"s_mov_b32 {s(sC2)}, 2048")
        A("v_lshrrev_b32 v2, 3, v1")
        A("v_and_b32 v3, 6, v2")
        A("v_and_b32 v4, 7, v1")
        A("v_xor_b32 v3, v3, v4")
        A("v_lshlrev_b32 v3, 4, v3")
        A("v_mul_u32_u24 v2, 1280, v2")
        A(f"v_add3_u32 v{VX}, v2, v3, {s(sC2)}")
        A(f"v_add_u32 v{VX+1}, {8*1280 - 1024}, v{VX}")
        A(f"v_subrev_u32 v{VX+2}, {2048 - 128}, v{VX}")
        A(f"v_add_u32 v{VX+3}, {8*1280 + 128 - 3072}, v{VX}")
        A(f"s_lshl_b32 {s(sT0)}, {s(sR)}, 6")
        A(f"s_lshl_b32 {s(sT1)}, {s(sW)}, 4")
        A(f"s_add_u32 {s(sT0)}, {s(sT0)}, {s(sT1)}")
        A(f"s_mul_i32 {s(sT3)}, {s(sT0)}, 1280")
        A(f"s_mul_i32 {s(sLD)}, {s(sW)}, {STAGE}")
        A(f"s_mov_b32 {s(sC)}, 6554")
        A(f"s_mov_b32 {s(sC+1)}, 3840")
        A("s_waitcnt lgkmcnt(0)")
        if 'startprof' in self.exp: self.stamp('karg')
        self.zero_store()
        if 'pfq' in self.exp: self.wqkv_prefetch()
        A(f"s_sub_u32 {s(SRD_X)}, {s(P_X)}, 2048")
        A(f"s_subb_u32 {s(SRD_X+1)}, {s(P_X+1)}, 0")
        A(f"s_mov_b32 {s(SRD_X+2)}, {2048 * 1280 + 2048}")
        A(f"s_mov_b32 {s(SRD_X+3)}, 0x20000")
        wv = []
        for i in range(5):
            wv += [f"v_add_u32 v2, {64*i}, v1", f"v_mul_lo_u32 v3, v2, {s(sC)}", "v_lshrrev_b32 v3, 16, v3",
                   "v_mul_u32_u24 v4, 10, v3", "v_sub_u32 v4, v2, v4", "v_and_b32 v5, 0x13, v3", "v_and_b32 v6, 4, v3",
                   "v_lshlrev_b32 v6, 1, v6", "v_and_b32 v7, 8, v3", "v_lshrrev_b32 v7, 1, v7", "v_or3_b32 v5, v5, v6, v7",
                   f"v_mul_lo_u32 v5, v5, {s(sC+1)}", f"v_lshl_add_u32 v{VOW+i}, v4, 4, v5"]
            if 1 <= i <= 3: wv.append(f"v_subrev_u32 v{VOW+i}, {1024*i}, v{VOW+i}")
        wv += self.srd_l(SRD_W, P_WQKV, 0, 640 * 3840)
        wv += [f"s_and_b32 {s(sT0)}, {s(sW)}, 1", f"s_mul_i32 {s(sT0)}, {s(sT0)}, {32*3840}", f"s_mul_i32 {s(sT1)}, {s(sG)}, 160",
               f"s_add_u32 {s(sWB)}, {s(sT0)}, {s(sT1)}", f"s_lshr_b32 {s(sT0)}, {s(sW)}, 1", f"s_add_u32 {s(sT2)}, {s(sT0)}, 1",
               f"s_mul_i32 {s(sT2)}, {s(sT2)}, 1280", f"s_add_u32 {s(sK)}, {s(sWB)}, {s(sT2)}",
               f"s_mul_i32 {s(sT0)}, {s(sT0)}, {64*3840}", f"s_add_u32 {s(sWB)}, {s(sWB)}, {s(sT0)}",
               f"s_add_u32 {s(sLK)}, {s(sK)}, {640*3840}", f"s_add_u32 {s(sLQ)}, {s(sWB)}, {640*3840}",
               f"s_mul_i32 {s(sT0)}, {s(sRHO)}, {64*3840}", f"s_add_u32 {s(sK)}, {s(sK)}, {s(sT0)}",
               f"s_add_u32 {s(sWB)}, {s(sWB)}, {s(sT0)}"]
        per = -(-len(wv) // 20)
        n = 0
        A(f"s_lshr_b32 {s(sT4)}, {s(sRHO)}, 1")
        A(f"s_sub_u32 {s(sT4)}, 5, {s(sT4)}")
        for q in range(5):
            A(f"s_cmp_ge_u32 {s(sT4)}, 5")
            A(f"s_cselect_b32 {s(sK2)}, 5, 0")
            A(f"s_sub_u32 {s(sT4)}, {s(sT4)}, {s(sK2)}")
            A(f"s_lshl_b32 {s(sK2)}, {s(sT4)}, 12")
            A(f"s_add_u32 m0, {s(sLD)}, {s(sK2)}")
            A(f"s_add_u32 {s(sT4)}, {s(sT4)}, 1")
            if q: A(f"s_add_u32 {s(sT3)}, {s(sT3)}, 256")
            for k in range(4):
                A(f"buffer_load_dwordx4 v{VX+k}, {s(SRD_X,4)}, {s(sT3)} offen offset:{k*1024} lds ; @x")
                for t in wv[n*per:(n+1)*per]: A(t)
                n += 1
        A(f"s_mul_i32 {s(sLD)}, {s(sW)}, 5120")
        if 'startprof' in self.exp:
            self.stamp('x_issued')
            A("s_waitcnt vmcnt(19)")
            self.stamp('x_first')
            A("s_waitcnt vmcnt(0)")
            self.stamp('x_all')

        def stage_dma(sig):
            so = sK if sig < 10 else sWB
            base = slot_of(sig)*STAGE
            gs = []
            for i in range(5):
                g = []
                if i == 0: g += [f"s_add_u32 m0, {s(sLD)}, {base}", "FILL"]
                if i == 4: g += [f"s_add_u32 m0, {s(sLD)}, {base + 4096}", "FILL"]
                g.append(f"buffer_load_dwordx4 v{VOW+i}, {s(SRD_W,4)}, {s(so)} offen" + (f" offset:{1024*i}" if 1 <= i <= 3 else "") + f" lds ; @st{sig}")
                if i == 4 and sig not in (9, 14):
                    lim = sLK if sig < 10 else sLQ
                    g += [f"s_add_u32 {s(so)}, {s(so)}, {(64 if sig < 10 else 128)*3840}", f"s_cmp_ge_u32 {s(so)}, {s(lim)}",
                          f"s_cselect_b32 {s(sK2)}, {640*3840}, 0", f"s_sub_u32 {s(so)}, {s(so)}, {s(sK2)}"]
                gs.append([x if x != "FILL" else "s_nop 0" for x in g])
            return gs
        if 'pfstart' in self.exp: self.weight_prefetch()
        self.code_prefetch()
        self.srd(SRD_CNT, P_WS, WS_CNT, WS_CNT_SZ)
        self.srd(SRD_DBG, P_DBG, 0, 256)
        self.srd(SRD_T, P_WS, WS_DBG, WS_DBG_SZ)
        A("v_bfe_u32 v2, v1, 2, 2")
        A("v_bfe_u32 v3, v1, 4, 1")
        A("v_lshl_add_u32 v2, v3, 2, v2")
        A("v_bfe_u32 v3, v1, 5, 1")
        A("v_lshl_add_u32 v2, v3, 4, v2")
        A("v_mul_u32_u24 v2, 160, v2")
        A("v_and_b32 v3, 3, v1")
        A(f"v_lshl_add_u32 v{VTRW}, v3, 3, v2")
        A(f"v_add_u32 v{VTRW+1}, {3*STAGE}, v{VTRW}")
        A(f"v_add_u32 v{VTRW+2}, {6*STAGE}, v{VTRW}")
        A("v_and_b32 v2, 15, v1")
        A("v_lshrrev_b32 v3, 3, v2")
        A("v_lshlrev_b32 v3, 10, v3")
        A("v_and_b32 v4, 7, v2")
        A("v_lshl_add_u32 v3, v4, 7, v3")
        A(f"s_mul_i32 {s(sT0)}, {s(sW)}, {STAGE}")
        A(f"v_add_u32 v3, {s(sT0)}, v3")
        A("v_and_b32 v4, 6, v2")
        A("v_lshrrev_b32 v5, 4, v1")
        A("v_xor_b32 v6, v5, v4")
        A(f"v_lshl_add_u32 v{VXA}, v6, 4, v3")
        A("v_or_b32 v5, 4, v5")
        A("v_xor_b32 v6, v5, v4")
        A(f"v_lshl_add_u32 v{VXA+1}, v6, 4, v3")
        for i in range(4):
            A(f"v_mov_b32 v{ONES+i}, 0x3f803f80")
            A(f"v_mov_b32 v{INIT+i}, 0x358637bd")
        A("v_and_b32 v3, 3, v1")
        A(f"v_cmp_eq_u32 {s(sMASK,2)}, 1, v3")
        A(f"v_cmp_eq_u32 {s(sMASK+2,2)}, 2, v3")
        A(f"v_cmp_eq_u32 {s(sMASK+4,2)}, 3, v3")
        A("v_bfe_u32 v3, v1, 2, 2")
        A("v_lshrrev_b32 v4, 4, v1")
        A(f"v_cmp_eq_u32 {s(sMASK+6,2)}, v3, v4")
        P = self.P = Pacer(A)
        for tk in self.exp.split(','):
            if tk.startswith('slack'): P.slack = float(tk[5:]) / 100
        for sig in range(15):
            need = None if sig < 4 else ('xfree' if sig < 8 else f'bar{sig-8}')
            for tk in self.exp.split(','):
                if tk.startswith('holdq') and sig >= 10 + int(tk[5:]): need = 'parted'
            P.push(stage_dma(sig), 30, need, f'st{sig}')
        if 'dmaonly' in self.exp:
            P.event('xfree')
            for k in range(10): P.event(f'bar{k}')
            A("WAITVM x")
            self.stamp('x_landed')
            for sig in range(15):
                P.flush(f'st{sig}')
                if sig in (3, 9):
                    A(f"WAITVM st{sig}")
                    self.stamp(f'st{sig}')
            A("s_waitcnt vmcnt(0)")
            self.stamp('all')
            self.dump_stamps()
            A("s_endpgm")
            self.early_exit = True
            return
        P.flush('st0')
        self.stamp('issued')
        A("WAITVM x")
        self.zero_report()
        self.stamp('x_landed')
        for m in range(8):
            A(f"ds_read_b128 {v(XF+4*m,4)}, v{VXA+(m&1)} offset:{(m>>1)*2048} ; @xf{m}")
        for m in range(20):
            xf = v(XF+4*m,4)
            if m % 2 == 0: P.emit(f"WAITLG xf{m+1}", feed=False)
            P.emit(f"{MF} {v(SUM,4)}, {v(ONES,4)}, {xf}, {'0' if m == 0 else v(SUM,4)}")
            if m + 8 < 20:
                P.emit(f"ds_read_b128 {v(XF+4*(m+8),4)}, v{VXA+(m&1)} offset:{((m+8)>>1)*2048} ; @xf{m+8}")
            P.emit(f"{MF} {v(GRAM,4)}, {xf}, {xf}, {'0' if m == 0 else v(GRAM,4)}")
        A("s_barrier")
        P.event('xfree')
        T = KF
        P.emit_all([f"v_cndmask_b32 v{T}, v{GRAM}, v{GRAM+1}, {s(sMASK,2)}",
            f"v_cndmask_b32 v{T}, v{T}, v{GRAM+2}, {s(sMASK+2,2)}",
            f"v_cndmask_b32 v{T}, v{T}, v{GRAM+3}, {s(sMASK+4,2)}",
            f"v_cndmask_b32 v{T}, 0, v{T}, {s(sMASK+6,2)}",
            f"v_mov_b32 v{T+1}, v{T}",
            f"v_mul_f32 v{T+2}, {1.0/640!r}, v{SUM}",
            f"v_permlane16_swap_b32 v{T}, v{T+1}",
            f"v_add_f32 v{T}, v{T}, v{T+1}",
            f"v_mov_b32 v{T+1}, v{T}",
            f"s_mov_b32 {s(sC)}, 0xffff0000",
            f"v_permlane32_swap_b32 v{T}, v{T+1}",
            f"v_add_f32 v{T}, v{T}, v{T+1}",
            f"v_mul_f32 v{T}, {1.0/640!r}, v{T}",
            f"v_fma_f32 v{T}, -v{T+2}, v{T+2}, v{T}",
            f"v_max_f32 v{T}, 0, v{T}",
            f"v_add_f32 v{T}, 0x3727c5ac, v{T}",
            f"v_rsq_f32 v{T+4}, v{T}",
            f"v_mul_f32 v{T+6}, v{T+2}, v{T+4}"])
        norm = []
        for r in range(80):
            x = XF + r; u = T + 8 + 2*(r & 3)
            norm.append([f"v_lshlrev_b32 v{u}, 16, v{x}", f"v_and_b32 v{u+1}, {s(sC)}, v{x}",
                         f"v_pk_fma_f32 {v(u,2)}, {v(u,2)}, {v(T+4,2)}, {v(T+6,2)} op_sel_hi:[1,0,0] neg_lo:[0,0,1] neg_hi:[0,0,1]",
                         f"v_cvt_pk_bf16_f32 v{x}, v{u}, v{u+1}"])
        for b in range(0, 80, 4):
            for k in range(4):
                for r in range(4): P.emit(norm[b+r][k])
        self.stamp('normed')

        def rd(buf, sec, j, sig, h, second):
            sl = slot_of(sig)
            dst = KF + buf*40 + sec*20 + j*4 + 2*second
            return f"ds_read_b64_tr_b16 {v(dst,2)}, v{VTRW + sl // 3} offset:{(sl % 3)*STAGE + (sec*2+h)*5120 + j*32 + second*1280} ; @r{2*sig+h}_{j}"
        def reads(buf, sig, h):
            return [rd(buf, sec, j, sig, h, sec2) for j in range(5) for sec in range(2) for sec2 in range(2)]
        def phase(buf, m, rds):
            first = (m == 0)
            xf = v(XF+4*m,4)
            for j in range(5):
                kf = v(KF+buf*40+j*4,4); vf = v(KF+buf*40+20+j*4,4)
                if j in (0, 3): P.emit(f"WAITLG r{m}_{2 if j == 0 else 4}", feed=False)
                P.emit(f"{MF} {v(ACK+4*j,4)}, {xf}, {kf}, {v(INIT,4) if first else v(ACK+4*j,4)}")
                P.emit_all(rds[4*j:4*j+2], feed=False)
                P.emit(f"{MF} {v(ACV+4*j,4)}, {xf}, {vf}, {'0' if first else v(ACV+4*j,4)}")
                P.emit_all(rds[4*j+2:4*j+4], feed=False)

        if 'pfnorm' in self.exp: self.weight_prefetch()
        P.flush('st0')
        A("WAITVM st0")
        A("s_barrier")
        for t in reads(0, 0, 0): A(t)
        for sig in range(10):
            phase(0, 2*sig, reads(1, sig, 1))
            for tk in self.exp.split(','):
                if tk == f'pfsig{sig}': self.weight_prefetch()
            if sig == 3:
                A("v_mov_b32 v2, 0")
                A(f"buffer_load_dword a{AZERO}, v2, {s(SRD_DBG,4)}, 0 offen sc1 ; @zero")
            if sig < 9:
                P.flush(f'st{sig+1}')
                A(f"WAITVM st{sig+1}")
            A("s_barrier")
            P.event(f'bar{sig-1}')
            phase(1, 2*sig+1, reads(0, sig + 1, 0) if sig < 9 else [])
        self.stamp('p1a_loop')

        T = KF
        VFR = T
        Y, E, PK = T + 4, T + 8, T + 12
        A(f"s_lshr_b32 {s(sT1)}, {s(sW)}, 1")
        A(f"s_lshl_b32 {s(sT1)}, {s(sT1)}, 10")
        A(f"s_add_u32 {s(sT0)}, {s(sT1)}, {FR + 20*1024}")
        A(f"v_lshl_add_u32 v5, v1, 4, {s(sT0)}")
        A(f"ds_write_b128 v5, {v(ONES,4)}")
        A(f"s_and_b32 {s(sT2)}, {s(sW)}, 1")
        A(f"s_lshl_b32 {s(sT2)}, {s(sT2)}, 3")
        A(f"s_add_u32 {s(sT1)}, {s(sT1)}, {s(sT2)}")
        A(f"s_add_u32 {s(sT1)}, {s(sT1)}, {FR}")
        A(f"v_lshl_add_u32 v{VFR}, v1, 4, {s(sT1)}")
        A(f"s_mov_b32 {s(sC2)}, {f32bits(LOG2E)}")
        A(f"s_mov_b32 {s(sC2+1)}, {f32bits(LOG2E)}")
        A(f"s_mov_b32 {s(sC)}, 0x358637bd")
        def phi_tile(acc, dst, E=E):
            out = []
            for p in range(2): out.append(f"v_pk_mul_f32 {v(E+2*p,2)}, {v(acc+2*p,2)}, {s(sC2,2)}")
            for r in range(4): out.append(f"v_exp_f32 v{E+r}, v{E+r} clamp")
            for r in range(4): out.append(f"v_max_f32 v{acc+r}, {s(sC)}, v{acc+r}")
            for p in range(2): out.append(f"v_pk_add_f32 {v(acc+2*p,2)}, {v(acc+2*p,2)}, {v(E+2*p,2)}")
            out.append(f"v_cvt_pk_bf16_f32 v{dst}, v{acc}, v{acc+1}")
            out.append(f"v_cvt_pk_bf16_f32 v{dst+1}, v{acc+2}, v{acc+3}")
            return out
        self.phi_tile = phi_tile
        for j in range(5):
            b = PK + 4*(j & 1)
            P.emit(f"v_cvt_pk_bf16_f32 v{b+2}, v{ACV+4*j}, v{ACV+4*j+1}")
            P.emit(f"v_cvt_pk_bf16_f32 v{b+3}, v{ACV+4*j+2}, v{ACV+4*j+3}")
            P.emit(f"ds_write_b64 v{VFR}, {v(b+2,2)} offset:{5*2048 + j*2048}")
            P.emit_all(phi_tile(ACK+4*j, b))
            P.emit(f"ds_write_b64 v{VFR}, {v(b,2)} offset:{j*2048}")
        ia = sum(JOBS[k][0] << (3*k) for k in range(18))
        ib = sum(JOBS[k][1] << (3*k) for k in range(18))
        self.srd(SRD_B, P_WS, WS_PART, WS_PART_SZ)
        A(f"s_lshl_b32 {s(sT4)}, {s(sG)}, 5")
        A(f"s_add_u32 {s(sT4)}, {s(sT4)}, {s(sR)}")
        A(f"s_mul_i32 {s(sT4)}, {s(sT4)}, {18*1024}")
        A("v_lshlrev_b32 v2, 4, v1")
        JADDR = T + 20
        A(f"s_mul_i32 {s(sT1)}, {s(sW)}, 3")
        A(f"s_mov_b32 {s(sC)}, {ia & 0xffffffff}")
        A(f"s_mov_b32 {s(sC+1)}, {ia >> 32}")
        A(f"s_lshr_b64 {s(sC,2)}, {s(sC,2)}, {s(sT1)}")
        A(f"s_mov_b32 {s(sC2)}, {ib & 0xffffffff}")
        A(f"s_mov_b32 {s(sC2+1)}, {ib >> 32}")
        A(f"s_lshr_b64 {s(sC2,2)}, {s(sC2,2)}, {s(sT1)}")
        for q in range(5):
            A(f"s_and_b32 {s(sT2)}, {s(sC)}, 7")
            A(f"s_and_b32 {s(sT3)}, {s(sC2)}, 7")
            A(f"s_lshl_b32 {s(sT2)}, {s(sT2)}, 11")
            A(f"s_lshl_b32 {s(sT3)}, {s(sT3)}, 11")
            A(f"s_add_u32 {s(sT2)}, {s(sT2)}, {FR}")
            A(f"s_add_u32 {s(sT3)}, {s(sT3)}, {FR + 5*2048}")
            A(f"v_add_u32 v{JADDR+2*q}, {s(sT2)}, v2")
            A(f"v_add_u32 v{JADDR+2*q+1}, {s(sT3)}, v2")
            if q < 4:
                A(f"s_lshr_b64 {s(sC,2)}, {s(sC,2)}, 12")
                A(f"s_lshr_b64 {s(sC2,2)}, {s(sC2,2)}, 12")
        A("s_waitcnt lgkmcnt(0)")
        A("s_barrier")
        JF = T + 32
        JD = 96
        def jreads(q, base):
            return [f"ds_read_b128 {v(base,4)}, v{JADDR+2*q}", f"ds_read_b128 {v(base+4,4)}, v{JADDR+2*q+1}",
                    f"ds_read_b128 {v(base+8,4)}, v{JADDR+2*q} offset:1024", f"ds_read_b128 {v(base+12,4)}, v{JADDR+2*q+1} offset:1024"]
        for q in range(3):
            for t in jreads(q, JF + 16*q): A(t)
        A(f"s_lshl_b32 {s(sT0)}, {s(sW)}, 10")
        A(f"s_add_u32 {s(sT0)}, {s(sT0)}, {s(sT4)}")
        for q in range(5):
            b = JF + 16*(q % 3)
            A(f"s_waitcnt lgkmcnt({min(8, 4*(min(q+3,5)-q-1))})")
            A(f"{MF} {v(JD+4*q,4)}, {v(b,4)}, {v(b+4,4)}, 0")
            A(f"{MF} {v(JD+4*q,4)}, {v(b+8,4)}, {v(b+12,4)}, {v(JD+4*q,4)}")
            if q + 3 < 5:
                for t in jreads(q + 3, b): A(t)
        for q in range(5):
            if q == 4:
                A(f"s_cmp_lt_u32 {s(sW)}, 2")
                A(f"s_cselect_b32 {s(sT0)}, {s(sT0)}, {OOB}")
            A(f"buffer_store_dwordx4 {v(JD+4*q,4)}, v2, {s(SRD_B,4)}, {s(sT0)} offen sc1 ; @part")
            if q < 4: A(f"s_add_u32 {s(sT0)}, {s(sT0)}, 4096")
        self.stamp('p1a_epi')

        ACQ = 116
        QF = KF
        def rdq(buf, j, ks, second):
            sl = slot_of(10 + ks // 4)
            return f"ds_read_b64_tr_b16 {v(QF+buf*20+j*4+2*second,2)}, v{VTRW + sl // 3} offset:{(sl % 3)*STAGE + (ks % 4)*5120 + j*32 + second*1280} ; @q{ks}_{j}"
        def readsq(buf, ks): return [rdq(buf, j, ks, sec2) for j in range(5) for sec2 in range(2)]
        def mfq(buf, m):
            return [f"{MF} {v(ACQ+4*j,4)}, {v(QF+buf*20+j*4,4)}, {v(XF+4*m,4)}, {v(INIT,4) if m == 0 else v(ACQ+4*j,4)}" for j in range(5)]
        P.event('bar8'); P.event('bar9'); P.event('parted')
        P.flush('st11')
        A("WAITVM st11")
        A("s_barrier")
        for t in readsq(0, 0): A(t)
        self.map_p3()
        P.push(self.w3_groups(), 19, 'w3ok', 'w3')
        for ks in range(20):
            if ks in (7, 11, 15):
                P.flush(f'st{12 + (ks - 7)//4}')
                A(f"WAITVM st{12 + (ks - 7)//4}" + (" lgkmcnt(0)" if ks == 7 else ""))
                A("s_barrier")
                if ks == 7: P.event('w3ok')
            if ks == 4:
                A("WAITVM part")
                A("s_barrier")
                self.check_zero_done()
                A(f"s_add_u32 {s(sT0)}, {s(sG)}, {C_A}")
                self.signal(sT0, 2)
            if ks == 5 and 'pflate' in self.exp: self.weight_prefetch(late=True)
            rd_ = readsq((ks+1) & 1, ks+1) if ks < 19 else []
            for j, t in enumerate(mfq(ks & 1, ks)):
                if j in (0, 3): P.emit(f"WAITLG q{ks}_{2 if j == 0 else 4}", feed=False)
                P.emit(t)
                P.emit_all(rd_[2*j:2*j+2], feed=False)
        P.flush('w3')
        self.ACQ = ACQ
        self.stamp('p1b_loop')

    def check_zero_done(self):
        A = self.A
        L = A.newlabel('zok')
        A(f"v_accvgpr_read_b32 v2, a{AZERO}")
        A("s_nop 0")
        A(f"v_readfirstlane_b32 {s(sT0)}, v2")
        A(f"s_cmp_ge_u32 {s(sT0)}, {NZERO}")
        A(f"s_cbranch_scc1 {L}")
        self.poll(SRD_DBG, lambda: A("v_mov_b32 v2, 0"), 1, NZERO, 2, barrier=False)
        A.label(L)

    def q_epilogue(self):
        A = self.A
        PQ = self.PQ = 232
        A(f"s_mov_b32 {s(sC2)}, {f32bits(LOG2E)}")
        A(f"s_mov_b32 {s(sC2+1)}, {f32bits(LOG2E)}")
        A(f"s_mov_b32 {s(sC)}, 0x358637bd")
        for j in range(5):
            for t in self.phi_tile(self.ACQ+4*j, PQ+2*j, E=200 + 4*(j & 1)): A(t)
        A(f"v_mov_b32 v{PQ+10}, 0")
        A(f"v_mov_b32 v{PQ+11}, 0")
        if self.dbg:
            A(f"s_lshl_b32 {s(sT0)}, s2, 2")
            A(f"s_add_u32 {s(sT0)}, {s(sT0)}, {s(sW)}")
            A(f"s_mul_i32 {s(sT0)}, {s(sT0)}, {5*512}")
            A("v_lshlrev_b32 v2, 3, v1")
            for j in range(5):
                A(f"buffer_store_dwordx2 {v(PQ+2*j,2)}, v2, {s(SRD_T,4)}, {s(sT0)} offen offset:{j*512}")

    def map_p3(self):
        A = self.A
        if 'map3rows' in self.exp:
            A(f"s_mul_i32 {s(sT1)}, {s(sJ)}, 26")
            A(f"s_lshr_b32 {s(sT1)}, {s(sT1)}, 8")
            A(f"s_mul_i32 {s(sT2)}, {s(sT1)}, 10")
            A(f"s_sub_u32 {s(sC3)}, {s(sJ)}, {s(sT2)}")
            A(f"s_mul_i32 {s(sT2)}, {s(sXCD)}, 3")
            A(f"s_cmp_eq_u32 {s(sXCD)}, 7")
            A(f"s_cselect_b32 {s(sT3)}, 1, 0")
            A(f"s_sub_u32 {s(sT2)}, {s(sT2)}, {s(sT3)}")
            A(f"s_add_u32 {s(sR3)}, {s(sT2)}, {s(sT1)}")
            A(f"s_cmp_ge_u32 {s(sXCD)}, 6")
            A(f"s_cselect_b32 {s(sT3)}, 2, 3")
            A(f"s_cmp_lt_u32 {s(sT1)}, {s(sT3)}")
            A(f"s_cselect_b32 {s(sV3)}, 1, 0")
        else:
            A(f"s_lshr_b32 {s(sT0)}, {s(sXCD)}, 1")
            A(f"s_mul_i32 {s(sT1)}, {s(sJ)}, 52")
            A(f"s_lshr_b32 {s(sT1)}, {s(sT1)}, 8")
            A(f"s_mul_i32 {s(sT2)}, {s(sT1)}, 5")
            A(f"s_sub_u32 {s(sT2)}, {s(sJ)}, {s(sT2)}")
            A(f"s_and_b32 {s(sT3)}, {s(sXCD)}, 1")
            A(f"s_mul_i32 {s(sT3)}, {s(sT3)}, 5")
            A(f"s_add_u32 {s(sC3)}, {s(sT2)}, {s(sT3)}")
            A(f"s_mul_i32 {s(sT2)}, {s(sT0)}, 6")
            A(f"s_cmp_eq_u32 {s(sT0)}, 3")
            A(f"s_cselect_b32 {s(sT3)}, 1, 0")
            A(f"s_sub_u32 {s(sT2)}, {s(sT2)}, {s(sT3)}")
            A(f"s_add_u32 {s(sR3)}, {s(sT2)}, {s(sT1)}")
            A(f"s_cmp_ge_u32 {s(sT0)}, 2")
            A(f"s_cselect_b32 {s(sT3)}, 5, 6")
            A(f"s_cmp_lt_u32 {s(sT1)}, {s(sT3)}")
            A(f"s_cselect_b32 {s(sV3)}, 1, 0")
        A(f"s_lshr_b32 {s(sT0)}, {s(sXCD)}, 2")
        A(f"s_lshl_b32 {s(sT0)}, {s(sT0)}, 2")
        A(f"s_and_b32 {s(sT1)}, {s(sJ)}, 3")
        A(f"s_add_u32 {s(sR4)}, {s(sT0)}, {s(sT1)}")
        A(f"s_and_b32 {s(sT0)}, {s(sXCD)}, 3")
        A(f"s_lshr_b32 {s(sT1)}, {s(sJ)}, 2")
        A(f"s_mul_i32 {s(sT2)}, {s(sT0)}, 7")
        A(f"s_add_u32 {s(sS4)}, {s(sT2)}, {s(sT1)}")
        A(f"s_cmp_eq_u32 {s(sT0)}, 3")
        A(f"s_cselect_b32 {s(sT2)}, 6, 7")
        A(f"s_cmp_lt_u32 {s(sT1)}, {s(sT2)}")
        A(f"s_cselect_b32 {s(sV4)}, 1, 0")

    def slab_voffset_l(self, dst, rowstride, n=1):
        o = ["v_lshrrev_b32 v2, 3, v1", "v_bfe_u32 v3, v1, 4, 2", "v_lshlrev_b32 v3, 1, v3", "v_and_b32 v4, 7, v1",
             "v_xor_b32 v3, v3, v4", "v_lshlrev_b32 v3, 4, v3", f"v_mul_u32_u24 v2, {rowstride}, v2",
             f"v_add_u32 v{dst}, v2, v3"]
        for k in range(1, n): o.append(f"v_add_u32 v{dst+k}, {k*(8*rowstride - 1024)}, v{dst}")
        return o

    def tr_addrs4(self, dst):
        A = self.A
        A("v_bfe_u32 v2, v1, 2, 2")
        A("v_lshrrev_b32 v3, 4, v1")
        A("v_lshl_add_u32 v2, v3, 2, v2")
        A("v_bfe_u32 v3, v2, 1, 2")
        A("v_and_b32 v4, 3, v1")
        A("v_lshlrev_b32 v4, 3, v4")
        A("v_and_b32 v5, 7, v2")
        A("v_lshl_add_u32 v4, v5, 7, v4")
        A("v_lshrrev_b32 v5, 3, v2")
        A("v_lshl_add_u32 v2, v5, 11, v4")
        for ct in range(4):
            A(f"v_xor_b32 v4, {ct}, v3")
            A(f"v_lshl_add_u32 v{dst+ct}, v4, 5, v2")

    def tr_addrs(self, dst, base, perm_sgpr=None):
        A = self.A
        A("v_bfe_u32 v2, v1, 2, 2")
        A("v_lshrrev_b32 v3, 4, v1")
        A("v_lshl_add_u32 v2, v3, 2, v2")
        A("v_bfe_u32 v3, v2, 1, 2")
        A("v_and_b32 v4, 3, v1")
        A("v_lshlrev_b32 v4, 3, v4")
        A("v_lshl_add_u32 v2, v2, 7, v4")
        A(f"v_add_u32 v2, {base}, v2")
        if perm_sgpr is not None: A(f"v_xor_b32 v3, {s(perm_sgpr)}, v3")
        for ct in range(4):
            A(f"v_xor_b32 v4, {ct}, v3")
            A(f"v_lshl_add_u32 v{dst+ct}, v4, 5, v2")

    def slab4(self, srd, so, lds_sgpr, lds_off, rowstride, tag):
        gs = []
        for k in range(4):
            g = [f"s_add_u32 m0, {s(lds_sgpr)}, {lds_off}", "s_nop 0"] if k == 0 else []
            g.append(f"buffer_load_dwordx4 v{VSL+k}, {s(srd,4)}, {s(so)} offen" + (f" offset:{k*1024}" if k else "") + f" lds ; @{tag}")
            if k == 3: g.append(f"s_add_u32 {s(so)}, {s(so)}, {32*rowstride}")
            gs.append(g)
        return gs

    def w3_groups(self):
        pre = self.slab_voffset_l(VSL, 1280, 4) + self.srd_l(SRD_W2, P_WO, 0, 640 * 1280) + [
            f"s_mul_i32 {s(sK2)}, {s(sW)}, {160*1280}", f"s_lshl_b32 {s(sK3)}, {s(sC3)}, 7",
            f"s_add_u32 {s(sK2)}, {s(sK2)}, {s(sK3)}",
            f"s_cmp_eq_u32 {s(sV3)}, 0", f"s_cselect_b32 {s(sK2)}, {OOB}, {s(sK2)}",
            f"s_add_u32 {s(sK3)}, {s(sW)}, 4", f"s_mul_i32 {s(sK3)}, {s(sK3)}, {STAGE}"]
        gs = []
        for mm in range(5): gs += self.slab4(SRD_W2, sK2, sK3, mm*4096, 1280, 'w3')
        gs[0] = pre + gs[0]
        return gs

    def w4_groups(self, m0, m1):
        pre = [f"s_lshl_b32 {s(sK2)}, {s(sW)}, 3", f"s_add_u32 {s(sK2)}, {s(sK2)}, {32*m0}",
               f"s_mul_i32 {s(sK2)}, {s(sK2)}, 3456", f"s_lshl_b32 {s(sK3)}, {s(sS4)}, 7",
               f"s_add_u32 {s(sK2)}, {s(sK2)}, {s(sK3)}",
               f"s_cmp_eq_u32 {s(sV4)}, 0", f"s_cselect_b32 {s(sK2)}, {OOB}, {s(sK2)}",
               f"s_lshl_b32 {s(sK3)}, {s(sW)}, 11"]
        gs = []
        for m in range(m0, m1):
            gs.append((pre if m == m0 else []) + [f"s_add_u32 m0, {s(sK3)}, {m*8192}", "s_nop 0",
                      f"buffer_load_dwordx4 v{VSLAB4}, {s(SRD_W,4)}, {s(sK2)} offen lds ; @w4"])
            gs.append([f"buffer_load_dwordx4 v{VSLAB4}, {s(SRD_W2,4)}, {s(sK2)} offen offset:1024 lds ; @w4",
                      f"s_add_u32 {s(sK2)}, {s(sK2)}, {32*3456}"])
        return gs

    def w5_groups(self, m0, m1, tag, region_a=None):
        base = 81920 if m0 >= 10 else 0
        pre = []
        if m0 == 0:
            pre += self.srd_l(SRD_W, P_WD, 0, 1728 * 1280)
        pre += [f"s_mul_i32 {s(sK2)}, {s(sW)}, 14", f"s_add_u32 {s(sK2)}, {s(sK2)}, {m0}",
                f"s_mul_i32 {s(sK2)}, {s(sK2)}, {32*1280}", f"s_lshl_b32 {s(sK3)}, {s(sC3)}, 7",
                f"s_add_u32 {s(sK2)}, {s(sK2)}, {s(sK3)}",
                f"s_cmp_eq_u32 {s(sV3)}, 0", f"s_cselect_b32 {s(sK2)}, {OOB}, {s(sK2)}",
                f"s_mul_i32 {s(sK3)}, {s(sW)}, 20480"]
        gs = []
        for mm in range(m0, m1): gs += self.slab4(SRD_W, sK2, sK3, base + (mm-m0)*4096, 1280, tag)
        gs[0] = pre + gs[0]
        return gs

    def colsum_part(self, m0, m1, VB, TMP):
        A = self.A
        A("v_bfe_u32 v2, v1, 2, 2")
        A("v_lshrrev_b32 v3, 4, v1")
        A("v_lshl_add_u32 v2, v3, 2, v2")
        A("v_bfe_u32 v3, v2, 1, 2")
        A(f"v_xor_b32 v3, {s(sW)}, v3")
        A("v_and_b32 v4, 3, v1")
        A("v_lshlrev_b32 v4, 3, v4")
        A("v_and_b32 v5, 7, v2")
        A("v_lshl_add_u32 v4, v5, 7, v4")
        A("v_lshrrev_b32 v5, 3, v2")
        A("v_lshl_add_u32 v2, v5, 11, v4")
        A(f"v_lshl_add_u32 v{VB}, v3, 5, v2")
        if m0: A(f"v_add_u32 v{VB}, {m0*8192}, v{VB}")
        for i in range(4): A(f"v_mov_b32 v{TMP+i}, 0x3f803f80")
        NB = 3
        def rd(m):
            k = m - m0; b = TMP + 4 + (k % NB) * 8
            pre = [f"v_add_u32 v{VB}, 57344, v{VB}"] if (k and k % 7 == 0) else []
            return pre + [f"ds_read_b64_tr_b16 {v(b+sec*4+2*h,2)}, v{VB} offset:{(k % 7)*8192 + sec*1024 + h*4096}" for sec in range(2) for h in range(2)]
        for m in range(m0, min(m0 + NB - 1, m1)):
            for t in rd(m): A(t)
        for m in range(m0, m1):
            if m + NB - 1 < m1:
                for t in rd(m + NB - 1): A(t)
            A(f"s_waitcnt lgkmcnt({4*min(NB - 1, m1 - 1 - m)})")
            b = TMP + 4 + ((m - m0) % NB) * 8
            for sec in range(2):
                A(f"{MF} {a(ACS+4*sec,4)}, {v(b+sec*4,4)}, {v(TMP,4)}, {'0' if m == 0 else a(ACS+4*sec,4)}")

    def emit_groups(self, gs):
        for g in gs:
            for t in g: self.A(t)

    def p2(self):
        A = self.A
        ti = sum(JOBS[k][0] << (3*k) for k in range(13))
        tj = sum(JOBS[k][1] << (3*k) for k in range(13))
        A(f"s_min_u32 {s(sT3)}, {s(sR)}, 17")
        A(f"s_min_u32 {s(sT0)}, {s(sR)}, 13")
        A(f"s_mul_i32 {s(sT0)}, {s(sT0)}, 3")
        A(f"s_mov_b32 {s(sC)}, {ti & 0xffffffff}")
        A(f"s_mov_b32 {s(sC+1)}, {ti >> 32}")
        A(f"s_lshr_b64 {s(sC,2)}, {s(sC,2)}, {s(sT0)}")
        A(f"s_and_b32 {s(sT1)}, {s(sC)}, 7")
        A(f"s_mov_b32 {s(sC)}, {tj & 0xffffffff}")
        A(f"s_mov_b32 {s(sC+1)}, {tj >> 32}")
        A(f"s_lshr_b64 {s(sC,2)}, {s(sC,2)}, {s(sT0)}")
        A(f"s_and_b32 {s(sT2)}, {s(sC)}, 7")
        self.srd(SRD_A, P_WS, WS_PART, WS_PART_SZ)
        A(f"s_lshl_b32 {s(sT4)}, {s(sG)}, 5")
        A(f"s_lshl_b32 {s(sT0)}, {s(sW)}, 3")
        A(f"s_add_u32 {s(sT4)}, {s(sT4)}, {s(sT0)}")
        A(f"s_mul_i32 {s(sT4)}, {s(sT4)}, 18")
        A(f"s_add_u32 {s(sT4)}, {s(sT4)}, {s(sT3)}")
        A(f"s_lshl_b32 {s(sK)}, {s(sT4)}, 10")
        A(f"s_mov_b32 {s(sC)}, 3277")
        A("v_and_b32 v3, 15, v1")
        A(f"s_lshl_b32 {s(sT0)}, {s(sT2)}, 4")
        A(f"v_add_u32 v3, {s(sT0)}, v3")
        A(f"v_mul_lo_u32 v3, v3, {s(sC)}")
        A("v_lshrrev_b32 v3, 16, v3")
        A("v_lshrrev_b32 v4, 4, v1")
        A(f"s_lshl_b32 {s(sT0)}, {s(sT1)}, 4")
        A(f"v_lshl_add_u32 v4, v4, 2, {s(sT0)}")
        for r in range(4):
            A(f"v_add_u32 v5, {r}, v4")
            A(f"v_mul_lo_u32 v5, v5, {s(sC)}")
            A("v_lshrrev_b32 v5, 16, v5")
            A(f"v_cmp_eq_u32 {s(sMASK+2*r,2)}, v5, v3")
        A(f"s_cmp_ge_u32 {s(sR)}, 13")
        for r in range(4): A(f"s_cselect_b64 {s(sMASK+2*r,2)}, -1, {s(sMASK+2*r,2)}")
        def setupA():
            A(f"s_add_u32 {s(sT0)}, {s(sG)}, {C_A}")
            A(f"s_lshl_b32 {s(sT0)}, {s(sT0)}, 7")
            A(f"v_mov_b32 v2, {s(sT0)}")
        self.poll(SRD_CNT, setupA, 1, 32, 2)
        self.stamp('cA')
        T = 164
        A("v_lshlrev_b32 v6, 4, v1")
        for k in range(8):
            A(f"buffer_load_dwordx4 {v(T+4*k,4)}, v6, {s(SRD_A,4)}, {s(sK)} offen sc1")
            if k < 7: A(f"s_add_u32 {s(sK)}, {s(sK)}, {18*1024}")
        self.q_epilogue()
        self.stamp('q_epi')
        A("s_waitcnt vmcnt(0)")
        for k in (4, 2, 1):
            for b in range(k):
                for p in range(2):
                    A(f"v_pk_add_f32 {v(T+4*b+2*p,2)}, {v(T+4*b+2*p,2)}, {v(T+4*(b+k)+2*p,2)}")
        A(f"s_lshl_b32 {s(sT0)}, {s(sW)}, 10")
        A(f"s_add_u32 {s(sT0)}, {s(sT0)}, {RED2}")
        A(f"v_add_u32 v3, {s(sT0)}, v6")
        A(f"ds_write_b128 v3, {v(T,4)}")
        A("s_waitcnt lgkmcnt(0)")
        A("s_barrier")
        Lr = A.newlabel('red')
        A(f"s_cmp_lg_u32 {s(sW)}, 0")
        A(f"s_cbranch_scc1 {Lr}")
        A(f"v_add_u32 v3, {RED2}, v6")
        for k in range(4):
            A(f"ds_read_b128 {v(T+4*k,4)}, v3 offset:{k*1024}")
        self.srd(SRD_B, P_WS, WS_KVF, WS_KVF_SZ)
        A(f"s_lshl_b32 {s(sT0)}, {s(sG)}, 14")
        A(f"s_lshl_b32 {s(sT1)}, {s(sR)}, 9")
        A(f"s_add_u32 {s(sT0)}, {s(sT0)}, {s(sT1)}")
        A(f"s_cmp_lt_u32 {s(sR)}, 18")
        A(f"s_cselect_b32 {s(sT0)}, {s(sT0)}, {OOB}")
        A("v_lshlrev_b32 v5, 3, v1")
        A("s_waitcnt lgkmcnt(0)")
        for p in range(2):
            A(f"v_pk_add_f32 {v(T+2*p,2)}, {v(T+2*p,2)}, {v(T+4+2*p,2)}")
            A(f"v_pk_add_f32 {v(T+8+2*p,2)}, {v(T+8+2*p,2)}, {v(T+12+2*p,2)}")
        for p in range(2):
            A(f"v_pk_add_f32 {v(T+2*p,2)}, {v(T+2*p,2)}, {v(T+8+2*p,2)}")
        for r in range(4):
            A(f"v_cndmask_b32 v{T+r}, 0, v{T+r}, {s(sMASK+2*r,2)}")
        A(f"v_cvt_pk_bf16_f32 v{T}, v{T}, v{T+1}")
        A(f"v_cvt_pk_bf16_f32 v{T+1}, v{T+2}, v{T+3}")
        A(f"buffer_store_dwordx2 {v(T,2)}, v5, {s(SRD_B,4)}, {s(sT0)} offen sc1 ; @nocount")
        A("s_waitcnt vmcnt(0)")
        A(f"s_add_u32 {s(sT0)}, {s(sG)}, {C_B}")
        self.signal(sT0, 4)
        A.label(Lr)
        self.stamp('red_done')
        for t in self.slab_voffset_l(VSLAB4, 3456): A(t)
        self.srd(SRD_W, P_WG, 0, 640 * 3456)
        A(f"s_sub_u32 {s(SRD_W2)}, {s(P_WU)}, 1024")
        A(f"s_subb_u32 {s(SRD_W2+1)}, {s(P_WU+1)}, 0")
        A(f"s_mov_b32 {s(SRD_W2+2)}, {640 * 3456 + 1024}")
        A(f"s_mov_b32 {s(SRD_W2+3)}, 0x20000")
        self.emit_groups(self.w4_groups(0, W4_E1))
        A(f"s_add_u32 {s(sT0)}, {s(sW)}, 4")
        A(f"s_mul_i32 {s(sT0)}, {s(sT0)}, {STAGE}")
        A(f"s_and_b32 {s(sT1)}, {s(sW)}, 1")
        A(f"s_lshl_b32 {s(sT1)}, {s(sT1)}, 1")
        self.tr_addrs(VTR3, s(sT0), perm_sgpr=sT1)
        for mm, rows in enumerate(((0, 16), (32, 48), (80, 96), (112, 128), (64, 144))):
            for ct in range(4):
                for sec in range(2):
                    A(f"ds_read_b64_tr_b16 {a(mm*16+ct*4+2*sec,2)}, v{VTR3+ct} offset:{rows[sec]*128}")
        A("WAITVM w4 lgkmcnt(0)")
        A("s_barrier")
        self.colsum_part(0, W4_E1, 6, 196)
        MK = 136
        A("v_and_b32 v2, 15, v1")
        A("v_lshrrev_b32 v3, 4, v1")
        A(f"s_mov_b32 {s(sC)}, 3277")
        for j in range(5):
            A(f"v_add_u32 v4, {16*j}, v2")
            A(f"v_mul_lo_u32 v4, v4, {s(sC)}")
            A(f"v_lshrrev_b32 v{150+j}, 16, v4")
            A(f"v_lshl_add_u32 v4, v3, 2, {16*j}")
            A(f"v_mul_lo_u32 v4, v4, {s(sC)}")
            A(f"v_lshrrev_b32 v{155+j}, 16, v4")
        for k, (ii, jj) in enumerate(JOBS[:13]):
            A(f"v_cmp_eq_u32 vcc, v{155+ii}, v{150+jj}")
            A(f"v_cndmask_b32 v{MK+k}, 0, -1, vcc")
        for f in (2, 4, 6):
            A(f"v_mov_b32 v{164+4*f+2}, 0"); A(f"v_mov_b32 v{164+4*f+3}, 0")
        self.srd(SRD_A, P_WS, WS_KVF, WS_KVF_SZ)
        A("v_lshlrev_b32 v6, 4, v1")
        def setupB():
            A(f"s_add_u32 {s(sT0)}, {s(sG)}, {C_B}")
            A(f"s_lshl_b32 {s(sT0)}, {s(sT0)}, 7")
            A(f"v_mov_b32 v2, {s(sT0)}")
        A("s_waitcnt lgkmcnt(0)")
        self.poll(SRD_CNT, setupB, 1, 32, 2)
        self.stamp('cB')
        PQ = self.PQ
        KV, ZP, DF = 164, 200, 212
        plan = [(0, 0, 1), (1, 0, 1), (1, 2, None), (2, 1, 2), (2, 3, None), (3, 2, 3), (3, 4, None), (4, 3, 4)]
        A("v_lshlrev_b32 v5, 3, v1")
        A(f"s_lshl_b32 {s(sT0)}, {s(sG)}, 14")
        A(f"s_add_u32 {s(sT1)}, {s(sT0)}, 4096")
        A(f"s_add_u32 {s(sT2)}, {s(sT0)}, 8192")
        def item_load(dst, item, tag):
            so, off = (sT0, sT1, sT2)[item // 8], (item % 8)*512
            return f"buffer_load_dwordx2 {v(dst,2)}, v5, {s(SRD_A,4)}, {s(so)} offen offset:{off} sc1 ; @{tag}"
        for i in range(5): A(item_load(ZP + 2*i, 13 + i, 'z'))
        for f, (j, i0_, i1_) in enumerate(plan):
            A(item_load(KV + 4*f, 2*i0_ + j, f'kv{f}'))
            if i1_ is not None: A(item_load(KV + 4*f + 2, 2*i1_ + j, f'kv{f}'))
        NUM, DEN = 96, 116
        self.srd(SRD_B, P_WS, WS_O, WS_O_SZ)
        A(f"s_lshl_b32 {s(sT0)}, {s(sR)}, 2")
        A(f"s_add_u32 {s(sT0)}, {s(sT0)}, {s(sW)}")
        A(f"s_mul_i32 {s(sT0)}, {s(sT0)}, {20*1024}")
        A(f"s_lshr_b32 {s(sT1)}, {s(sG)}, 1")
        A(f"s_mul_i32 {s(sT1)}, {s(sT1)}, 5120")
        A(f"s_add_u32 {s(sT0)}, {s(sT0)}, {s(sT1)}")
        A(f"s_and_b32 {s(sT1)}, {s(sG)}, 1")
        A(f"s_lshl_b32 {s(sT2)}, {s(sT1)}, 11")
        A(f"s_add_u32 {s(sT2)}, {s(sT2)}, {s(sT0)}")
        A(f"s_lshl_b32 {s(sT3)}, {s(sT1)}, 9")
        A(f"s_add_u32 {s(sT3)}, {s(sT3)}, {s(sT0)}")
        A(f"s_add_u32 {s(sT3)}, {s(sT3)}, 4096")
        A(f"s_mov_b32 {s(sC)}, 0x358637bd")
        A(f"s_mov_b32 {s(sC+1)}, 0x358637bd")
        A("WAITVM z")
        for f, (j, i0_, i1_) in enumerate(plan):
            first = (f == 0 or plan[f-1][0] != j)
            d = DF + 4*(f & 1)
            for h, ii in enumerate((i0_, i1_)):
                if ii is None:
                    A(f"v_mov_b32 v{d+2*h}, 0"); A(f"v_mov_b32 v{d+2*h+1}, 0")
                else:
                    mk = MK + [k for k, jb in enumerate(JOBS[:13]) if jb == (ii, j)][0]
                    A(f"v_and_b32 v{d+2*h}, v{ZP+2*ii}, v{mk}"); A(f"v_and_b32 v{d+2*h+1}, v{ZP+2*ii+1}, v{mk}")
            A(f"{MF} {v(DEN+4*j,4)}, {v(d,4)}, {v(PQ+2*i0_,4)}, {'0' if first else v(DEN+4*j,4)}")
        for f, (j, i0_, i1_) in enumerate(plan):
            first = (f == 0 or plan[f-1][0] != j)
            A(f"WAITVM kv{f}")
            A(f"{MF} {v(NUM+4*j,4)}, {v(KV+4*f,4)}, {v(PQ+2*i0_,4)}, {'0' if first else v(NUM+4*j,4)}")
        for j in range(5):
            for p in range(2):
                A(f"v_pk_add_f32 {v(DEN+4*j+2*p,2)}, {v(DEN+4*j+2*p,2)}, {s(sC,2)}")
        for j in range(5):
            for r in range(4):
                A(f"v_rcp_f32 v{DEN+4*j+r}, v{DEN+4*j+r}")
        OP = 164
        for j in range(5):
            for p in range(2):
                A(f"v_pk_mul_f32 {v(NUM+4*j+2*p,2)}, {v(NUM+4*j+2*p,2)}, {v(DEN+4*j+2*p,2)}")
            A(f"v_cvt_pk_bf16_f32 v{OP+2*j}, v{NUM+4*j}, v{NUM+4*j+1}")
            A(f"v_cvt_pk_bf16_f32 v{OP+2*j+1}, v{NUM+4*j+2}, v{NUM+4*j+3}")
            if j == 1: A(f"buffer_store_dwordx4 {v(OP,4)}, v6, {s(SRD_B,4)}, {s(sT2)} offen sc1")
            if j == 3: A(f"buffer_store_dwordx4 {v(OP+4,4)}, v6, {s(SRD_B,4)}, {s(sT2)} offen offset:1024 sc1")
            if j == 4: A(f"buffer_store_dwordx2 {v(OP+8,2)}, v5, {s(SRD_B,4)}, {s(sT3)} offen sc1")
        A("s_waitcnt vmcnt(0)")
        A("s_barrier")
        A(f"s_add_u32 {s(sT0)}, {s(sR)}, {C_O}")
        self.signal(sT0, 4)
        self.stamp('o_sig')
        self.emit_groups(self.w4_groups(W4_E1, W4_E2))

    def slot_tile(self, a_, b_): return (a_*4 + b_)
    def reduce_writes(self, ACC, rels):
        out = []
        for a_ in range(6):
            for b_ in range(4):
                rel = (a_ // 3) * 2 + (b_ >> 1)
                if rel in rels:
                    idx = (a_ % 3) * 2 + (b_ & 1)
                    out.append(f"ds_write_b128 v{self.VRW+rel-1}, {v(ACC + (a_*4+b_)*4, 4)} offset:{idx*1024}")
        return out
    def reduce_setup(self, VRW, VRR):
        A = self.A
        self.VRW, self.VRR = VRW, VRR
        for rel in range(1, 4):
            A(f"s_xor_b32 {s(sT0)}, {s(sW)}, {rel}")
            A(f"s_mul_i32 {s(sT0)}, {s(sT0)}, {3*6144}")
            A(f"s_add_u32 {s(sT0)}, {s(sT0)}, {RED3 + (rel-1)*6144}")
            A(f"v_lshl_add_u32 v{VRW+rel-1}, v1, 4, {s(sT0)}")
        A(f"s_mul_i32 {s(sT0)}, {s(sW)}, {3*6144}")
        A(f"s_add_u32 {s(sT0)}, {s(sT0)}, {RED3}")
        A(f"v_lshl_add_u32 v{VRR}, v1, 4, {s(sT0)}")
    def reduce_finish(self, ACC, TMP):
        A = self.A
        for rel in range(1, 4):
            for idx in range(6):
                A(f"ds_read_b128 {v(TMP + ((rel-1)*6+idx)*4, 4)}, v{self.VRR} offset:{(rel-1)*6144 + idx*1024}")
        for rel in range(1, 4):
            A(f"s_waitcnt lgkmcnt({min(15, 6*(3-rel))})")
            for idx in range(6):
                d = ACC + ((idx // 2)*4 + (idx & 1))*4; t = TMP + ((rel-1)*6+idx)*4
                for p in range(2):
                    A(f"v_pk_add_f32 {v(d+2*p,2)}, {v(d+2*p,2)}, {v(t+2*p,2)}")

    def p3(self):
        A = self.A
        Lend = A.newlabel('p3end')
        A(f"s_cmp_eq_u32 {s(sV3)}, 0")
        A(f"s_cbranch_scc1 {Lend}")
        ACC, XR = 16, 112
        A("v_and_b32 v2, 15, v1")
        A("v_mul_u32_u24 v2, 1280, v2")
        A("v_lshrrev_b32 v3, 4, v1")
        A(f"v_lshl_add_u32 v{VXR}, v3, 3, v2")
        A(f"s_lshr_b32 {s(sT0)}, {s(sW)}, 1")
        A(f"s_mul_i32 {s(sT0)}, {s(sT0)}, 3")
        A(f"s_mul_i32 {s(sT1)}, {s(sR3)}, 6")
        A(f"s_add_u32 {s(sTT)}, {s(sT0)}, {s(sT1)}")
        A(f"s_mul_i32 {s(sT0)}, {s(sTT)}, {16*1280}")
        A(f"s_lshl_b32 {s(sT1)}, {s(sC3)}, 7")
        A(f"s_add_u32 {s(sT0)}, {s(sT0)}, {s(sT1)}")
        A(f"s_and_b32 {s(sT1)}, {s(sW)}, 1")
        A(f"s_lshl_b32 {s(sT1)}, {s(sT1)}, 6")
        A(f"s_add_u32 {s(sXO)}, {s(sT0)}, {s(sT1)}")
        A(f"s_add_u32 {s(sT0)}, {s(sXO)}, 2048")
        for i in range(3):
            for c in range(2):
                A(f"buffer_load_dwordx2 {v(XR+4*i+2*c,2)}, v{VXR}, {s(SRD_X,4)}, {s(sT0)} offen offset:{32*c}")
            if i < 2: A(f"s_add_u32 {s(sT0)}, {s(sT0)}, {16*1280}")
        self.reduce_setup(124, 127)
        self.srd(SRD_A, P_WS, WS_O, WS_O_SZ)
        VA = 128
        A("v_lshlrev_b32 v2, 4, v1")
        A(f"s_lshr_b32 {s(sT0)}, {s(sW)}, 1")
        A(f"s_mul_i32 {s(sT0)}, {s(sT0)}, {3*20*1024}")
        for a_ in range(6):
            if a_ < 3:
                A(f"s_add_u32 {s(sT1)}, {s(sT0)}, {a_*20*1024}")
            else:
                A(f"s_sub_u32 {s(sT1)}, {a_*20*1024}, {s(sT0)}")
                A(f"s_cmp_ge_u32 {s(sT1)}, {3*20*1024}")
            A(f"v_add_u32 v{VA+a_}, {s(sT1)}, v2")
        A(f"s_mul_i32 {s(sK)}, {s(sR3)}, {6*20*1024}")
        A(f"s_mul_i32 {s(sT1)}, {s(sW)}, {5*1024}")
        A(f"s_add_u32 {s(sK)}, {s(sK)}, {s(sT1)}")
        def setup():
            A(f"s_mul_i32 {s(sT0)}, {s(sR3)}, 3")
            A(f"s_lshr_b32 {s(sT0)}, {s(sT0)}, 1")
            A(f"v_add_u32 v2, {s(sT0)}, v1")
            A("v_min_u32 v2, 31, v2")
            A(f"v_add_u32 v2, {C_O}, v2")
            A("v_lshlrev_b32 v2, 7, v2")
        self.poll(SRD_CNT, setup, 2, 8, 2)
        self.stamp('cO')
        OF = 80
        VB8 = 208
        order = [3, 4, 5, 0, 1, 2]
        A(f"s_add_u32 {s(sK3)}, {s(sK)}, 4096")
        A("v_lshlrev_b32 v3, 3, v1")
        A("v_lshlrev_b32 v4, 4, v1")
        A("v_sub_u32 v3, v3, v4")
        for a_ in range(6): A(f"v_add_u32 v{VB8+a_}, v{VA+a_}, v3")
        for a_ in order:
            for mm in range(4):
                A(f"buffer_load_dwordx4 {a(OF+(a_*5+mm)*4,4)}, v{VA+a_}, {s(SRD_A,4)}, {s(sK)} offen offset:{mm*1024} sc1 ; @o{a_}")
            for h in range(2):
                A(f"buffer_load_dwordx2 {a(OF+(a_*5+4)*4+2*h,2)}, v{VB8+a_}, {s(SRD_A,4)}, {s(sK3)} offen offset:{h*512} sc1 ; @o{a_}")
        def mm_tile(a_, b_, mm):
            d = ACC + (a_*4+b_)*4
            return f"{MF} {v(d,4)}, {a(mm*16+b_*4,4)}, {a(OF+(a_*5+mm)*4,4)}, {'0' if mm == 0 else v(d,4)}"
        for n, a_ in enumerate((3, 4, 5)):
            A(f"WAITVM o{a_}")
            for mm in range(5):
                for b_ in range(4): A(mm_tile(a_, b_, mm))
        main = []
        for n, a_ in enumerate((0, 1, 2)):
            blk = [mm_tile(a_, b_, mm) for mm in range(5) for b_ in (2, 3)]
            main += [f"WAITVM o{a_}"] + blk
        wr = self.reduce_writes(ACC, (2, 3))
        for t in weave(main, [([[x] for x in wr], 8, len(main))]): A(t)
        main = [mm_tile(a_, b_, mm) for a_ in range(3) for mm in range(5) for b_ in (0, 1)]
        wr = self.reduce_writes(ACC, (1,))
        for t in weave(main, [([[x] for x in wr], 6, 24)]): A(t)
        self.stamp('p3_mfma')
        A("s_waitcnt lgkmcnt(0)")
        A("s_barrier")
        self.reduce_finish(ACC, 136)
        self.stamp('p3_red')
        T = 136; HR = 148
        self.srd(SRD_B, P_WS, WS_H, WS_H_SZ)
        A(f"s_mul_i32 {s(sT0)}, {s(sTT)}, 20")
        A(f"s_lshl_b32 {s(sT1)}, {s(sC3)}, 1")
        A(f"s_add_u32 {s(sT0)}, {s(sT0)}, {s(sT1)}")
        A(f"s_and_b32 {s(sT1)}, {s(sW)}, 1")
        A(f"s_add_u32 {s(sT0)}, {s(sT0)}, {s(sT1)}")
        A(f"s_lshl_b32 {s(sT1)}, {s(sT0)}, 10")
        A(f"s_lshl_b32 {s(sT2)}, {s(sTT)}, 7")
        A(f"s_add_u32 {s(sT2)}, {s(sT2)}, {WS_ST2}")
        A(f"s_cmp_lt_u32 {s(sTT)}, 128")
        A(f"s_cselect_b32 {s(sT2)}, {s(sT2)}, {OOB}")
        A("v_lshlrev_b32 v4, 4, v1")
        A("v_and_b32 v5, 15, v1")
        A("v_lshlrev_b32 v5, 3, v5")
        A("v_bfe_u32 v6, v1, 4, 1")
        A(f"v_cmp_eq_u32 {s(sMASK,2)}, 1, v6")
        A("v_lshl_add_u32 v5, v6, 2, v5")
        for i in range(3):
            for c in range(2):
                o = ACC + (i*4+c)*4
                for hreg in range(2):
                    x = XR + 4*i + 2*c + hreg
                    A(f"v_lshlrev_b32 v{T}, 16, v{x}")
                    A(f"v_and_b32 v{T+1}, 0xffff0000, v{x}")
                    A(f"v_pk_add_f32 {v(o+2*hreg,2)}, {v(o+2*hreg,2)}, {v(T,2)}")
            o = ACC + i*16
            for k in range(4):
                A(f"v_cvt_pk_bf16_f32 v{HR+4*i+k}, v{o+2*k}, v{o+2*k+1}")
            A(f"buffer_store_dwordx4 {v(HR+4*i,4)}, v4, {s(SRD_B,4)}, {s(sT1)} offen sc1")
            if i < 2: A(f"s_add_u32 {s(sT1)}, {s(sT1)}, {20*1024}")
        for i in range(3):
            o = ACC + i*16
            A(f"v_pk_mul_f32 {v(T+2,2)}, {v(o,2)}, {v(o,2)}")
            A(f"v_pk_add_f32 {v(T,2)}, {v(o,2)}, {v(o+2,2)}")
            A(f"v_pk_fma_f32 {v(T+2,2)}, {v(o+2,2)}, {v(o+2,2)}, {v(T+2,2)}")
            for k in (4, 6):
                A(f"v_pk_add_f32 {v(T,2)}, {v(T,2)}, {v(o+k,2)}")
                A(f"v_pk_fma_f32 {v(T+2,2)}, {v(o+k,2)}, {v(o+k,2)}, {v(T+2,2)}")
            A(f"v_add_f32 v{T}, v{T}, v{T+1}")
            A(f"v_add_f32 v{T+1}, v{T+2}, v{T+3}")
            for sw in ('v_permlane16_swap_b32', 'v_permlane32_swap_b32'):
                A(f"v_mov_b32 v{T+2}, v{T}")
                A(f"v_mov_b32 v{T+3}, v{T+1}")
                A(f"{sw} v{T}, v{T+2}")
                A(f"{sw} v{T+1}, v{T+3}")
                A(f"v_pk_add_f32 {v(T,2)}, {v(T,2)}, {v(T+2,2)}")
            A(f"v_cndmask_b32 v{T+4+i}, v{T}, v{T+1}, {s(sMASK,2)}")
            A("s_mov_b64 exec, 0xffffffff")
            A(f"buffer_atomic_add_f32 v{T+4+i}, v5, {s(SRD_CNT,4)}, {s(sT2)} offen sc1")
            A("s_mov_b64 exec, -1")
            if i < 2:
                A(f"s_add_u32 {s(sT2)}, {s(sT2)}, 128")
                A(f"s_cmp_lt_u32 {s(sT2)}, {WS_ST2 + 2048*8}")
                A(f"s_cselect_b32 {s(sT2)}, {s(sT2)}, {OOB}")
        for k in range(12):
            A(f"v_accvgpr_write_b32 a{AHRES+k}, v{HR+k}")
        A("s_waitcnt vmcnt(0)")
        A("s_barrier")
        A(f"s_add_u32 {s(sT0)}, {s(sR3)}, {C_H}")
        self.signal(sT0, 4)
        A.label(Lend)
        self.stamp('h_sig')

    def p4(self):
        A = self.A
        Lend = A.newlabel('p4end')
        A(f"s_cmp_eq_u32 {s(sV4)}, 0")
        A(f"s_cbranch_scc1 {Lend}")
        ACC = 16; CSR = 160; T = 208
        WF = 0; AF = 64; D = 5
        self.emit_groups(self.w4_groups(W4_E2, 20))
        self.tr_addrs4(VTR4)
        self.srd(SRD_A, P_WS, WS_H, WS_H_SZ)
        VA = T + 20
        A("v_lshlrev_b32 v4, 4, v1")
        for i in range(4): A(f"v_add_u32 v{VA+i}, {i*20*1024}, v4")
        A(f"s_lshl_b32 {s(sT0)}, {s(sR4)}, 4")
        A(f"s_lshl_b32 {s(sT1)}, {s(sW)}, 2")
        A(f"s_add_u32 {s(sTT4)}, {s(sT0)}, {s(sT1)}")
        A(f"s_mul_i32 {s(sK)}, {s(sTT4)}, {20*1024}")
        A("v_and_b32 v3, 15, v1")
        A("v_lshlrev_b32 v3, 3, v3")
        A(f"v_mov_b32 v{VA+4}, v3")
        def wreads(buf, m):
            return [f"ds_read_b64_tr_b16 {a(WF+buf*32+(sec*4+ct)*4+2*h,2)}, v{VTR4+ct} offset:{(m % 8)*8192 + sec*1024 + h*4096}"
                    for sec in range(2) for ct in range(4) for h in range(2)]
        for t in wreads(0, 0): A(t)
        A("WAITVM w4 lgkmcnt(0)")
        A("s_barrier")
        self.stamp('w4_landed')
        self.colsum_part(W4_E1, 20, 6, 16)
        A("v_lshrrev_b32 v2, 4, v1")
        A("v_lshlrev_b32 v2, 4, v2")
        A(f"s_lshl_b32 {s(sT0)}, {s(sW)}, 6")
        A(f"v_add_u32 v3, {s(sT0)}, v2")
        A(f"ds_write_b128 v3, {a(ACS,4)}")
        A(f"ds_write_b128 v3, {a(ACS+4,4)} offset:256")
        A("s_waitcnt lgkmcnt(0)")
        A("s_barrier")
        for k in range(8):
            A(f"ds_read_b128 {v(CSR+4*k,4)}, v2 offset:{k*64}")
        self.stamp('colsum')
        def setup():
            A(f"s_lshl_b32 {s(sT0)}, {s(sR4)}, 4")
            A(f"s_mul_i32 {s(sT1)}, {s(sT0)}, 43")
            A(f"s_lshr_b32 {s(sT1)}, {s(sT1)}, 8")
            A(f"s_add_u32 {s(sT0)}, {s(sT0)}, 15")
            A(f"s_mul_i32 {s(sT0)}, {s(sT0)}, 43")
            A(f"s_lshr_b32 {s(sT0)}, {s(sT0)}, 8")
            A(f"v_add_u32 v2, {s(sT1)}, v1")
            A(f"v_min_u32 v2, {s(sT0)}, v2")
            A(f"v_add_u32 v2, {C_H}, v2")
            A("v_lshlrev_b32 v2, 7, v2")
        self.poll(SRD_CNT, setup, 4, 10, 2)
        self.stamp('cH')
        def aload_groups(m):
            gs = [[f"buffer_load_dwordx4 {a(AF+(m % D)*16+4*i,4)}, v{VA+i}, {s(SRD_A,4)}, {s(sK)} offen sc1 ; @a{m}"] for i in range(4)]
            gs[-1].append(f"s_add_u32 {s(sK)}, {s(sK)}, 1024")
            return gs
        NPRE = 3
        for m in range(NPRE): self.emit_groups(aload_groups(m))
        MEAN, RS2 = 192, 200
        A(f"s_lshl_b32 {s(sT0)}, {s(sTT4)}, 7")
        A(f"s_add_u32 {s(sT0)}, {s(sT0)}, {WS_ST2}")
        for i in range(4):
            A(f"buffer_load_dwordx2 {v(T+2*i,2)}, v{VA+4}, {s(SRD_CNT,4)}, {s(sT0)} offen offset:{i*128} sc1 ; @stat")
        def stat_math():
            o = []
            for i in range(4):
                o += [f"v_mul_f32 v{MEAN+2*i}, {1.0/640!r}, v{T+2*i}", f"v_mul_f32 v{T+2*i+1}, {1.0/640!r}, v{T+2*i+1}"]
            for i in range(4): o.append(f"v_fma_f32 v{T+2*i+1}, -v{MEAN+2*i}, v{MEAN+2*i}, v{T+2*i+1}")
            for i in range(4): o.append(f"v_max_f32 v{T+2*i+1}, 0, v{T+2*i+1}")
            for i in range(4): o.append(f"v_add_f32 v{T+2*i+1}, 0x3727c5ac, v{T+2*i+1}")
            for i in range(4): o.append(f"v_rcp_f32 v{RS2+2*i}, v{T+2*i+1}")
            return o
        P = Pacer(A)
        P.slack = 0.8
        w5a = self.w5_groups(0, 5, 'w5a')
        w5b = self.w5_groups(5, 10, 'w5b', region_a=True)
        for m in range(NPRE, 20):
            P.push(aload_groups(m), 19, None if m < D else f'it{m-D}', f'a{m}')
            if m >= 12 and m < 17: P.push(w5a[(m-12)*4:(m-11)*4], 19, 'w5ok', 'w5a')
        P.push(w5b, 19, 'w5a_read', 'w5b')
        A(f"s_mul_i32 {s(sT0)}, {s(sW)}, 20480")
        A(f"s_and_b32 {s(sT1)}, {s(sW)}, 1")
        A(f"s_lshl_b32 {s(sT1)}, {s(sT1)}, 1")
        self.tr_addrs(VTR3, s(sT0), perm_sgpr=sT1)
        def w5a_reads(mm):
            return [f"ds_read_b64_tr_b16 {a(W5A+mm*16+ct*4+2*h,2)}, v{VTR3+ct} offset:{mm*4096 + h*2048}" for ct in range(4) for h in range(2)]
        for m in range(20):
            buf = m & 1
            P.flush(f'a{m}')
            self.lstamp_pre(f'p4k{m}')
            A(f"WAITVM a{m} lgkmcnt(0)")
            self.lstamp_post()
            if m == 10:
                A("s_barrier")
                P.event('w5ok')
            side = []
            if m + 1 < 20:
                if (m + 1) in (8, 16):
                    side += [f"v_add_u32 v{VTR4+ct}, 65536, v{VTR4+ct}" for ct in range(4)]
                side += wreads(buf ^ 1, m + 1)
            if m == 3:
                A("WAITVM stat")
                side += stat_math()
            if m == 16:
                P.flush('w5a')
                A("WAITVM w5a")
            if m in (16, 17):
                for mm in (range(0, 3) if m == 16 else range(3, 5)): side += w5a_reads(mm)
            if m == 18: P.event('w5a_read')
            k = 0
            for n in range(32):
                i, sec, ct = n // 8, (n // 4) % 2, n % 4
                d = ACC + n*4
                P.emit(f"{MF} {v(d,4)}, {a(WF+buf*32+(sec*4+ct)*4,4)}, {a(AF+(m % D)*16+4*i,4)}, {'0' if m == 0 else v(d,4)}", feed=True)
                want = min(len(side), n + 1) if len(side) <= 28 else min(len(side), ((n + 1) * len(side) + 27) // 28)
                while k < want:
                    P.emit(side[k], feed=False); k += 1
            P.event(f'it{m}')
        P.flush('w5b')
        self.stamp('p4_loop')
        self.srd(SRD_B, P_WS, WS_HH, WS_HH_SZ)
        A(f"s_mul_i32 {s(sT0)}, {s(sTT4)}, 54")
        A(f"s_lshl_b32 {s(sT1)}, {s(sS4)}, 1")
        A(f"s_add_u32 {s(sT0)}, {s(sT0)}, {s(sT1)}")
        A(f"s_lshl_b32 {s(sK)}, {s(sT0)}, 10")
        A("v_lshlrev_b32 v6, 4, v1")
        body = []
        for i in range(4):
            for pair in range(2):
                P = T + 8 + ((i*2+pair) & 1) * 4
                for c in range(2):
                    ct = 2*pair + c
                    g = ACC + (i*8 + ct)*4; u = ACC + (i*8 + 4 + ct)*4
                    for p in range(2):
                        body.append(f"v_pk_fma_f32 {v(g+2*p,2)}, {v(CSR+4*ct+2*p,2)}, {v(MEAN+2*i,2)}, {v(g+2*p,2)} op_sel_hi:[1,0,1] neg_lo:[1,0,0] neg_hi:[1,0,0]")
                        body.append(f"v_pk_fma_f32 {v(u+2*p,2)}, {v(CSR+16+4*ct+2*p,2)}, {v(MEAN+2*i,2)}, {v(u+2*p,2)} op_sel_hi:[1,0,1] neg_lo:[1,0,0] neg_hi:[1,0,0]")
                    for r in range(4):
                        body.append(f"v_max_f32 v{g+r}, 0, v{g+r}")
                    for p in range(2):
                        body.append(f"v_pk_mul_f32 {v(u+2*p,2)}, {v(u+2*p,2)}, {v(RS2+2*i,2)} op_sel_hi:[1,0]")
                    for p in range(2):
                        body.append(f"v_pk_mul_f32 {v(g+2*p,2)}, {v(g+2*p,2)}, {v(u+2*p,2)}")
                    body.append(f"v_cvt_pk_bf16_f32 v{P+2*c}, v{g}, v{g+1}")
                    body.append(f"v_cvt_pk_bf16_f32 v{P+2*c+1}, v{g+2}, v{g+3}")
                body.append(f"buffer_store_dwordx4 {v(P,4)}, v6, {s(SRD_B,4)}, {s(sK)} offen offset:{pair*1024} sc1 ; @hh")
            if i < 3: body.append(f"s_add_u32 {s(sK)}, {s(sK)}, {54*1024}")
        for t in body: A(t)
        A("s_waitcnt vmcnt(0)")
        A("s_barrier")
        A(f"s_add_u32 {s(sT0)}, {s(sR4)}, {C_HH}")
        self.signal(sT0, 4)
        self.stamp('hh_sig')
        Lj = A.newlabel('p4join')
        A(f"s_branch {Lj}")
        A.label(Lend)
        A("s_waitcnt vmcnt(0)")
        A("s_barrier")
        self.emit_groups(self.w5_groups(0, 5, 'w5a'))
        A(f"s_mul_i32 {s(sT0)}, {s(sW)}, 20480")
        A(f"s_and_b32 {s(sT1)}, {s(sW)}, 1")
        A(f"s_lshl_b32 {s(sT1)}, {s(sT1)}, 1")
        self.tr_addrs(VTR3, s(sT0), perm_sgpr=sT1)
        A("s_waitcnt vmcnt(0)")
        for mm in range(5):
            for ct in range(4):
                for h in range(2):
                    A(f"ds_read_b64_tr_b16 {a(W5A+mm*16+ct*4+2*h,2)}, v{VTR3+ct} offset:{mm*4096 + h*2048}")
        A("s_waitcnt lgkmcnt(0)")
        self.emit_groups(self.w5_groups(5, 10, 'w5b', region_a=True))
        A("s_waitcnt vmcnt(0)")
        A.label(Lj)

    def p5(self):
        A = self.A
        Lend = A.newlabel('p5end')
        A(f"s_cmp_eq_u32 {s(sV3)}, 0")
        A(f"s_cbranch_scc1 {Lend}")
        ACC = 16
        AF = 112; D = 8
        self.emit_groups(self.w5_groups(10, 14, 'w5c'))
        for ct in range(4): A(f"v_add_u32 v{VTR4+ct}, 81920, v{VTR3+ct}")
        def w5reg(mm): return W5A + mm*16 if mm < 5 else (mm - 5)*16
        def w5reads(m0, m1):
            base = VTR4 if m0 >= 10 else VTR3
            for mm in range(m0, m1):
                for ct in range(4):
                    for h in range(2):
                        A(f"ds_read_b64_tr_b16 {a(w5reg(mm)+ct*4+2*h,2)}, v{base+ct} offset:{(mm-m0)*4096 + h*2048}")
        w5reads(5, 10)
        self.reduce_setup(232, 235)
        self.srd(SRD_A, P_WS, WS_HH, WS_HH_SZ)
        VA = 236
        A("v_lshlrev_b32 v2, 4, v1")
        A(f"s_lshr_b32 {s(sT0)}, {s(sW)}, 1")
        A(f"s_mul_i32 {s(sT0)}, {s(sT0)}, {3*54*1024}")
        for a_ in range(6):
            if a_ < 3: A(f"s_add_u32 {s(sT1)}, {s(sT0)}, {a_*54*1024}")
            else: A(f"s_sub_u32 {s(sT1)}, {a_*54*1024}, {s(sT0)}")
            A(f"v_add_u32 v{VA+a_}, {s(sT1)}, v2")
        A(f"s_mul_i32 {s(sT0)}, {s(sR3)}, {6*54}")
        A(f"s_mul_i32 {s(sT2)}, {s(sW)}, 14")
        A(f"s_add_u32 {s(sT0)}, {s(sT0)}, {s(sT2)}")
        A(f"s_lshl_b32 {s(sWA)}, {s(sT0)}, 10")
        A("WAITVM w5c")
        w5reads(10, 14)
        A("s_waitcnt lgkmcnt(0)")
        def setup():
            A(f"s_mul_i32 {s(sT0)}, {s(sR3)}, 6")
            A(f"s_lshr_b32 {s(sT1)}, {s(sT0)}, 4")
            A(f"s_add_u32 {s(sT0)}, {s(sT0)}, 5")
            A(f"s_min_u32 {s(sT0)}, {s(sT0)}, 127")
            A(f"s_lshr_b32 {s(sT0)}, {s(sT0)}, 4")
            A(f"v_add_u32 v2, {s(sT1)}, v1")
            A(f"v_min_u32 v2, {s(sT0)}, v2")
            A(f"v_add_u32 v2, {C_HH}, v2")
            A("v_lshlrev_b32 v2, 7, v2")
        self.stamp('w5_regs')
        self.poll(SRD_CNT, setup, 2, 27, 2)
        self.stamp('cHH')
        A(f"s_mul_i32 {s(sWB)}, {s(sW)}, 14")
        def aload_groups(n):
            ps, mm = divmod(n, 14)
            a0 = 3 if ps == 0 else 0
            pre = []
            if mm == 0: pre.append(f"s_mov_b32 {s(sK)}, {s(sWA)}")
            so = sK
            if mm >= 12:
                pre += [f"s_add_u32 {s(sK2)}, {s(sWB)}, {mm}", f"s_cmp_lt_u32 {s(sK2)}, 54",
                        f"s_cselect_b32 {s(sK2)}, {s(sK)}, {OOB}"]
                so = sK2
            gs = [[f"buffer_load_dwordx4 {v(AF+(n % D)*12+4*i,4)}, v{VA+a0+i}, {s(SRD_A,4)}, {s(so)} offen sc1 ; @b{n}"] for i in range(3)]
            gs[0] = pre + gs[0]
            gs[-1].append(f"s_add_u32 {s(sK)}, {s(sK)}, 1024")
            return gs
        NPRE = 6
        for n in range(NPRE): self.emit_groups(aload_groups(n))
        P = Pacer(A)
        P.slack = 0.6
        for n in range(NPRE, 28):
            P.push(aload_groups(n), 19, None if n < D else f'it{n-D}', f'b{n}')
        wr1 = self.reduce_writes(ACC, (2, 3))
        for n in range(28):
            ps, mm = divmod(n, 14)
            a0 = 3 if ps == 0 else 0
            P.flush(f'b{n}')
            A(f"WAITVM b{n}")
            k = 0
            for i in range(3):
                for b_ in (2, 3, 0, 1):
                    d = ACC + ((a0+i)*4+b_)*4
                    P.emit(f"{MF} {v(d,4)}, {a(w5reg(mm)+b_*4,4)}, {v(AF+(n % D)*12+4*i,4)}, {'0' if mm == 0 else v(d,4)}")
                    k += 1
                    if k == 6 and ps == 1 and 1 <= mm <= 12: P.emit(wr1[mm-1], feed=False)
            P.event(f'it{n}')
        self.stamp('p5_mfma')
        for t in self.reduce_writes(ACC, (1,)): A(t)
        self.srd(SRD_B, P_OUT, 0, 2048 * 1280)
        A("s_waitcnt lgkmcnt(0)")
        A("s_barrier")
        self.reduce_finish(ACC, 112)
        self.stamp('p5_red')
        T = 200
        A(f"s_mov_b32 {s(sT0)}, {s(sXO)}")
        for i in range(3):
            for c in range(2):
                o = ACC + (i*4+c)*4
                for hreg in range(2):
                    A(f"v_accvgpr_read_b32 v{T+2}, a{AHRES + 4*i + 2*c + hreg}")
                    A(f"v_lshlrev_b32 v{T}, 16, v{T+2}")
                    A(f"v_and_b32 v{T+1}, 0xffff0000, v{T+2}")
                    A(f"v_pk_add_f32 {v(o+2*hreg,2)}, {v(o+2*hreg,2)}, {v(T,2)}")
                A(f"v_cvt_pk_bf16_f32 v{o}, v{o}, v{o+1}")
                A(f"v_cvt_pk_bf16_f32 v{o+1}, v{o+2}, v{o+3}")
                A(f"buffer_store_dwordx2 {v(o,2)}, v{VXR}, {s(SRD_B,4)}, {s(sT0)} offen offset:{32*c}" + (" sc1" if 'outsc1' in self.exp else " nt" if 'outnt' in self.exp else ""))
            if i < 2: A(f"s_add_u32 {s(sT0)}, {s(sT0)}, {16*1280}")
        A.label(Lend)

    def finish(self):
        A = self.A
        if self.prof:
            A("s_waitcnt vmcnt(0)")
            self.stamp('end')
            self.dump_stamps()
        if 'hdbg' in self.exp:
            A("s_waitcnt vmcnt(0)")
            self.stamp('end')
            self.hreport()
        A.label("L_end")
        A("s_endpgm")

    def build(self):
        self.prologue()
        self.p1()
        if not getattr(self, 'early_exit', False):
            self.p2()
            self.p3()
            self.p4()
            self.p5()
            self.finish()
        else:
            self.A.label("L_end")
            self.A("s_endpgm")
        n = self.A.fix_hazards()
        hdr = open('cdna_kernels/' + NAME + '.s.ref').read().split('; Override launch')[0]
        out = hdr
        out += "; Override launch geometry by editing the next line.\n"
        out += f"; @launch grid=(256,1,1) block=(256,1,1) lds={LDS_BYTES}\n"
        out += '.amdgcn_target "amdgcn-amd-amdhsa--gfx950"\n.text\n'
        out += f".globl {KNAME}\n.p2align 8\n.type {KNAME},@function\n{KNAME}:\n"
        out += self.A.text()
        out += f""".section .rodata,"a"
.p2align 6
.amdhsa_kernel {KNAME}
  .amdhsa_next_free_vgpr 512
  .amdhsa_next_free_sgpr 102
  .amdhsa_accum_offset 256
  .amdhsa_group_segment_fixed_size 0
  .amdhsa_kernarg_size 80
  .amdhsa_user_sgpr_count 2
  .amdhsa_user_sgpr_kernarg_segment_ptr 1
  .amdhsa_system_sgpr_workgroup_id_x 1
.end_amdhsa_kernel
"""
        return out, n

sTT4 = 81
sLK, sLQ = 76, 77

def issued_at_zero(sig):
    return 99

if __name__ == '__main__':
    dbg = '--dbg' in sys.argv
    out = [a for a in sys.argv[1:] if not a.startswith('--')]
    g = G(dbg=dbg, prof='--prof' in sys.argv, exp=next((a.split('=')[1] for a in sys.argv if a.startswith('--exp=')), ''))
    txt, n = g.build()
    path = out[0] if out else 'k.s'
    open(path, 'w').write(txt)
    if g.prof: json.dump(g.stamps, open(path + '.stamps', 'w'))
    print('wrote', path, 'nops inserted', n, 'lines', txt.count('\n'))
```

```python
import sys, json
from asmlib import *

NAME = 'sequential_preLN__linear_attn_block__glu_gated_reglu__prompt'
KNAME = NAME + '_kernel'

WS_CNT, WS_CNT_SZ = 0x0, 0x8000
WS_ST2 = 0x4000
WS_KVF, WS_KVF_SZ = 0x10000, 8 * 16384
WS_HST, WS_HST_SZ = 0x40000, 128 * 20 * 128
WS_PART, WS_PART_SZ = 0x100000, 8 * 32 * 18 * 1024
WS_O, WS_O_SZ = 0x600000, 128 * 20 * 1024
WS_H, WS_H_SZ = 0x900000, 128 * 20 * 1024
WS_HH, WS_HH_SZ = 0xC00000, 128 * 54 * 1024
WS_DBG, WS_DBG_SZ = 0x1400000, 0x1000000
C_A, C_B, C_O, C_H, C_HH = 0, 8, 16, 48, 72
NZERO = 32
OOB = 0x7ff00000

JOBS = [(0,0),(0,1),(1,0),(1,1),(1,2),(2,1),(2,2),(2,3),(3,2),(3,3),(3,4),(4,3),(4,4)] + [(i,5) for i in range(5)]

SRD_X, SRD_W, SRD_W2, SRD_A, SRD_B, SRD_CNT, SRD_T, SRD_DBG = 4, 8, 12, 16, 20, 24, 28, 32
P_X, P_WQKV, P_WO, P_WG, P_WU, P_WD, P_OUT, P_DBG, P_WS = 40, 42, 44, 48, 50, 52, 54, 56, 58
sK2, sK3 = 46, 47
sW, sR, sG, sRHO, sXCD, sJ = 60, 61, 62, 63, 64, 65
sT0, sT1, sT2, sT3, sT4, sT5 = 66, 67, 68, 69, 70, 71
sWA, sWB, sK, sLD = 72, 73, 74, 75
sROT = 76
sMASK = 82
sC = 92
sC2 = 90
sC3, sR3, sV3, sR4, sS4, sV4, sTT, sXO = 94, 95, 96, 97, 98, 99, 100, 101
VSL = 252
VSLAB4, VXR = 8, 15
VTR3, VTR4 = 244, 248
AHRES = 240
AZERO = 253

LDS_BYTES = 163840
STAGE = 20480
def slot_of(sig): return (sig + 4) % 8
FR = 3 * STAGE
CS = FR + 22528
ST = CS + 1024
RED2 = 73728
RED3 = 90112
W4_E1, W4_E2 = 9, 11
W5A = 144
ACS = 232
MF = "v_mfma_f32_16x16x32_bf16"
LOG2E = 1.4426950408889634

def f32bits(x):
    import struct
    return struct.unpack('<I', struct.pack('<f', x))[0]

class G:
    def __init__(self, stop=None, dbg=False, prof=False, exp=''):
        self.exp = exp
        self.A = Asm(); self.stop = stop; self.dbg = dbg; self.prof = prof
        self.stamps = []

    def stamp(self, name):
        if 'hdbg' in self.exp:
            self.hstamp(name); return
        if not self.prof: return
        A = self.A
        i = len(self.stamps); self.stamps.append(name)
        A("s_memrealtime s[36:37]")
        A("s_memtime s[38:39]")
        A("v_accvgpr_read_b32 v7, a252" if i else "v_mov_b32 v7, 0")
        A("s_waitcnt lgkmcnt(0)")
        A(f"v_writelane_b32 v7, s36, {i}")
        A("v_accvgpr_write_b32 a252, v7")
        A("v_accvgpr_read_b32 v7, a254" if i else "v_mov_b32 v7, 0")
        A(f"v_writelane_b32 v7, s38, {i}")
        A("v_accvgpr_write_b32 a254, v7")

    HSTAMPS = ['start', 'x_landed', 'normed', 'p1a_loop', 'p1b_loop', 'cA', 'cB', 'o_sig', 'cO', 'h_sig', 'cH', 'p4_loop', 'cHH', 'p5_mfma', 'end']
    def hstamp(self, name):
        if name not in self.HSTAMPS: return
        A = self.A
        i = self.HSTAMPS.index(name)
        A("s_memrealtime s[36:37]")
        A("v_accvgpr_read_b32 v7, a252" if i else "v_mov_b32 v7, 0")
        A("s_waitcnt lgkmcnt(0)")
        A(f"v_writelane_b32 v7, s36, {i}")
        A("v_accvgpr_write_b32 a252, v7")
    def hreport(self):
        A = self.A
        L = A.newlabel('noh')
        A(f"s_cmp_lg_u32 {s(sW)}, 0")
        A(f"s_cbranch_scc1 {L}")
        A("v_accvgpr_read_b32 v7, a252")
        A("v_not_b32 v6, v7")
        A("v_cmp_eq_u32 vcc, 0, v1")
        A("v_cndmask_b32 v7, v7, v6, vcc")
        A("v_lshlrev_b32 v2, 2, v1")
        A("v_add_u32 v2, 4, v2")
        A("s_mov_b64 exec, 0x7fff")
        A(f"buffer_atomic_umax v7, v2, {s(SRD_DBG,4)}, 0 offen sc1")
        A("s_mov_b64 exec, -1")
        A.label(L)

    def lstamp_pre(self, name):
        if not (self.prof and 'fine' in self.exp): return
        self.A("s_memrealtime s[36:37]")
        self._ls = name
    def lstamp_post(self):
        if not (self.prof and 'fine' in self.exp): return
        i = len(self.stamps); self.stamps.append(self._ls)
        self.A("v_accvgpr_read_b32 v7, a252")
        self.A(f"v_writelane_b32 v7, s36, {i}")
        self.A("v_accvgpr_write_b32 a252, v7")

    def dump_stamps(self):
        A = self.A
        L = A.newlabel('nost')
        A(f"s_cmp_lg_u32 {s(sW)}, 0")
        A(f"s_cbranch_scc1 {L}")
        self.srd(SRD_T, P_WS, WS_DBG + 0x800000, 0x20000)
        A("v_accvgpr_read_b32 v7, a252")
        A("v_lshlrev_b32 v2, 2, v1")
        A(f"s_lshl_b32 {s(sT0)}, s2, 8")
        A(f"buffer_store_dword v7, v2, {s(SRD_T,4)}, {s(sT0)} offen")
        A("v_accvgpr_read_b32 v6, a254")
        A(f"s_add_u32 {s(sT0)}, {s(sT0)}, 0x10000")
        A(f"buffer_store_dword v6, v2, {s(SRD_T,4)}, {s(sT0)} offen")
        A.label(L)

    def srd_l(self, dst, ptr, off, size):
        out = []
        if off:
            out += [f"s_add_u32 {s(dst)}, {s(ptr)}, {off}", f"s_addc_u32 {s(dst+1)}, {s(ptr+1)}, 0"]
        else:
            out += [f"s_mov_b32 {s(dst)}, {s(ptr)}", f"s_mov_b32 {s(dst+1)}, {s(ptr+1)}"]
        out += [f"s_mov_b32 {s(dst+2)}, {size}", f"s_mov_b32 {s(dst+3)}, 0x20000"]
        return out
    def srd(self, dst, ptr, off, size):
        for t in self.srd_l(dst, ptr, off, size): self.A(t)

    def prologue(self):
        A = self.A
        A("s_cmp_ge_u32 s2, 256")
        A("s_cbranch_scc1 L_end")
        A("s_load_dwordx16 s[40:55], s[0:1], 0")
        A("s_load_dwordx4 s[56:59], s[0:1], 64")
        A("v_and_b32 v1, 63, v0")
        self.stamp('start')
        A("v_lshrrev_b32 v2, 6, v0")
        A(f"s_and_b32 {s(sXCD)}, s2, 7")
        A(f"v_readfirstlane_b32 {s(sW)}, v2")
        A(f"s_lshr_b32 {s(sJ)}, s2, 3")
        A(f"s_and_b32 {s(sRHO)}, {s(sJ)}, 7")
        A(f"s_lshr_b32 {s(sT0)}, {s(sXCD)}, 1")
        A(f"s_lshl_b32 {s(sT0)}, {s(sT0)}, 3")
        A(f"s_add_u32 {s(sR)}, {s(sT0)}, {s(sRHO)}")
        A(f"s_and_b32 {s(sT0)}, {s(sXCD)}, 1")
        A(f"s_lshl_b32 {s(sT0)}, {s(sT0)}, 2")
        A(f"s_lshr_b32 {s(sT1)}, {s(sJ)}, 3")
        A(f"s_add_u32 {s(sG)}, {s(sT0)}, {s(sT1)}")
        A(f"s_cmp_ge_u32 {s(sRHO)}, 5")
        A(f"s_cselect_b32 {s(sT0)}, 5, 0")
        A(f"s_sub_u32 {s(sRHO)}, {s(sRHO)}, {s(sT0)}")
        A(f"s_lshl_b32 {s(sRHO)}, {s(sRHO)}, 1")
        if 'rot0' in self.exp: A(f"s_mov_b32 {s(sRHO)}, 0")

    def code_prefetch(self):
        A = self.A
        A("s_getpc_b64 s[36:37]")
        A.label("L_pc0")
        A(f"s_lshl_b32 {s(sT0)}, {s(sJ)}, 2")
        A(f"s_add_u32 {s(sT0)}, {s(sT0)}, {s(sW)}")
        A(f"s_lshl_b32 {s(sT0)}, {s(sT0)}, 10")
        A(f"s_min_u32 {s(sT0)}, {s(sT0)}, L_end-L_pc0-1024")
        A(f"v_lshl_add_u32 v6, v1, 4, {s(sT0)}")
        A("global_load_dwordx4 a[244:247], v6, s[36:37]")

    def weight_prefetch(self, late=False):
        A = self.A
        if late:
            L = A.newlabel('nopf')
            A(f"s_cmp_eq_u32 {s(sW)}, 0")
            A(f"s_cbranch_scc1 {L}")
            for rep in range(2):
                A(f"s_mul_i32 {s(sT0)}, s2, 3")
                A(f"s_add_u32 {s(sT0)}, {s(sT0)}, {s(sW)}")
                A(f"s_add_u32 {s(sT0)}, {s(sT0)}, {768*rep - 1}" if rep else f"s_sub_u32 {s(sT0)}, {s(sT0)}, 1")
                self._pf_one(nocount=True)
            A.label(L)
            return
        A(f"s_lshl_b32 {s(sT0)}, s2, 2")
        A(f"s_add_u32 {s(sT0)}, {s(sT0)}, {s(sW)}")
        self._pf_one()

    def page_touch(self, wave_only=None):
        A = self.A
        L = A.newlabel('notouch')
        if wave_only is not None:
            A(f"s_cmp_lg_u32 {s(sW)}, {wave_only}")
            A(f"s_cbranch_scc1 {L}")
        A("v_lshlrev_b32 v6, 20, v1")
        A("s_mov_b64 exec, 0xfffff")
        A(f"global_load_dword a250, v6, s[{P_WS}:{P_WS+1}] ; @nocount")
        A("s_mov_b64 exec, 7")
        A(f"global_load_dword a250, v6, s[{P_OUT}:{P_OUT+1}] ; @nocount")
        A("s_mov_b64 exec, -1")
        A.label(L)

    def wqkv_prefetch(self):
        A = self.A
        A(f"s_lshl_b32 {s(sT0)}, s2, 2")
        A(f"s_add_u32 {s(sT0)}, {s(sT0)}, {s(sW)}")
        A(f"s_mul_i32 {s(sT0)}, {s(sT0)}, {19*128}")
        A(f"v_lshl_add_u32 v6, v1, 7, {s(sT0)}")
        A(f"v_min_u32 v6, {640*3840 - 128}, v6")
        A("s_mov_b64 exec, 0x7ffff")
        A(f"global_load_dword a249, v6, s[{P_WQKV}:{P_WQKV+1}]")
        A("s_mov_b64 exec, -1")

    def _pf_one(self, nocount=False):
        A = self.A
        A(f"s_mov_b32 s36, {s(P_WO)}")
        A(f"s_mov_b32 s37, {s(P_WO+1)}")
        A(f"s_mov_b32 {s(sT1)}, {640*1280 - 128}")
        for lo, ptr, size in ((100, P_WG, 640*3456), (370, P_WU, 640*3456), (640, P_WD, 1728*1280)):
            A(f"s_cmp_ge_u32 {s(sT0)}, {lo}")
            A(f"s_cselect_b32 s36, {s(ptr)}, s36")
            A(f"s_cselect_b32 s37, {s(ptr+1)}, s37")
            A(f"s_cselect_b32 {s(sT1)}, {size - 128}, {s(sT1)}")
        A(f"s_mov_b32 {s(sT2)}, 0")
        for lo in (100, 370, 640):
            A(f"s_cmp_ge_u32 {s(sT0)}, {lo}")
            A(f"s_cselect_b32 {s(sT2)}, {lo}, {s(sT2)}")
        A(f"s_sub_u32 {s(sT0)}, {s(sT0)}, {s(sT2)}")
        A(f"s_lshl_b32 {s(sT0)}, {s(sT0)}, 13")
        A(f"v_lshl_add_u32 v6, v1, 7, {s(sT0)}")
        A(f"v_min_u32 v6, {s(sT1)}, v6")
        if 'pfhalf' in self.exp:
            A("s_mov_b32 exec_lo, 0x55555555")
            A("s_mov_b32 exec_hi, 0x55555555")
        A("global_load_dword a248, v6, s[36:37]" + (" ; @nocount" if nocount else ""))
        if 'pfhalf' in self.exp: A("s_mov_b64 exec, -1")

    def zero_store(self):
        A = self.A
        L = A.newlabel('nz')
        A(f"s_cmp_ge_u32 s2, {NZERO}")
        A(f"s_cbranch_scc1 {L}")
        A(f"s_cmp_lg_u32 {s(sW)}, 3")
        A(f"s_cbranch_scc1 {L}")
        self.srd(SRD_CNT, P_WS, WS_CNT, WS_CNT_SZ)
        A("v_lshlrev_b32 v2, 4, v1")
        A(f"s_lshl_b32 {s(sT5)}, s2, 10")
        for i in range(4): A(f"v_mov_b32 v{4+i}, 0")
        A(f"buffer_store_dwordx4 v[4:7], v2, {s(SRD_CNT,4)}, {s(sT5)} offen sc1 ; @nocount")
        A.label(L)

    def zero_report(self):
        A = self.A
        L = A.newlabel('nzr')
        A(f"s_cmp_ge_u32 s2, {NZERO}")
        A(f"s_cbranch_scc1 {L}")
        A(f"s_cmp_lg_u32 {s(sW)}, 3")
        A(f"s_cbranch_scc1 {L}")
        A("v_mov_b32 v4, 1")
        A("v_mov_b32 v2, 0")
        A("s_mov_b64 exec, 1")
        A(f"buffer_atomic_add v4, v2, {s(SRD_DBG,4)}, 0 offen sc1 ; @nocount")
        A("s_mov_b64 exec, -1")
        A.label(L)

    def poll(self, srd, voff_setup, nlanes, target, tmp, barrier=True):
        A = self.A
        Lskip, Lp, Lgot = A.newlabel('pskip'), A.newlabel('poll'), A.newlabel('got')
        A(f"s_cmp_lg_u32 {s(sW)}, 0")
        A(f"s_cbranch_scc1 {Lskip}")
        voff_setup()
        A(f"s_mov_b64 exec, {(1 << nlanes) - 1}")
        A(f"s_mov_b32 {s(sT5)}, 0")
        A.label(Lp)
        A(f"buffer_load_dword v{tmp+1}, v{tmp}, {s(srd,4)}, 0 offen sc1 ; @nocount")
        A(f"s_add_u32 {s(sT5)}, {s(sT5)}, 1")
        A("s_waitcnt vmcnt(0)")
        A(f"v_cmp_gt_u32 vcc, {target}, v{tmp+1}")
        A(f"s_cbranch_vccz {Lgot}")
        A(f"s_cmp_lt_u32 {s(sT5)}, 0x40000")
        A(f"s_cbranch_scc1 {Lp}")
        A.label(Lgot)
        A("s_mov_b64 exec, -1")
        A.label(Lskip)
        if barrier: A("s_barrier")

    def signal(self, cidx_sgpr, tmp, wave=0):
        A = self.A
        L = A.newlabel('sig')
        A(f"s_cmp_lg_u32 {s(sW)}, {wave}")
        A(f"s_cbranch_scc1 {L}")
        A(f"s_lshl_b32 {s(sT5)}, {s(cidx_sgpr)}, 7")
        A(f"v_mov_b32 v{tmp}, {s(sT5)}")
        A(f"v_mov_b32 v{tmp+1}, 1")
        A("s_mov_b64 exec, 1")
        A(f"buffer_atomic_add v{tmp+1}, v{tmp}, {s(SRD_CNT,4)}, 0 offen sc1 ; @nocount")
        A("s_mov_b64 exec, -1")
        A.label(L)

    def p1(self):
        A = self.A
        XF = 16
        ACK, ACV = 96, 116
        INIT, SUM, GRAM, ONES = 136, 140, 144, 148
        KF = 152
        VTRW = 232
        VOW = 250; VOX = 255; VXA = 10
        VX = 240
        A(f"s_mov_b32 {s(sC2)}, 2048")
        A("v_lshrrev_b32 v2, 3, v1")
        A("v_and_b32 v3, 6, v2")
        A("v_and_b32 v4, 7, v1")
        A("v_xor_b32 v3, v3, v4")
        A("v_lshlrev_b32 v3, 4, v3")
        A("v_mul_u32_u24 v2, 1280, v2")
        A(f"v_add3_u32 v{VX}, v2, v3, {s(sC2)}")
        A(f"v_add_u32 v{VX+1}, {8*1280 - 1024}, v{VX}")
        A(f"v_subrev_u32 v{VX+2}, {2048 - 128}, v{VX}")
        A(f"v_add_u32 v{VX+3}, {8*1280 + 128 - 3072}, v{VX}")
        A(f"s_lshl_b32 {s(sT0)}, {s(sR)}, 6")
        A(f"s_lshl_b32 {s(sT1)}, {s(sW)}, 4")
        A(f"s_add_u32 {s(sT0)}, {s(sT0)}, {s(sT1)}")
        A(f"s_mul_i32 {s(sT3)}, {s(sT0)}, 1280")
        A(f"s_mul_i32 {s(sLD)}, {s(sW)}, {STAGE}")
        A(f"s_mov_b32 {s(sC)}, 6554")
        A(f"s_mov_b32 {s(sC+1)}, 3840")
        A("s_waitcnt lgkmcnt(0)")
        if 'startprof' in self.exp: self.stamp('karg')
        self.zero_store()
        if 'pfq' in self.exp: self.wqkv_prefetch()
        A(f"s_sub_u32 {s(SRD_X)}, {s(P_X)}, 2048")
        A(f"s_subb_u32 {s(SRD_X+1)}, {s(P_X+1)}, 0")
        A(f"s_mov_b32 {s(SRD_X+2)}, {2048 * 1280 + 2048}")
        A(f"s_mov_b32 {s(SRD_X+3)}, 0x20000")
        wv = []
        for i in range(5):
            wv += [f"v_add_u32 v2, {64*i}, v1", f"v_mul_lo_u32 v3, v2, {s(sC)}", "v_lshrrev_b32 v3, 16, v3",
                   "v_mul_u32_u24 v4, 10, v3", "v_sub_u32 v4, v2, v4", "v_and_b32 v5, 0x13, v3", "v_and_b32 v6, 4, v3",
                   "v_lshlrev_b32 v6, 1, v6", "v_and_b32 v7, 8, v3", "v_lshrrev_b32 v7, 1, v7", "v_or3_b32 v5, v5, v6, v7",
                   f"v_mul_lo_u32 v5, v5, {s(sC+1)}", f"v_lshl_add_u32 v{VOW+i}, v4, 4, v5"]
            if 1 <= i <= 3: wv.append(f"v_subrev_u32 v{VOW+i}, {1024*i}, v{VOW+i}")
        wv += self.srd_l(SRD_W, P_WQKV, 0, 640 * 3840)
        wv += [f"s_and_b32 {s(sT0)}, {s(sW)}, 1", f"s_mul_i32 {s(sT0)}, {s(sT0)}, {32*3840}", f"s_mul_i32 {s(sT1)}, {s(sG)}, 160",
               f"s_add_u32 {s(sWB)}, {s(sT0)}, {s(sT1)}", f"s_lshr_b32 {s(sT0)}, {s(sW)}, 1", f"s_add_u32 {s(sT2)}, {s(sT0)}, 1",
               f"s_mul_i32 {s(sT2)}, {s(sT2)}, 1280", f"s_add_u32 {s(sK)}, {s(sWB)}, {s(sT2)}",
               f"s_mul_i32 {s(sT0)}, {s(sT0)}, {64*3840}", f"s_add_u32 {s(sWB)}, {s(sWB)}, {s(sT0)}",
               f"s_add_u32 {s(sLK)}, {s(sK)}, {640*3840}", f"s_add_u32 {s(sLQ)}, {s(sWB)}, {640*3840}",
               f"s_mul_i32 {s(sT0)}, {s(sRHO)}, {64*3840}", f"s_add_u32 {s(sK)}, {s(sK)}, {s(sT0)}",
               f"s_add_u32 {s(sWB)}, {s(sWB)}, {s(sT0)}"]
        per = -(-len(wv) // 20)
        n = 0
        A(f"s_lshr_b32 {s(sT4)}, {s(sRHO)}, 1")
        A(f"s_sub_u32 {s(sT4)}, 5, {s(sT4)}")
        for q in range(5):
            A(f"s_cmp_ge_u32 {s(sT4)}, 5")
            A(f"s_cselect_b32 {s(sK2)}, 5, 0")
            A(f"s_sub_u32 {s(sT4)}, {s(sT4)}, {s(sK2)}")
            A(f"s_lshl_b32 {s(sK2)}, {s(sT4)}, 12")
            A(f"s_add_u32 m0, {s(sLD)}, {s(sK2)}")
            A(f"s_add_u32 {s(sT4)}, {s(sT4)}, 1")
            if q: A(f"s_add_u32 {s(sT3)}, {s(sT3)}, 256")
            for k in range(4):
                A(f"buffer_load_dwordx4 v{VX+k}, {s(SRD_X,4)}, {s(sT3)} offen offset:{k*1024} lds ; @x")
                for t in wv[n*per:(n+1)*per]: A(t)
                n += 1
        A(f"s_mul_i32 {s(sLD)}, {s(sW)}, 5120")
        if 'startprof' in self.exp:
            self.stamp('x_issued')
            A("s_waitcnt vmcnt(19)")
            self.stamp('x_first')
            A("s_waitcnt vmcnt(0)")
            self.stamp('x_all')

        def stage_dma(sig):
            so = sK if sig < 10 else sWB
            base = slot_of(sig)*STAGE
            gs = []
            for i in range(5):
                g = []
                if i == 0: g += [f"s_add_u32 m0, {s(sLD)}, {base}", "FILL"]
                if i == 4: g += [f"s_add_u32 m0, {s(sLD)}, {base + 4096}", "FILL"]
                g.append(f"buffer_load_dwordx4 v{VOW+i}, {s(SRD_W,4)}, {s(so)} offen" + (f" offset:{1024*i}" if 1 <= i <= 3 else "") + f" lds ; @st{sig}")
                if i == 4 and sig not in (9, 14):
                    lim = sLK if sig < 10 else sLQ
                    g += [f"s_add_u32 {s(so)}, {s(so)}, {(64 if sig < 10 else 128)*3840}", f"s_cmp_ge_u32 {s(so)}, {s(lim)}",
                          f"s_cselect_b32 {s(sK2)}, {640*3840}, 0", f"s_sub_u32 {s(so)}, {s(so)}, {s(sK2)}"]
                gs.append([x if x != "FILL" else "s_nop 0" for x in g])
            return gs
        if 'pfstart' in self.exp: self.weight_prefetch()
        self.code_prefetch()
        self.srd(SRD_CNT, P_WS, WS_CNT, WS_CNT_SZ)
        self.srd(SRD_DBG, P_DBG, 0, 256)
        self.srd(SRD_T, P_WS, WS_DBG, WS_DBG_SZ)
        A("v_bfe_u32 v2, v1, 2, 2")
        A("v_bfe_u32 v3, v1, 4, 1")
        A("v_lshl_add_u32 v2, v3, 2, v2")
        A("v_bfe_u32 v3, v1, 5, 1")
        A("v_lshl_add_u32 v2, v3, 4, v2")
        A("v_mul_u32_u24 v2, 160, v2")
        A("v_and_b32 v3, 3, v1")
        A(f"v_lshl_add_u32 v{VTRW}, v3, 3, v2")
        A(f"v_add_u32 v{VTRW+1}, {3*STAGE}, v{VTRW}")
        A(f"v_add_u32 v{VTRW+2}, {6*STAGE}, v{VTRW}")
        A("v_and_b32 v2, 15, v1")
        A("v_lshrrev_b32 v3, 3, v2")
        A("v_lshlrev_b32 v3, 10, v3")
        A("v_and_b32 v4, 7, v2")
        A("v_lshl_add_u32 v3, v4, 7, v3")
        A(f"s_mul_i32 {s(sT0)}, {s(sW)}, {STAGE}")
        A(f"v_add_u32 v3, {s(sT0)}, v3")
        A("v_and_b32 v4, 6, v2")
        A("v_lshrrev_b32 v5, 4, v1")
        A("v_xor_b32 v6, v5, v4")
        A(f"v_lshl_add_u32 v{VXA}, v6, 4, v3")
        A("v_or_b32 v5, 4, v5")
        A("v_xor_b32 v6, v5, v4")
        A(f"v_lshl_add_u32 v{VXA+1}, v6, 4, v3")
        for i in range(4):
            A(f"v_mov_b32 v{ONES+i}, 0x3f803f80")
            A(f"v_mov_b32 v{INIT+i}, 0x358637bd")
        A("v_and_b32 v3, 3, v1")
        A(f"v_cmp_eq_u32 {s(sMASK,2)}, 1, v3")
        A(f"v_cmp_eq_u32 {s(sMASK+2,2)}, 2, v3")
        A(f"v_cmp_eq_u32 {s(sMASK+4,2)}, 3, v3")
        A("v_bfe_u32 v3, v1, 2, 2")
        A("v_lshrrev_b32 v4, 4, v1")
        A(f"v_cmp_eq_u32 {s(sMASK+6,2)}, v3, v4")
        P = self.P = Pacer(A)
        for tk in self.exp.split(','):
            if tk.startswith('slack'): P.slack = float(tk[5:]) / 100
        for sig in range(15):
            need = None if sig < 4 else ('xfree' if sig < 8 else f'bar{sig-8}')
            for tk in self.exp.split(','):
                if tk.startswith('holdq') and sig >= 10 + int(tk[5:]): need = 'parted'
            P.push(stage_dma(sig), 30, need, f'st{sig}')
        if 'dmaonly' in self.exp:
            P.event('xfree')
            for k in range(10): P.event(f'bar{k}')
            A("WAITVM x")
            self.stamp('x_landed')
            for sig in range(15):
                P.flush(f'st{sig}')
                if sig in (3, 9):
                    A(f"WAITVM st{sig}")
                    self.stamp(f'st{sig}')
            A("s_waitcnt vmcnt(0)")
            self.stamp('all')
            self.dump_stamps()
            A("s_endpgm")
            self.early_exit = True
            return
        P.flush('st0')
        self.stamp('issued')
        A("WAITVM x")
        self.zero_report()
        self.stamp('x_landed')
        for m in range(8):
            A(f"ds_read_b128 {v(XF+4*m,4)}, v{VXA+(m&1)} offset:{(m>>1)*2048} ; @xf{m}")
        for m in range(20):
            xf = v(XF+4*m,4)
            if m % 2 == 0: P.emit(f"WAITLG xf{m+1}", feed=False)
            P.emit(f"{MF} {v(SUM,4)}, {v(ONES,4)}, {xf}, {'0' if m == 0 else v(SUM,4)}")
            if m + 8 < 20:
                P.emit(f"ds_read_b128 {v(XF+4*(m+8),4)}, v{VXA+(m&1)} offset:{((m+8)>>1)*2048} ; @xf{m+8}")
            P.emit(f"{MF} {v(GRAM,4)}, {xf}, {xf}, {'0' if m == 0 else v(GRAM,4)}")
        A("s_barrier")
        P.event('xfree')
        T = KF
        P.emit_all([f"v_cndmask_b32 v{T}, v{GRAM}, v{GRAM+1}, {s(sMASK,2)}",
            f"v_cndmask_b32 v{T}, v{T}, v{GRAM+2}, {s(sMASK+2,2)}",
            f"v_cndmask_b32 v{T}, v{T}, v{GRAM+3}, {s(sMASK+4,2)}",
            f"v_cndmask_b32 v{T}, 0, v{T}, {s(sMASK+6,2)}",
            f"v_mov_b32 v{T+1}, v{T}",
            f"v_mul_f32 v{T+2}, {1.0/640!r}, v{SUM}",
            f"v_permlane16_swap_b32 v{T}, v{T+1}",
            f"v_add_f32 v{T}, v{T}, v{T+1}",
            f"v_mov_b32 v{T+1}, v{T}",
            f"s_mov_b32 {s(sC)}, 0xffff0000",
            f"v_permlane32_swap_b32 v{T}, v{T+1}",
            f"v_add_f32 v{T}, v{T}, v{T+1}",
            f"v_mul_f32 v{T}, {1.0/640!r}, v{T}",
            f"v_fma_f32 v{T}, -v{T+2}, v{T+2}, v{T}",
            f"v_max_f32 v{T}, 0, v{T}",
            f"v_add_f32 v{T}, 0x3727c5ac, v{T}",
            f"v_rsq_f32 v{T+4}, v{T}",
            f"v_mul_f32 v{T+6}, v{T+2}, v{T+4}"])
        norm = []
        for r in range(80):
            x = XF + r; u = T + 8 + 2*(r & 3)
            norm.append([f"v_lshlrev_b32 v{u}, 16, v{x}", f"v_and_b32 v{u+1}, {s(sC)}, v{x}",
                         f"v_pk_fma_f32 {v(u,2)}, {v(u,2)}, {v(T+4,2)}, {v(T+6,2)} op_sel_hi:[1,0,0] neg_lo:[0,0,1] neg_hi:[0,0,1]",
                         f"v_cvt_pk_bf16_f32 v{x}, v{u}, v{u+1}"])
        for b in range(0, 80, 4):
            for k in range(4):
                for r in range(4): P.emit(norm[b+r][k])
        self.stamp('normed')

        def rd(buf, sec, j, sig, h, second):
            sl = slot_of(sig)
            dst = KF + buf*40 + sec*20 + j*4 + 2*second
            return f"ds_read_b64_tr_b16 {v(dst,2)}, v{VTRW + sl // 3} offset:{(sl % 3)*STAGE + (sec*2+h)*5120 + j*32 + second*1280} ; @r{2*sig+h}_{j}"
        def reads(buf, sig, h):
            return [rd(buf, sec, j, sig, h, sec2) for j in range(5) for sec in range(2) for sec2 in range(2)]
        def phase(buf, m, rds):
            first = (m == 0)
            xf = v(XF+4*m,4)
            for j in range(5):
                kf = v(KF+buf*40+j*4,4); vf = v(KF+buf*40+20+j*4,4)
                if j in (0, 3): P.emit(f"WAITLG r{m}_{2 if j == 0 else 4}", feed=False)
                P.emit(f"{MF} {v(ACK+4*j,4)}, {xf}, {kf}, {v(INIT,4) if first else v(ACK+4*j,4)}")
                P.emit_all(rds[4*j:4*j+2], feed=False)
                P.emit(f"{MF} {v(ACV+4*j,4)}, {xf}, {vf}, {'0' if first else v(ACV+4*j,4)}")
                P.emit_all(rds[4*j+2:4*j+4], feed=False)

        if 'pfnorm' in self.exp: self.weight_prefetch()
        P.flush('st0')
        A("WAITVM st0")
        A("s_barrier")
        for t in reads(0, 0, 0): A(t)
        for sig in range(10):
            phase(0, 2*sig, reads(1, sig, 1))
            for tk in self.exp.split(','):
                if tk == f'pfsig{sig}': self.weight_prefetch()
            if sig == 3:
                A("v_mov_b32 v2, 0")
                A(f"buffer_load_dword a{AZERO}, v2, {s(SRD_DBG,4)}, 0 offen sc1 ; @zero")
            if sig < 9:
                P.flush(f'st{sig+1}')
                A(f"WAITVM st{sig+1}")
            A("s_barrier")
            P.event(f'bar{sig-1}')
            phase(1, 2*sig+1, reads(0, sig + 1, 0) if sig < 9 else [])
        self.stamp('p1a_loop')

        T = KF
        VFR = T
        Y, E, PK = T + 4, T + 8, T + 12
        A(f"s_lshr_b32 {s(sT1)}, {s(sW)}, 1")
        A(f"s_lshl_b32 {s(sT1)}, {s(sT1)}, 10")
        A(f"s_add_u32 {s(sT0)}, {s(sT1)}, {FR + 20*1024}")
        A(f"v_lshl_add_u32 v5, v1, 4, {s(sT0)}")
        A(f"ds_write_b128 v5, {v(ONES,4)}")
        A(f"s_and_b32 {s(sT2)}, {s(sW)}, 1")
        A(f"s_lshl_b32 {s(sT2)}, {s(sT2)}, 3")
        A(f"s_add_u32 {s(sT1)}, {s(sT1)}, {s(sT2)}")
        A(f"s_add_u32 {s(sT1)}, {s(sT1)}, {FR}")
        A(f"v_lshl_add_u32 v{VFR}, v1, 4, {s(sT1)}")
        A(f"s_mov_b32 {s(sC2)}, {f32bits(LOG2E)}")
        A(f"s_mov_b32 {s(sC2+1)}, {f32bits(LOG2E)}")
        A(f"s_mov_b32 {s(sC)}, 0x358637bd")
        def phi_tile(acc, dst, E=E):
            out = []
            for p in range(2): out.append(f"v_pk_mul_f32 {v(E+2*p,2)}, {v(acc+2*p,2)}, {s(sC2,2)}")
            for r in range(4): out.append(f"v_exp_f32 v{E+r}, v{E+r} clamp")
            for r in range(4): out.append(f"v_max_f32 v{acc+r}, {s(sC)}, v{acc+r}")
            for p in range(2): out.append(f"v_pk_add_f32 {v(acc+2*p,2)}, {v(acc+2*p,2)}, {v(E+2*p,2)}")
            out.append(f"v_cvt_pk_bf16_f32 v{dst}, v{acc}, v{acc+1}")
            out.append(f"v_cvt_pk_bf16_f32 v{dst+1}, v{acc+2}, v{acc+3}")
            return out
        self.phi_tile = phi_tile
        for j in range(5):
            b = PK + 4*(j & 1)
            P.emit(f"v_cvt_pk_bf16_f32 v{b+2}, v{ACV+4*j}, v{ACV+4*j+1}")
            P.emit(f"v_cvt_pk_bf16_f32 v{b+3}, v{ACV+4*j+2}, v{ACV+4*j+3}")
            P.emit(f"ds_write_b64 v{VFR}, {v(b+2,2)} offset:{5*2048 + j*2048}")
            P.emit_all(phi_tile(ACK+4*j, b))
            P.emit(f"ds_write_b64 v{VFR}, {v(b,2)} offset:{j*2048}")
        ia = sum(JOBS[k][0] << (3*k) for k in range(18))
        ib = sum(JOBS[k][1] << (3*k) for k in range(18))
        self.srd(SRD_B, P_WS, WS_PART, WS_PART_SZ)
        A(f"s_lshl_b32 {s(sT4)}, {s(sG)}, 5")
        A(f"s_add_u32 {s(sT4)}, {s(sT4)}, {s(sR)}")
        A(f"s_mul_i32 {s(sT4)}, {s(sT4)}, {18*1024}")
        A("v_lshlrev_b32 v2, 4, v1")
        JADDR = T + 20
        A(f"s_mul_i32 {s(sT1)}, {s(sW)}, 3")
        A(f"s_mov_b32 {s(sC)}, {ia & 0xffffffff}")
        A(f"s_mov_b32 {s(sC+1)}, {ia >> 32}")
        A(f"s_lshr_b64 {s(sC,2)}, {s(sC,2)}, {s(sT1)}")
        A(f"s_mov_b32 {s(sC2)}, {ib & 0xffffffff}")
        A(f"s_mov_b32 {s(sC2+1)}, {ib >> 32}")
        A(f"s_lshr_b64 {s(sC2,2)}, {s(sC2,2)}, {s(sT1)}")
        for q in range(5):
            A(f"s_and_b32 {s(sT2)}, {s(sC)}, 7")
            A(f"s_and_b32 {s(sT3)}, {s(sC2)}, 7")
            A(f"s_lshl_b32 {s(sT2)}, {s(sT2)}, 11")
            A(f"s_lshl_b32 {s(sT3)}, {s(sT3)}, 11")
            A(f"s_add_u32 {s(sT2)}, {s(sT2)}, {FR}")
            A(f"s_add_u32 {s(sT3)}, {s(sT3)}, {FR + 5*2048}")
            A(f"v_add_u32 v{JADDR+2*q}, {s(sT2)}, v2")
            A(f"v_add_u32 v{JADDR+2*q+1}, {s(sT3)}, v2")
            if q < 4:
                A(f"s_lshr_b64 {s(sC,2)}, {s(sC,2)}, 12")
                A(f"s_lshr_b64 {s(sC2,2)}, {s(sC2,2)}, 12")
        A("s_waitcnt lgkmcnt(0)")
        A("s_barrier")
        JF = T + 32
        JD = 96
        def jreads(q, base):
            return [f"ds_read_b128 {v(base,4)}, v{JADDR+2*q}", f"ds_read_b128 {v(base+4,4)}, v{JADDR+2*q+1}",
                    f"ds_read_b128 {v(base+8,4)}, v{JADDR+2*q} offset:1024", f"ds_read_b128 {v(base+12,4)}, v{JADDR+2*q+1} offset:1024"]
        for q in range(3):
            for t in jreads(q, JF + 16*q): A(t)
        A(f"s_lshl_b32 {s(sT0)}, {s(sW)}, 10")
        A(f"s_add_u32 {s(sT0)}, {s(sT0)}, {s(sT4)}")
        for q in range(5):
            b = JF + 16*(q % 3)
            A(f"s_waitcnt lgkmcnt({min(8, 4*(min(q+3,5)-q-1))})")
            A(f"{MF} {v(JD+4*q,4)}, {v(b,4)}, {v(b+4,4)}, 0")
            A(f"{MF} {v(JD+4*q,4)}, {v(b+8,4)}, {v(b+12,4)}, {v(JD+4*q,4)}")
            if q + 3 < 5:
                for t in jreads(q + 3, b): A(t)
        for q in range(5):
            if q == 4:
                A(f"s_cmp_lt_u32 {s(sW)}, 2")
                A(f"s_cselect_b32 {s(sT0)}, {s(sT0)}, {OOB}")
            A(f"buffer_store_dwordx4 {v(JD+4*q,4)}, v2, {s(SRD_B,4)}, {s(sT0)} offen sc1 ; @part")
            if q < 4: A(f"s_add_u32 {s(sT0)}, {s(sT0)}, 4096")
        self.stamp('p1a_epi')

        ACQ = 116
        QF = KF
        def rdq(buf, j, ks, second):
            sl = slot_of(10 + ks // 4)
            return f"ds_read_b64_tr_b16 {v(QF+buf*20+j*4+2*second,2)}, v{VTRW + sl // 3} offset:{(sl % 3)*STAGE + (ks % 4)*5120 + j*32 + second*1280} ; @q{ks}_{j}"
        def readsq(buf, ks): return [rdq(buf, j, ks, sec2) for j in range(5) for sec2 in range(2)]
        def mfq(buf, m):
            return [f"{MF} {v(ACQ+4*j,4)}, {v(QF+buf*20+j*4,4)}, {v(XF+4*m,4)}, {v(INIT,4) if m == 0 else v(ACQ+4*j,4)}" for j in range(5)]
        P.event('bar8'); P.event('bar9'); P.event('parted')
        P.flush('st11')
        A("WAITVM st11")
        A("s_barrier")
        for t in readsq(0, 0): A(t)
        self.map_p3()
        P.push(self.w3_groups(), 19, 'w3ok', 'w3')
        for ks in range(20):
            if ks in (7, 11, 15):
                P.flush(f'st{12 + (ks - 7)//4}')
                A(f"WAITVM st{12 + (ks - 7)//4}" + (" lgkmcnt(0)" if ks == 7 else ""))
                A("s_barrier")
                if ks == 7: P.event('w3ok')
            if ks == 4:
                A("WAITVM part")
                A("s_barrier")
                self.check_zero_done()
                A(f"s_add_u32 {s(sT0)}, {s(sG)}, {C_A}")
                self.signal(sT0, 2)
            if ks == 5 and 'pflate' in self.exp: self.weight_prefetch(late=True)
            rd_ = readsq((ks+1) & 1, ks+1) if ks < 19 else []
            for j, t in enumerate(mfq(ks & 1, ks)):
                if j in (0, 3): P.emit(f"WAITLG q{ks}_{2 if j == 0 else 4}", feed=False)
                P.emit(t)
                P.emit_all(rd_[2*j:2*j+2], feed=False)
        P.flush('w3')
        self.ACQ = ACQ
        self.stamp('p1b_loop')

    def check_zero_done(self):
        A = self.A
        L = A.newlabel('zok')
        A(f"v_accvgpr_read_b32 v2, a{AZERO}")
        A("s_nop 0")
        A(f"v_readfirstlane_b32 {s(sT0)}, v2")
        A(f"s_cmp_ge_u32 {s(sT0)}, {NZERO}")
        A(f"s_cbranch_scc1 {L}")
        self.poll(SRD_DBG, lambda: A("v_mov_b32 v2, 0"), 1, NZERO, 2, barrier=False)
        A.label(L)

    def q_epilogue(self):
        A = self.A
        PQ = self.PQ = 232
        A(f"s_mov_b32 {s(sC2)}, {f32bits(LOG2E)}")
        A(f"s_mov_b32 {s(sC2+1)}, {f32bits(LOG2E)}")
        A(f"s_mov_b32 {s(sC)}, 0x358637bd")
        for j in range(5):
            for t in self.phi_tile(self.ACQ+4*j, PQ+2*j, E=200 + 4*(j & 1)): A(t)
        A(f"v_mov_b32 v{PQ+10}, 0")
        A(f"v_mov_b32 v{PQ+11}, 0")
        if self.dbg:
            A(f"s_lshl_b32 {s(sT0)}, s2, 2")
            A(f"s_add_u32 {s(sT0)}, {s(sT0)}, {s(sW)}")
            A(f"s_mul_i32 {s(sT0)}, {s(sT0)}, {5*512}")
            A("v_lshlrev_b32 v2, 3, v1")
            for j in range(5):
                A(f"buffer_store_dwordx2 {v(PQ+2*j,2)}, v2, {s(SRD_T,4)}, {s(sT0)} offen offset:{j*512}")

    def map_p3(self):
        A = self.A
        if 'map3rows' in self.exp:
            A(f"s_mul_i32 {s(sT1)}, {s(sJ)}, 26")
            A(f"s_lshr_b32 {s(sT1)}, {s(sT1)}, 8")
            A(f"s_mul_i32 {s(sT2)}, {s(sT1)}, 10")
            A(f"s_sub_u32 {s(sC3)}, {s(sJ)}, {s(sT2)}")
            A(f"s_mul_i32 {s(sT2)}, {s(sXCD)}, 3")
            A(f"s_cmp_eq_u32 {s(sXCD)}, 7")
            A(f"s_cselect_b32 {s(sT3)}, 1, 0")
            A(f"s_sub_u32 {s(sT2)}, {s(sT2)}, {s(sT3)}")
            A(f"s_add_u32 {s(sR3)}, {s(sT2)}, {s(sT1)}")
            A(f"s_cmp_ge_u32 {s(sXCD)}, 6")
            A(f"s_cselect_b32 {s(sT3)}, 2, 3")
            A(f"s_cmp_lt_u32 {s(sT1)}, {s(sT3)}")
            A(f"s_cselect_b32 {s(sV3)}, 1, 0")
        else:
            A(f"s_lshr_b32 {s(sT0)}, {s(sXCD)}, 1")
            A(f"s_mul_i32 {s(sT1)}, {s(sJ)}, 52")
            A(f"s_lshr_b32 {s(sT1)}, {s(sT1)}, 8")
            A(f"s_mul_i32 {s(sT2)}, {s(sT1)}, 5")
            A(f"s_sub_u32 {s(sT2)}, {s(sJ)}, {s(sT2)}")
            A(f"s_and_b32 {s(sT3)}, {s(sXCD)}, 1")
            A(f"s_mul_i32 {s(sT3)}, {s(sT3)}, 5")
            A(f"s_add_u32 {s(sC3)}, {s(sT2)}, {s(sT3)}")
            A(f"s_mul_i32 {s(sT2)}, {s(sT0)}, 6")
            A(f"s_cmp_eq_u32 {s(sT0)}, 3")
            A(f"s_cselect_b32 {s(sT3)}, 1, 0")
            A(f"s_sub_u32 {s(sT2)}, {s(sT2)}, {s(sT3)}")
            A(f"s_add_u32 {s(sR3)}, {s(sT2)}, {s(sT1)}")
            A(f"s_cmp_ge_u32 {s(sT0)}, 2")
            A(f"s_cselect_b32 {s(sT3)}, 5, 6")
            A(f"s_cmp_lt_u32 {s(sT1)}, {s(sT3)}")
            A(f"s_cselect_b32 {s(sV3)}, 1, 0")
        A(f"s_lshr_b32 {s(sT0)}, {s(sXCD)}, 2")
        A(f"s_lshl_b32 {s(sT0)}, {s(sT0)}, 2")
        A(f"s_and_b32 {s(sT1)}, {s(sJ)}, 3")
        A(f"s_add_u32 {s(sR4)}, {s(sT0)}, {s(sT1)}")
        A(f"s_and_b32 {s(sT0)}, {s(sXCD)}, 3")
        A(f"s_lshr_b32 {s(sT1)}, {s(sJ)}, 2")
        A(f"s_mul_i32 {s(sT2)}, {s(sT0)}, 7")
        A(f"s_add_u32 {s(sS4)}, {s(sT2)}, {s(sT1)}")
        A(f"s_cmp_eq_u32 {s(sT0)}, 3")
        A(f"s_cselect_b32 {s(sT2)}, 6, 7")
        A(f"s_cmp_lt_u32 {s(sT1)}, {s(sT2)}")
        A(f"s_cselect_b32 {s(sV4)}, 1, 0")

    def slab_voffset_l(self, dst, rowstride, n=1):
        o = ["v_lshrrev_b32 v2, 3, v1", "v_bfe_u32 v3, v1, 4, 2", "v_lshlrev_b32 v3, 1, v3", "v_and_b32 v4, 7, v1",
             "v_xor_b32 v3, v3, v4", "v_lshlrev_b32 v3, 4, v3", f"v_mul_u32_u24 v2, {rowstride}, v2",
             f"v_add_u32 v{dst}, v2, v3"]
        for k in range(1, n): o.append(f"v_add_u32 v{dst+k}, {k*(8*rowstride - 1024)}, v{dst}")
        return o

    def tr_addrs4(self, dst):
        A = self.A
        A("v_bfe_u32 v2, v1, 2, 2")
        A("v_lshrrev_b32 v3, 4, v1")
        A("v_lshl_add_u32 v2, v3, 2, v2")
        A("v_bfe_u32 v3, v2, 1, 2")
        A("v_and_b32 v4, 3, v1")
        A("v_lshlrev_b32 v4, 3, v4")
        A("v_and_b32 v5, 7, v2")
        A("v_lshl_add_u32 v4, v5, 7, v4")
        A("v_lshrrev_b32 v5, 3, v2")
        A("v_lshl_add_u32 v2, v5, 11, v4")
        for ct in range(4):
            A(f"v_xor_b32 v4, {ct}, v3")
            A(f"v_lshl_add_u32 v{dst+ct}, v4, 5, v2")

    def tr_addrs(self, dst, base, perm_sgpr=None):
        A = self.A
        A("v_bfe_u32 v2, v1, 2, 2")
        A("v_lshrrev_b32 v3, 4, v1")
        A("v_lshl_add_u32 v2, v3, 2, v2")
        A("v_bfe_u32 v3, v2, 1, 2")
        A("v_and_b32 v4, 3, v1")
        A("v_lshlrev_b32 v4, 3, v4")
        A("v_lshl_add_u32 v2, v2, 7, v4")
        A(f"v_add_u32 v2, {base}, v2")
        if perm_sgpr is not None: A(f"v_xor_b32 v3, {s(perm_sgpr)}, v3")
        for ct in range(4):
            A(f"v_xor_b32 v4, {ct}, v3")
            A(f"v_lshl_add_u32 v{dst+ct}, v4, 5, v2")

    def slab4(self, srd, so, lds_sgpr, lds_off, rowstride, tag):
        gs = []
        for k in range(4):
            g = [f"s_add_u32 m0, {s(lds_sgpr)}, {lds_off}", "s_nop 0"] if k == 0 else []
            g.append(f"buffer_load_dwordx4 v{VSL+k}, {s(srd,4)}, {s(so)} offen" + (f" offset:{k*1024}" if k else "") + f" lds ; @{tag}")
            if k == 3: g.append(f"s_add_u32 {s(so)}, {s(so)}, {32*rowstride}")
            gs.append(g)
        return gs

    def w3_groups(self):
        pre = self.slab_voffset_l(VSL, 1280, 4) + self.srd_l(SRD_W2, P_WO, 0, 640 * 1280) + [
            f"s_mul_i32 {s(sK2)}, {s(sW)}, {160*1280}", f"s_lshl_b32 {s(sK3)}, {s(sC3)}, 7",
            f"s_add_u32 {s(sK2)}, {s(sK2)}, {s(sK3)}",
            f"s_cmp_eq_u32 {s(sV3)}, 0", f"s_cselect_b32 {s(sK2)}, {OOB}, {s(sK2)}",
            f"s_add_u32 {s(sK3)}, {s(sW)}, 4", f"s_mul_i32 {s(sK3)}, {s(sK3)}, {STAGE}"]
        gs = []
        for mm in range(5): gs += self.slab4(SRD_W2, sK2, sK3, mm*4096, 1280, 'w3')
        gs[0] = pre + gs[0]
        return gs

    def w4_groups(self, m0, m1):
        pre = [f"s_lshl_b32 {s(sK2)}, {s(sW)}, 3", f"s_add_u32 {s(sK2)}, {s(sK2)}, {32*m0}",
               f"s_mul_i32 {s(sK2)}, {s(sK2)}, 3456", f"s_lshl_b32 {s(sK3)}, {s(sS4)}, 7",
               f"s_add_u32 {s(sK2)}, {s(sK2)}, {s(sK3)}",
               f"s_cmp_eq_u32 {s(sV4)}, 0", f"s_cselect_b32 {s(sK2)}, {OOB}, {s(sK2)}",
               f"s_lshl_b32 {s(sK3)}, {s(sW)}, 11"]
        gs = []
        for m in range(m0, m1):
            gs.append((pre if m == m0 else []) + [f"s_add_u32 m0, {s(sK3)}, {m*8192}", "s_nop 0",
                      f"buffer_load_dwordx4 v{VSLAB4}, {s(SRD_W,4)}, {s(sK2)} offen lds ; @w4"])
            gs.append([f"buffer_load_dwordx4 v{VSLAB4}, {s(SRD_W2,4)}, {s(sK2)} offen offset:1024 lds ; @w4",
                      f"s_add_u32 {s(sK2)}, {s(sK2)}, {32*3456}"])
        return gs

    def w5_groups(self, m0, m1, tag, region_a=None):
        base = 81920 if m0 >= 10 else 0
        pre = []
        if m0 == 0:
            pre += self.srd_l(SRD_W, P_WD, 0, 1728 * 1280)
        pre += [f"s_mul_i32 {s(sK2)}, {s(sW)}, 14", f"s_add_u32 {s(sK2)}, {s(sK2)}, {m0}",
                f"s_mul_i32 {s(sK2)}, {s(sK2)}, {32*1280}", f"s_lshl_b32 {s(sK3)}, {s(sC3)}, 7",
                f"s_add_u32 {s(sK2)}, {s(sK2)}, {s(sK3)}",
                f"s_cmp_eq_u32 {s(sV3)}, 0", f"s_cselect_b32 {s(sK2)}, {OOB}, {s(sK2)}",
                f"s_mul_i32 {s(sK3)}, {s(sW)}, 20480"]
        gs = []
        for mm in range(m0, m1): gs += self.slab4(SRD_W, sK2, sK3, base + (mm-m0)*4096, 1280, tag)
        gs[0] = pre + gs[0]
        return gs

    def colsum_part(self, m0, m1, VB, TMP):
        A = self.A
        A("v_bfe_u32 v2, v1, 2, 2")
        A("v_lshrrev_b32 v3, 4, v1")
        A("v_lshl_add_u32 v2, v3, 2, v2")
        A("v_bfe_u32 v3, v2, 1, 2")
        A(f"v_xor_b32 v3, {s(sW)}, v3")
        A("v_and_b32 v4, 3, v1")
        A("v_lshlrev_b32 v4, 3, v4")
        A("v_and_b32 v5, 7, v2")
        A("v_lshl_add_u32 v4, v5, 7, v4")
        A("v_lshrrev_b32 v5, 3, v2")
        A("v_lshl_add_u32 v2, v5, 11, v4")
        A(f"v_lshl_add_u32 v{VB}, v3, 5, v2")
        if m0: A(f"v_add_u32 v{VB}, {m0*8192}, v{VB}")
        for i in range(4): A(f"v_mov_b32 v{TMP+i}, 0x3f803f80")
        NB = 3
        def rd(m):
            k = m - m0; b = TMP + 4 + (k % NB) * 8
            pre = [f"v_add_u32 v{VB}, 57344, v{VB}"] if (k and k % 7 == 0) else []
            return pre + [f"ds_read_b64_tr_b16 {v(b+sec*4+2*h,2)}, v{VB} offset:{(k % 7)*8192 + sec*1024 + h*4096}" for sec in range(2) for h in range(2)]
        for m in range(m0, min(m0 + NB - 1, m1)):
            for t in rd(m): A(t)
        for m in range(m0, m1):
            if m + NB - 1 < m1:
                for t in rd(m + NB - 1): A(t)
            A(f"s_waitcnt lgkmcnt({4*min(NB - 1, m1 - 1 - m)})")
            b = TMP + 4 + ((m - m0) % NB) * 8
            for sec in range(2):
                A(f"{MF} {a(ACS+4*sec,4)}, {v(b+sec*4,4)}, {v(TMP,4)}, {'0' if m == 0 else a(ACS+4*sec,4)}")

    def emit_groups(self, gs):
        for g in gs:
            for t in g: self.A(t)

    def p2(self):
        A = self.A
        ti = sum(JOBS[k][0] << (3*k) for k in range(13))
        tj = sum(JOBS[k][1] << (3*k) for k in range(13))
        A(f"s_min_u32 {s(sT3)}, {s(sR)}, 17")
        A(f"s_min_u32 {s(sT0)}, {s(sR)}, 13")
        A(f"s_mul_i32 {s(sT0)}, {s(sT0)}, 3")
        A(f"s_mov_b32 {s(sC)}, {ti & 0xffffffff}")
        A(f"s_mov_b32 {s(sC+1)}, {ti >> 32}")
        A(f"s_lshr_b64 {s(sC,2)}, {s(sC,2)}, {s(sT0)}")
        A(f"s_and_b32 {s(sT1)}, {s(sC)}, 7")
        A(f"s_mov_b32 {s(sC)}, {tj & 0xffffffff}")
        A(f"s_mov_b32 {s(sC+1)}, {tj >> 32}")
        A(f"s_lshr_b64 {s(sC,2)}, {s(sC,2)}, {s(sT0)}")
        A(f"s_and_b32 {s(sT2)}, {s(sC)}, 7")
        self.srd(SRD_A, P_WS, WS_PART, WS_PART_SZ)
        A(f"s_lshl_b32 {s(sT4)}, {s(sG)}, 5")
        A(f"s_lshl_b32 {s(sT0)}, {s(sW)}, 3")
        A(f"s_add_u32 {s(sT4)}, {s(sT4)}, {s(sT0)}")
        A(f"s_mul_i32 {s(sT4)}, {s(sT4)}, 18")
        A(f"s_add_u32 {s(sT4)}, {s(sT4)}, {s(sT3)}")
        A(f"s_lshl_b32 {s(sK)}, {s(sT4)}, 10")
        A(f"s_mov_b32 {s(sC)}, 3277")
        A("v_and_b32 v3, 15, v1")
        A(f"s_lshl_b32 {s(sT0)}, {s(sT2)}, 4")
        A(f"v_add_u32 v3, {s(sT0)}, v3")
        A(f"v_mul_lo_u32 v3, v3, {s(sC)}")
        A("v_lshrrev_b32 v3, 16, v3")
        A("v_lshrrev_b32 v4, 4, v1")
        A(f"s_lshl_b32 {s(sT0)}, {s(sT1)}, 4")
        A(f"v_lshl_add_u32 v4, v4, 2, {s(sT0)}")
        for r in range(4):
            A(f"v_add_u32 v5, {r}, v4")
            A(f"v_mul_lo_u32 v5, v5, {s(sC)}")
            A("v_lshrrev_b32 v5, 16, v5")
            A(f"v_cmp_eq_u32 {s(sMASK+2*r,2)}, v5, v3")
        A(f"s_cmp_ge_u32 {s(sR)}, 13")
        for r in range(4): A(f"s_cselect_b64 {s(sMASK+2*r,2)}, -1, {s(sMASK+2*r,2)}")
        def setupA():
            A(f"s_add_u32 {s(sT0)}, {s(sG)}, {C_A}")
            A(f"s_lshl_b32 {s(sT0)}, {s(sT0)}, 7")
            A(f"v_mov_b32 v2, {s(sT0)}")
        self.poll(SRD_CNT, setupA, 1, 32, 2)
        self.stamp('cA')
        T = 164
        A("v_lshlrev_b32 v6, 4, v1")
        for k in range(8):
            A(f"buffer_load_dwordx4 {v(T+4*k,4)}, v6, {s(SRD_A,4)}, {s(sK)} offen sc1")
            if k < 7: A(f"s_add_u32 {s(sK)}, {s(sK)}, {18*1024}")
        self.q_epilogue()
        self.stamp('q_epi')
        A("s_waitcnt vmcnt(0)")
        for k in (4, 2, 1):
            for b in range(k):
                for p in range(2):
                    A(f"v_pk_add_f32 {v(T+4*b+2*p,2)}, {v(T+4*b+2*p,2)}, {v(T+4*(b+k)+2*p,2)}")
        A(f"s_lshl_b32 {s(sT0)}, {s(sW)}, 10")
        A(f"s_add_u32 {s(sT0)}, {s(sT0)}, {RED2}")
        A(f"v_add_u32 v3, {s(sT0)}, v6")
        A(f"ds_write_b128 v3, {v(T,4)}")
        A("s_waitcnt lgkmcnt(0)")
        A("s_barrier")
        Lr = A.newlabel('red')
        A(f"s_cmp_lg_u32 {s(sW)}, 0")
        A(f"s_cbranch_scc1 {Lr}")
        A(f"v_add_u32 v3, {RED2}, v6")
        for k in range(4):
            A(f"ds_read_b128 {v(T+4*k,4)}, v3 offset:{k*1024}")
        self.srd(SRD_B, P_WS, WS_KVF, WS_KVF_SZ)
        A(f"s_lshl_b32 {s(sT0)}, {s(sG)}, 14")
        A(f"s_lshl_b32 {s(sT1)}, {s(sR)}, 9")
        A(f"s_add_u32 {s(sT0)}, {s(sT0)}, {s(sT1)}")
        A(f"s_cmp_lt_u32 {s(sR)}, 18")
        A(f"s_cselect_b32 {s(sT0)}, {s(sT0)}, {OOB}")
        A("v_lshlrev_b32 v5, 3, v1")
        A("s_waitcnt lgkmcnt(0)")
        for p in range(2):
            A(f"v_pk_add_f32 {v(T+2*p,2)}, {v(T+2*p,2)}, {v(T+4+2*p,2)}")
            A(f"v_pk_add_f32 {v(T+8+2*p,2)}, {v(T+8+2*p,2)}, {v(T+12+2*p,2)}")
        for p in range(2):
            A(f"v_pk_add_f32 {v(T+2*p,2)}, {v(T+2*p,2)}, {v(T+8+2*p,2)}")
        for r in range(4):
            A(f"v_cndmask_b32 v{T+r}, 0, v{T+r}, {s(sMASK+2*r,2)}")
        A(f"v_cvt_pk_bf16_f32 v{T}, v{T}, v{T+1}")
        A(f"v_cvt_pk_bf16_f32 v{T+1}, v{T+2}, v{T+3}")
        A(f"buffer_store_dwordx2 {v(T,2)}, v5, {s(SRD_B,4)}, {s(sT0)} offen sc1 ; @nocount")
        A("s_waitcnt vmcnt(0)")
        A(f"s_add_u32 {s(sT0)}, {s(sG)}, {C_B}")
        self.signal(sT0, 4)
        A.label(Lr)
        self.stamp('red_done')
        for t in self.slab_voffset_l(VSLAB4, 3456): A(t)
        self.srd(SRD_W, P_WG, 0, 640 * 3456)
        A(f"s_sub_u32 {s(SRD_W2)}, {s(P_WU)}, 1024")
        A(f"s_subb_u32 {s(SRD_W2+1)}, {s(P_WU+1)}, 0")
        A(f"s_mov_b32 {s(SRD_W2+2)}, {640 * 3456 + 1024}")
        A(f"s_mov_b32 {s(SRD_W2+3)}, 0x20000")
        self.emit_groups(self.w4_groups(0, W4_E1))
        A(f"s_add_u32 {s(sT0)}, {s(sW)}, 4")
        A(f"s_mul_i32 {s(sT0)}, {s(sT0)}, {STAGE}")
        A(f"s_and_b32 {s(sT1)}, {s(sW)}, 1")
        A(f"s_lshl_b32 {s(sT1)}, {s(sT1)}, 1")
        self.tr_addrs(VTR3, s(sT0), perm_sgpr=sT1)
        for mm, rows in enumerate(((0, 16), (32, 48), (80, 96), (112, 128), (64, 144))):
            for ct in range(4):
                for sec in range(2):
                    A(f"ds_read_b64_tr_b16 {a(mm*16+ct*4+2*sec,2)}, v{VTR3+ct} offset:{rows[sec]*128}")
        A("WAITVM w4 lgkmcnt(0)")
        A("s_barrier")
        self.colsum_part(0, W4_E1, 6, 196)
        MK = 136
        A("v_and_b32 v2, 15, v1")
        A("v_lshrrev_b32 v3, 4, v1")
        A(f"s_mov_b32 {s(sC)}, 3277")
        for j in range(5):
            A(f"v_add_u32 v4, {16*j}, v2")
            A(f"v_mul_lo_u32 v4, v4, {s(sC)}")
            A(f"v_lshrrev_b32 v{150+j}, 16, v4")
            A(f"v_lshl_add_u32 v4, v3, 2, {16*j}")
            A(f"v_mul_lo_u32 v4, v4, {s(sC)}")
            A(f"v_lshrrev_b32 v{155+j}, 16, v4")
        for k, (ii, jj) in enumerate(JOBS[:13]):
            A(f"v_cmp_eq_u32 vcc, v{155+ii}, v{150+jj}")
            A(f"v_cndmask_b32 v{MK+k}, 0, -1, vcc")
        for f in (2, 4, 6):
            A(f"v_mov_b32 v{164+4*f+2}, 0"); A(f"v_mov_b32 v{164+4*f+3}, 0")
        self.srd(SRD_A, P_WS, WS_KVF, WS_KVF_SZ)
        A("v_lshlrev_b32 v6, 4, v1")
        def setupB():
            A(f"s_add_u32 {s(sT0)}, {s(sG)}, {C_B}")
            A(f"s_lshl_b32 {s(sT0)}, {s(sT0)}, 7")
            A(f"v_mov_b32 v2, {s(sT0)}")
        A("s_waitcnt lgkmcnt(0)")
        self.poll(SRD_CNT, setupB, 1, 32, 2)
        self.stamp('cB')
        PQ = self.PQ
        KV, ZP, DF = 164, 200, 212
        plan = [(0, 0, 1), (1, 0, 1), (1, 2, None), (2, 1, 2), (2, 3, None), (3, 2, 3), (3, 4, None), (4, 3, 4)]
        A("v_lshlrev_b32 v5, 3, v1")
        A(f"s_lshl_b32 {s(sT0)}, {s(sG)}, 14")
        A(f"s_add_u32 {s(sT1)}, {s(sT0)}, 4096")
        A(f"s_add_u32 {s(sT2)}, {s(sT0)}, 8192")
        def item_load(dst, item, tag):
            so, off = (sT0, sT1, sT2)[item // 8], (item % 8)*512
            return f"buffer_load_dwordx2 {v(dst,2)}, v5, {s(SRD_A,4)}, {s(so)} offen offset:{off} sc1 ; @{tag}"
        for i in range(5): A(item_load(ZP + 2*i, 13 + i, 'z'))
        for f, (j, i0_, i1_) in enumerate(plan):
            A(item_load(KV + 4*f, 2*i0_ + j, f'kv{f}'))
            if i1_ is not None: A(item_load(KV + 4*f + 2, 2*i1_ + j, f'kv{f}'))
        NUM, DEN = 96, 116
        self.srd(SRD_B, P_WS, WS_O, WS_O_SZ)
        A(f"s_lshl_b32 {s(sT0)}, {s(sR)}, 2")
        A(f"s_add_u32 {s(sT0)}, {s(sT0)}, {s(sW)}")
        A(f"s_mul_i32 {s(sT0)}, {s(sT0)}, {20*1024}")
        A(f"s_lshr_b32 {s(sT1)}, {s(sG)}, 1")
        A(f"s_mul_i32 {s(sT1)}, {s(sT1)}, 5120")
        A(f"s_add_u32 {s(sT0)}, {s(sT0)}, {s(sT1)}")
        A(f"s_and_b32 {s(sT1)}, {s(sG)}, 1")
        A(f"s_lshl_b32 {s(sT2)}, {s(sT1)}, 11")
        A(f"s_add_u32 {s(sT2)}, {s(sT2)}, {s(sT0)}")
        A(f"s_lshl_b32 {s(sT3)}, {s(sT1)}, 9")
        A(f"s_add_u32 {s(sT3)}, {s(sT3)}, {s(sT0)}")
        A(f"s_add_u32 {s(sT3)}, {s(sT3)}, 4096")
        A(f"s_mov_b32 {s(sC)}, 0x358637bd")
        A(f"s_mov_b32 {s(sC+1)}, 0x358637bd")
        A("WAITVM z")
        for f, (j, i0_, i1_) in enumerate(plan):
            first = (f == 0 or plan[f-1][0] != j)
            d = DF + 4*(f & 1)
            for h, ii in enumerate((i0_, i1_)):
                if ii is None:
                    A(f"v_mov_b32 v{d+2*h}, 0"); A(f"v_mov_b32 v{d+2*h+1}, 0")
                else:
                    mk = MK + [k for k, jb in enumerate(JOBS[:13]) if jb == (ii, j)][0]
                    A(f"v_and_b32 v{d+2*h}, v{ZP+2*ii}, v{mk}"); A(f"v_and_b32 v{d+2*h+1}, v{ZP+2*ii+1}, v{mk}")
            A(f"{MF} {v(DEN+4*j,4)}, {v(d,4)}, {v(PQ+2*i0_,4)}, {'0' if first else v(DEN+4*j,4)}")
        for f, (j, i0_, i1_) in enumerate(plan):
            first = (f == 0 or plan[f-1][0] != j)
            A(f"WAITVM kv{f}")
            A(f"{MF} {v(NUM+4*j,4)}, {v(KV+4*f,4)}, {v(PQ+2*i0_,4)}, {'0' if first else v(NUM+4*j,4)}")
        for j in range(5):
            for p in range(2):
                A(f"v_pk_add_f32 {v(DEN+4*j+2*p,2)}, {v(DEN+4*j+2*p,2)}, {s(sC,2)}")
        for j in range(5):
            for r in range(4):
                A(f"v_rcp_f32 v{DEN+4*j+r}, v{DEN+4*j+r}")
        OP = 164
        for j in range(5):
            for p in range(2):
                A(f"v_pk_mul_f32 {v(NUM+4*j+2*p,2)}, {v(NUM+4*j+2*p,2)}, {v(DEN+4*j+2*p,2)}")
            A(f"v_cvt_pk_bf16_f32 v{OP+2*j}, v{NUM+4*j}, v{NUM+4*j+1}")
            A(f"v_cvt_pk_bf16_f32 v{OP+2*j+1}, v{NUM+4*j+2}, v{NUM+4*j+3}")
            if j == 1: A(f"buffer_store_dwordx4 {v(OP,4)}, v6, {s(SRD_B,4)}, {s(sT2)} offen sc1")
            if j == 3: A(f"buffer_store_dwordx4 {v(OP+4,4)}, v6, {s(SRD_B,4)}, {s(sT2)} offen offset:1024 sc1")
            if j == 4: A(f"buffer_store_dwordx2 {v(OP+8,2)}, v5, {s(SRD_B,4)}, {s(sT3)} offen sc1")
        A("s_waitcnt vmcnt(0)")
        A("s_barrier")
        A(f"s_add_u32 {s(sT0)}, {s(sR)}, {C_O}")
        self.signal(sT0, 4)
        self.stamp('o_sig')
        self.emit_groups(self.w4_groups(W4_E1, W4_E2))

    def slot_tile(self, a_, b_): return (a_*4 + b_)
    def reduce_writes(self, ACC, rels):
        out = []
        for a_ in range(6):
            for b_ in range(4):
                rel = (a_ // 3) * 2 + (b_ >> 1)
                if rel in rels:
                    idx = (a_ % 3) * 2 + (b_ & 1)
                    out.append(f"ds_write_b128 v{self.VRW+rel-1}, {v(ACC + (a_*4+b_)*4, 4)} offset:{idx*1024}")
        return out
    def reduce_setup(self, VRW, VRR):
        A = self.A
        self.VRW, self.VRR = VRW, VRR
        for rel in range(1, 4):
            A(f"s_xor_b32 {s(sT0)}, {s(sW)}, {rel}")
            A(f"s_mul_i32 {s(sT0)}, {s(sT0)}, {3*6144}")
            A(f"s_add_u32 {s(sT0)}, {s(sT0)}, {RED3 + (rel-1)*6144}")
            A(f"v_lshl_add_u32 v{VRW+rel-1}, v1, 4, {s(sT0)}")
        A(f"s_mul_i32 {s(sT0)}, {s(sW)}, {3*6144}")
        A(f"s_add_u32 {s(sT0)}, {s(sT0)}, {RED3}")
        A(f"v_lshl_add_u32 v{VRR}, v1, 4, {s(sT0)}")
    def reduce_finish(self, ACC, TMP):
        A = self.A
        for rel in range(1, 4):
            for idx in range(6):
                A(f"ds_read_b128 {v(TMP + ((rel-1)*6+idx)*4, 4)}, v{self.VRR} offset:{(rel-1)*6144 + idx*1024}")
        for rel in range(1, 4):
            A(f"s_waitcnt lgkmcnt({min(15, 6*(3-rel))})")
            for idx in range(6):
                d = ACC + ((idx // 2)*4 + (idx & 1))*4; t = TMP + ((rel-1)*6+idx)*4
                for p in range(2):
                    A(f"v_pk_add_f32 {v(d+2*p,2)}, {v(d+2*p,2)}, {v(t+2*p,2)}")

    def p3(self):
        A = self.A
        Lend = A.newlabel('p3end')
        A(f"s_cmp_eq_u32 {s(sV3)}, 0")
        A(f"s_cbranch_scc1 {Lend}")
        ACC, XR = 16, 112
        A("v_and_b32 v2, 15, v1")
        A("v_mul_u32_u24 v2, 1280, v2")
        A("v_lshrrev_b32 v3, 4, v1")
        A(f"v_lshl_add_u32 v{VXR}, v3, 3, v2")
        A(f"s_lshr_b32 {s(sT0)}, {s(sW)}, 1")
        A(f"s_mul_i32 {s(sT0)}, {s(sT0)}, 3")
        A(f"s_mul_i32 {s(sT1)}, {s(sR3)}, 6")
        A(f"s_add_u32 {s(sTT)}, {s(sT0)}, {s(sT1)}")
        A(f"s_mul_i32 {s(sT0)}, {s(sTT)}, {16*1280}")
        A(f"s_lshl_b32 {s(sT1)}, {s(sC3)}, 7")
        A(f"s_add_u32 {s(sT0)}, {s(sT0)}, {s(sT1)}")
        A(f"s_and_b32 {s(sT1)}, {s(sW)}, 1")
        A(f"s_lshl_b32 {s(sT1)}, {s(sT1)}, 6")
        A(f"s_add_u32 {s(sXO)}, {s(sT0)}, {s(sT1)}")
        A(f"s_add_u32 {s(sT0)}, {s(sXO)}, 2048")
        for i in range(3):
            for c in range(2):
                A(f"buffer_load_dwordx2 {v(XR+4*i+2*c,2)}, v{VXR}, {s(SRD_X,4)}, {s(sT0)} offen offset:{32*c}")
            if i < 2: A(f"s_add_u32 {s(sT0)}, {s(sT0)}, {16*1280}")
        self.reduce_setup(124, 127)
        self.srd(SRD_A, P_WS, WS_O, WS_O_SZ)
        VA = 128
        A("v_lshlrev_b32 v2, 4, v1")
        A(f"s_lshr_b32 {s(sT0)}, {s(sW)}, 1")
        A(f"s_mul_i32 {s(sT0)}, {s(sT0)}, {3*20*1024}")
        for a_ in range(6):
            if a_ < 3:
                A(f"s_add_u32 {s(sT1)}, {s(sT0)}, {a_*20*1024}")
            else:
                A(f"s_sub_u32 {s(sT1)}, {a_*20*1024}, {s(sT0)}")
                A(f"s_cmp_ge_u32 {s(sT1)}, {3*20*1024}")
            A(f"v_add_u32 v{VA+a_}, {s(sT1)}, v2")
        A(f"s_mul_i32 {s(sK)}, {s(sR3)}, {6*20*1024}")
        A(f"s_mul_i32 {s(sT1)}, {s(sW)}, {5*1024}")
        A(f"s_add_u32 {s(sK)}, {s(sK)}, {s(sT1)}")
        def setup():
            A(f"s_mul_i32 {s(sT0)}, {s(sR3)}, 3")
            A(f"s_lshr_b32 {s(sT0)}, {s(sT0)}, 1")
            A(f"v_add_u32 v2, {s(sT0)}, v1")
            A("v_min_u32 v2, 31, v2")
            A(f"v_add_u32 v2, {C_O}, v2")
            A("v_lshlrev_b32 v2, 7, v2")
        self.poll(SRD_CNT, setup, 2, 8, 2)
        self.stamp('cO')
        OF = 80
        VB8 = 208
        order = [3, 4, 5, 0, 1, 2]
        A(f"s_add_u32 {s(sK3)}, {s(sK)}, 4096")
        A("v_lshlrev_b32 v3, 3, v1")
        A("v_lshlrev_b32 v4, 4, v1")
        A("v_sub_u32 v3, v3, v4")
        for a_ in range(6): A(f"v_add_u32 v{VB8+a_}, v{VA+a_}, v3")
        for a_ in order:
            for mm in range(4):
                A(f"buffer_load_dwordx4 {a(OF+(a_*5+mm)*4,4)}, v{VA+a_}, {s(SRD_A,4)}, {s(sK)} offen offset:{mm*1024} sc1 ; @o{a_}")
            for h in range(2):
                A(f"buffer_load_dwordx2 {a(OF+(a_*5+4)*4+2*h,2)}, v{VB8+a_}, {s(SRD_A,4)}, {s(sK3)} offen offset:{h*512} sc1 ; @o{a_}")
        def mm_tile(a_, b_, mm):
            d = ACC + (a_*4+b_)*4
            return f"{MF} {v(d,4)}, {a(mm*16+b_*4,4)}, {a(OF+(a_*5+mm)*4,4)}, {'0' if mm == 0 else v(d,4)}"
        for n, a_ in enumerate((3, 4, 5)):
            A(f"WAITVM o{a_}")
            for mm in range(5):
                for b_ in range(4): A(mm_tile(a_, b_, mm))
        main = []
        for n, a_ in enumerate((0, 1, 2)):
            blk = [mm_tile(a_, b_, mm) for mm in range(5) for b_ in (2, 3)]
            main += [f"WAITVM o{a_}"] + blk
        wr = self.reduce_writes(ACC, (2, 3))
        for t in weave(main, [([[x] for x in wr], 8, len(main))]): A(t)
        main = [mm_tile(a_, b_, mm) for a_ in range(3) for mm in range(5) for b_ in (0, 1)]
        wr = self.reduce_writes(ACC, (1,))
        for t in weave(main, [([[x] for x in wr], 6, 24)]): A(t)
        self.stamp('p3_mfma')
        A("s_waitcnt lgkmcnt(0)")
        A("s_barrier")
        self.reduce_finish(ACC, 136)
        self.stamp('p3_red')
        T = 136; HR = 148
        self.srd(SRD_B, P_WS, WS_H, WS_H_SZ)
        A(f"s_mul_i32 {s(sT0)}, {s(sTT)}, 20")
        A(f"s_lshl_b32 {s(sT1)}, {s(sC3)}, 1")
        A(f"s_add_u32 {s(sT0)}, {s(sT0)}, {s(sT1)}")
        A(f"s_and_b32 {s(sT1)}, {s(sW)}, 1")
        A(f"s_add_u32 {s(sT0)}, {s(sT0)}, {s(sT1)}")
        A(f"s_lshl_b32 {s(sT1)}, {s(sT0)}, 10")
        A(f"s_lshl_b32 {s(sT2)}, {s(sTT)}, 7")
        A(f"s_add_u32 {s(sT2)}, {s(sT2)}, {WS_ST2}")
        A(f"s_cmp_lt_u32 {s(sTT)}, 128")
        A(f"s_cselect_b32 {s(sT2)}, {s(sT2)}, {OOB}")
        A("v_lshlrev_b32 v4, 4, v1")
        A("v_and_b32 v5, 15, v1")
        A("v_lshlrev_b32 v5, 3, v5")
        A("v_bfe_u32 v6, v1, 4, 1")
        A(f"v_cmp_eq_u32 {s(sMASK,2)}, 1, v6")
        A("v_lshl_add_u32 v5, v6, 2, v5")
        for i in range(3):
            for c in range(2):
                o = ACC + (i*4+c)*4
                for hreg in range(2):
                    x = XR + 4*i + 2*c + hreg
                    A(f"v_lshlrev_b32 v{T}, 16, v{x}")
                    A(f"v_and_b32 v{T+1}, 0xffff0000, v{x}")
                    A(f"v_pk_add_f32 {v(o+2*hreg,2)}, {v(o+2*hreg,2)}, {v(T,2)}")
            o = ACC + i*16
            for k in range(4):
                A(f"v_cvt_pk_bf16_f32 v{HR+4*i+k}, v{o+2*k}, v{o+2*k+1}")
            A(f"buffer_store_dwordx4 {v(HR+4*i,4)}, v4, {s(SRD_B,4)}, {s(sT1)} offen sc1")
            if i < 2: A(f"s_add_u32 {s(sT1)}, {s(sT1)}, {20*1024}")
        for i in range(3):
            o = ACC + i*16
            A(f"v_pk_mul_f32 {v(T+2,2)}, {v(o,2)}, {v(o,2)}")
            A(f"v_pk_add_f32 {v(T,2)}, {v(o,2)}, {v(o+2,2)}")
            A(f"v_pk_fma_f32 {v(T+2,2)}, {v(o+2,2)}, {v(o+2,2)}, {v(T+2,2)}")
            for k in (4, 6):
                A(f"v_pk_add_f32 {v(T,2)}, {v(T,2)}, {v(o+k,2)}")
                A(f"v_pk_fma_f32 {v(T+2,2)}, {v(o+k,2)}, {v(o+k,2)}, {v(T+2,2)}")
            A(f"v_add_f32 v{T}, v{T}, v{T+1}")
            A(f"v_add_f32 v{T+1}, v{T+2}, v{T+3}")
            for sw in ('v_permlane16_swap_b32', 'v_permlane32_swap_b32'):
                A(f"v_mov_b32 v{T+2}, v{T}")
                A(f"v_mov_b32 v{T+3}, v{T+1}")
                A(f"{sw} v{T}, v{T+2}")
                A(f"{sw} v{T+1}, v{T+3}")
                A(f"v_pk_add_f32 {v(T,2)}, {v(T,2)}, {v(T+2,2)}")
            A(f"v_cndmask_b32 v{T+4+i}, v{T}, v{T+1}, {s(sMASK,2)}")
            A("s_mov_b64 exec, 0xffffffff")
            A(f"buffer_atomic_add_f32 v{T+4+i}, v5, {s(SRD_CNT,4)}, {s(sT2)} offen sc1")
            A("s_mov_b64 exec, -1")
            if i < 2:
                A(f"s_add_u32 {s(sT2)}, {s(sT2)}, 128")
                A(f"s_cmp_lt_u32 {s(sT2)}, {WS_ST2 + 2048*8}")
                A(f"s_cselect_b32 {s(sT2)}, {s(sT2)}, {OOB}")
        for k in range(12):
            A(f"v_accvgpr_write_b32 a{AHRES+k}, v{HR+k}")
        A("s_waitcnt vmcnt(0)")
        A("s_barrier")
        A(f"s_add_u32 {s(sT0)}, {s(sR3)}, {C_H}")
        self.signal(sT0, 4)
        A.label(Lend)
        self.stamp('h_sig')

    def p4(self):
        A = self.A
        Lend = A.newlabel('p4end')
        A(f"s_cmp_eq_u32 {s(sV4)}, 0")
        A(f"s_cbranch_scc1 {Lend}")
        ACC = 16; CSR = 160; T = 208
        WF = 0; AF = 64; D = 5
        self.emit_groups(self.w4_groups(W4_E2, 20))
        self.tr_addrs4(VTR4)
        self.srd(SRD_A, P_WS, WS_H, WS_H_SZ)
        VA = T + 20
        A("v_lshlrev_b32 v4, 4, v1")
        for i in range(4): A(f"v_add_u32 v{VA+i}, {i*20*1024}, v4")
        A(f"s_lshl_b32 {s(sT0)}, {s(sR4)}, 4")
        A(f"s_lshl_b32 {s(sT1)}, {s(sW)}, 2")
        A(f"s_add_u32 {s(sTT4)}, {s(sT0)}, {s(sT1)}")
        A(f"s_mul_i32 {s(sK)}, {s(sTT4)}, {20*1024}")
        A("v_and_b32 v3, 15, v1")
        A("v_lshlrev_b32 v3, 3, v3")
        A(f"v_mov_b32 v{VA+4}, v3")
        def wreads(buf, m):
            return [f"ds_read_b64_tr_b16 {a(WF+buf*32+(sec*4+ct)*4+2*h,2)}, v{VTR4+ct} offset:{(m % 8)*8192 + sec*1024 + h*4096}"
                    for sec in range(2) for ct in range(4) for h in range(2)]
        for t in wreads(0, 0): A(t)
        A("WAITVM w4 lgkmcnt(0)")
        A("s_barrier")
        self.stamp('w4_landed')
        self.colsum_part(W4_E1, 20, 6, 16)
        A("v_lshrrev_b32 v2, 4, v1")
        A("v_lshlrev_b32 v2, 4, v2")
        A(f"s_lshl_b32 {s(sT0)}, {s(sW)}, 6")
        A(f"v_add_u32 v3, {s(sT0)}, v2")
        A(f"ds_write_b128 v3, {a(ACS,4)}")
        A(f"ds_write_b128 v3, {a(ACS+4,4)} offset:256")
        A("s_waitcnt lgkmcnt(0)")
        A("s_barrier")
        for k in range(8):
            A(f"ds_read_b128 {v(CSR+4*k,4)}, v2 offset:{k*64}")
        self.stamp('colsum')
        def setup():
            A(f"s_lshl_b32 {s(sT0)}, {s(sR4)}, 4")
            A(f"s_mul_i32 {s(sT1)}, {s(sT0)}, 43")
            A(f"s_lshr_b32 {s(sT1)}, {s(sT1)}, 8")
            A(f"s_add_u32 {s(sT0)}, {s(sT0)}, 15")
            A(f"s_mul_i32 {s(sT0)}, {s(sT0)}, 43")
            A(f"s_lshr_b32 {s(sT0)}, {s(sT0)}, 8")
            A(f"v_add_u32 v2, {s(sT1)}, v1")
            A(f"v_min_u32 v2, {s(sT0)}, v2")
            A(f"v_add_u32 v2, {C_H}, v2")
            A("v_lshlrev_b32 v2, 7, v2")
        self.poll(SRD_CNT, setup, 4, 10, 2)
        self.stamp('cH')
        def aload_groups(m):
            gs = [[f"buffer_load_dwordx4 {a(AF+(m % D)*16+4*i,4)}, v{VA+i}, {s(SRD_A,4)}, {s(sK)} offen sc1 ; @a{m}"] for i in range(4)]
            gs[-1].append(f"s_add_u32 {s(sK)}, {s(sK)}, 1024")
            return gs
        NPRE = 3
        for m in range(NPRE): self.emit_groups(aload_groups(m))
        MEAN, RS2 = 192, 200
        A(f"s_lshl_b32 {s(sT0)}, {s(sTT4)}, 7")
        A(f"s_add_u32 {s(sT0)}, {s(sT0)}, {WS_ST2}")
        for i in range(4):
            A(f"buffer_load_dwordx2 {v(T+2*i,2)}, v{VA+4}, {s(SRD_CNT,4)}, {s(sT0)} offen offset:{i*128} sc1 ; @stat")
        def stat_math():
            o = []
            for i in range(4):
                o += [f"v_mul_f32 v{MEAN+2*i}, {1.0/640!r}, v{T+2*i}", f"v_mul_f32 v{T+2*i+1}, {1.0/640!r}, v{T+2*i+1}"]
            for i in range(4): o.append(f"v_fma_f32 v{T+2*i+1}, -v{MEAN+2*i}, v{MEAN+2*i}, v{T+2*i+1}")
            for i in range(4): o.append(f"v_max_f32 v{T+2*i+1}, 0, v{T+2*i+1}")
            for i in range(4): o.append(f"v_add_f32 v{T+2*i+1}, 0x3727c5ac, v{T+2*i+1}")
            for i in range(4): o.append(f"v_rcp_f32 v{RS2+2*i}, v{T+2*i+1}")
            return o
        P = Pacer(A)
        P.slack = 0.8
        w5a = self.w5_groups(0, 5, 'w5a')
        w5b = self.w5_groups(5, 10, 'w5b', region_a=True)
        for m in range(NPRE, 20):
            P.push(aload_groups(m), 19, None if m < D else f'it{m-D}', f'a{m}')
            if m >= 12 and m < 17: P.push(w5a[(m-12)*4:(m-11)*4], 19, 'w5ok', 'w5a')
        P.push(w5b, 19, 'w5a_read', 'w5b')
        A(f"s_mul_i32 {s(sT0)}, {s(sW)}, 20480")
        A(f"s_and_b32 {s(sT1)}, {s(sW)}, 1")
        A(f"s_lshl_b32 {s(sT1)}, {s(sT1)}, 1")
        self.tr_addrs(VTR3, s(sT0), perm_sgpr=sT1)
        def w5a_reads(mm):
            return [f"ds_read_b64_tr_b16 {a(W5A+mm*16+ct*4+2*h,2)}, v{VTR3+ct} offset:{mm*4096 + h*2048}" for ct in range(4) for h in range(2)]
        for m in range(20):
            buf = m & 1
            P.flush(f'a{m}')
            self.lstamp_pre(f'p4k{m}')
            A(f"WAITVM a{m} lgkmcnt(0)")
            self.lstamp_post()
            if m == 10:
                A("s_barrier")
                P.event('w5ok')
            side = []
            if m + 1 < 20:
                if (m + 1) in (8, 16):
                    side += [f"v_add_u32 v{VTR4+ct}, 65536, v{VTR4+ct}" for ct in range(4)]
                side += wreads(buf ^ 1, m + 1)
            if m == 3:
                A("WAITVM stat")
                side += stat_math()
            if m == 16:
                P.flush('w5a')
                A("WAITVM w5a")
            if m in (16, 17):
                for mm in (range(0, 3) if m == 16 else range(3, 5)): side += w5a_reads(mm)
            if m == 18: P.event('w5a_read')
            k = 0
            for n in range(32):
                i, sec, ct = n // 8, (n // 4) % 2, n % 4
                d = ACC + n*4
                P.emit(f"{MF} {v(d,4)}, {a(WF+buf*32+(sec*4+ct)*4,4)}, {a(AF+(m % D)*16+4*i,4)}, {'0' if m == 0 else v(d,4)}", feed=True)
                want = min(len(side), n + 1) if len(side) <= 28 else min(len(side), ((n + 1) * len(side) + 27) // 28)
                while k < want:
                    P.emit(side[k], feed=False); k += 1
            P.event(f'it{m}')
        P.flush('w5b')
        self.stamp('p4_loop')
        self.srd(SRD_B, P_WS, WS_HH, WS_HH_SZ)
        A(f"s_mul_i32 {s(sT0)}, {s(sTT4)}, 54")
        A(f"s_lshl_b32 {s(sT1)}, {s(sS4)}, 1")
        A(f"s_add_u32 {s(sT0)}, {s(sT0)}, {s(sT1)}")
        A(f"s_lshl_b32 {s(sK)}, {s(sT0)}, 10")
        A("v_lshlrev_b32 v6, 4, v1")
        body = []
        for i in range(4):
            for pair in range(2):
                P = T + 8 + ((i*2+pair) & 1) * 4
                for c in range(2):
                    ct = 2*pair + c
                    g = ACC + (i*8 + ct)*4; u = ACC + (i*8 + 4 + ct)*4
                    for p in range(2):
                        body.append(f"v_pk_fma_f32 {v(g+2*p,2)}, {v(CSR+4*ct+2*p,2)}, {v(MEAN+2*i,2)}, {v(g+2*p,2)} op_sel_hi:[1,0,1] neg_lo:[1,0,0] neg_hi:[1,0,0]")
                        body.append(f"v_pk_fma_f32 {v(u+2*p,2)}, {v(CSR+16+4*ct+2*p,2)}, {v(MEAN+2*i,2)}, {v(u+2*p,2)} op_sel_hi:[1,0,1] neg_lo:[1,0,0] neg_hi:[1,0,0]")
                    for r in range(4):
                        body.append(f"v_max_f32 v{g+r}, 0, v{g+r}")
                    for p in range(2):
                        body.append(f"v_pk_mul_f32 {v(u+2*p,2)}, {v(u+2*p,2)}, {v(RS2+2*i,2)} op_sel_hi:[1,0]")
                    for p in range(2):
                        body.append(f"v_pk_mul_f32 {v(g+2*p,2)}, {v(g+2*p,2)}, {v(u+2*p,2)}")
                    body.append(f"v_cvt_pk_bf16_f32 v{P+2*c}, v{g}, v{g+1}")
                    body.append(f"v_cvt_pk_bf16_f32 v{P+2*c+1}, v{g+2}, v{g+3}")
                body.append(f"buffer_store_dwordx4 {v(P,4)}, v6, {s(SRD_B,4)}, {s(sK)} offen offset:{pair*1024} sc1 ; @hh")
            if i < 3: body.append(f"s_add_u32 {s(sK)}, {s(sK)}, {54*1024}")
        for t in body: A(t)
        A("s_waitcnt vmcnt(0)")
        A("s_barrier")
        A(f"s_add_u32 {s(sT0)}, {s(sR4)}, {C_HH}")
        self.signal(sT0, 4)
        self.stamp('hh_sig')
        Lj = A.newlabel('p4join')
        A(f"s_branch {Lj}")
        A.label(Lend)
        A("s_waitcnt vmcnt(0)")
        A("s_barrier")
        self.emit_groups(self.w5_groups(0, 5, 'w5a'))
        A(f"s_mul_i32 {s(sT0)}, {s(sW)}, 20480")
        A(f"s_and_b32 {s(sT1)}, {s(sW)}, 1")
        A(f"s_lshl_b32 {s(sT1)}, {s(sT1)}, 1")
        self.tr_addrs(VTR3, s(sT0), perm_sgpr=sT1)
        A("s_waitcnt vmcnt(0)")
        for mm in range(5):
            for ct in range(4):
                for h in range(2):
                    A(f"ds_read_b64_tr_b16 {a(W5A+mm*16+ct*4+2*h,2)}, v{VTR3+ct} offset:{mm*4096 + h*2048}")
        A("s_waitcnt lgkmcnt(0)")
        self.emit_groups(self.w5_groups(5, 10, 'w5b', region_a=True))
        A("s_waitcnt vmcnt(0)")
        A.label(Lj)

    def p5(self):
        A = self.A
        Lend = A.newlabel('p5end')
        A(f"s_cmp_eq_u32 {s(sV3)}, 0")
        A(f"s_cbranch_scc1 {Lend}")
        ACC = 16
        AF = 112; D = 8
        self.emit_groups(self.w5_groups(10, 14, 'w5c'))
        for ct in range(4): A(f"v_add_u32 v{VTR4+ct}, 81920, v{VTR3+ct}")
        def w5reg(mm): return W5A + mm*16 if mm < 5 else (mm - 5)*16
        def w5reads(m0, m1):
            base = VTR4 if m0 >= 10 else VTR3
            for mm in range(m0, m1):
                for ct in range(4):
                    for h in range(2):
                        A(f"ds_read_b64_tr_b16 {a(w5reg(mm)+ct*4+2*h,2)}, v{base+ct} offset:{(mm-m0)*4096 + h*2048}")
        w5reads(5, 10)
        self.reduce_setup(232, 235)
        self.srd(SRD_A, P_WS, WS_HH, WS_HH_SZ)
        VA = 236
        A("v_lshlrev_b32 v2, 4, v1")
        A(f"s_lshr_b32 {s(sT0)}, {s(sW)}, 1")
        A(f"s_mul_i32 {s(sT0)}, {s(sT0)}, {3*54*1024}")
        for a_ in range(6):
            if a_ < 3: A(f"s_add_u32 {s(sT1)}, {s(sT0)}, {a_*54*1024}")
            else: A(f"s_sub_u32 {s(sT1)}, {a_*54*1024}, {s(sT0)}")
            A(f"v_add_u32 v{VA+a_}, {s(sT1)}, v2")
        A(f"s_mul_i32 {s(sT0)}, {s(sR3)}, {6*54}")
        A(f"s_mul_i32 {s(sT2)}, {s(sW)}, 14")
        A(f"s_add_u32 {s(sT0)}, {s(sT0)}, {s(sT2)}")
        A(f"s_lshl_b32 {s(sWA)}, {s(sT0)}, 10")
        A("WAITVM w5c")
        w5reads(10, 14)
        A("s_waitcnt lgkmcnt(0)")
        def setup():
            A(f"s_mul_i32 {s(sT0)}, {s(sR3)}, 6")
            A(f"s_lshr_b32 {s(sT1)}, {s(sT0)}, 4")
            A(f"s_add_u32 {s(sT0)}, {s(sT0)}, 5")
            A(f"s_min_u32 {s(sT0)}, {s(sT0)}, 127")
            A(f"s_lshr_b32 {s(sT0)}, {s(sT0)}, 4")
            A(f"v_add_u32 v2, {s(sT1)}, v1")
            A(f"v_min_u32 v2, {s(sT0)}, v2")
            A(f"v_add_u32 v2, {C_HH}, v2")
            A("v_lshlrev_b32 v2, 7, v2")
        self.stamp('w5_regs')
        self.poll(SRD_CNT, setup, 2, 27, 2)
        self.stamp('cHH')
        A(f"s_mul_i32 {s(sWB)}, {s(sW)}, 14")
        def aload_groups(n):
            ps, mm = divmod(n, 14)
            a0 = 3 if ps == 0 else 0
            pre = []
            if mm == 0: pre.append(f"s_mov_b32 {s(sK)}, {s(sWA)}")
            so = sK
            if mm >= 12:
                pre += [f"s_add_u32 {s(sK2)}, {s(sWB)}, {mm}", f"s_cmp_lt_u32 {s(sK2)}, 54",
                        f"s_cselect_b32 {s(sK2)}, {s(sK)}, {OOB}"]
                so = sK2
            gs = [[f"buffer_load_dwordx4 {v(AF+(n % D)*12+4*i,4)}, v{VA+a0+i}, {s(SRD_A,4)}, {s(so)} offen sc1 ; @b{n}"] for i in range(3)]
            gs[0] = pre + gs[0]
            gs[-1].append(f"s_add_u32 {s(sK)}, {s(sK)}, 1024")
            return gs
        NPRE = 6
        for n in range(NPRE): self.emit_groups(aload_groups(n))
        P = Pacer(A)
        P.slack = 0.6
        for n in range(NPRE, 28):
            P.push(aload_groups(n), 19, None if n < D else f'it{n-D}', f'b{n}')
        wr1 = self.reduce_writes(ACC, (2, 3))
        for n in range(28):
            ps, mm = divmod(n, 14)
            a0 = 3 if ps == 0 else 0
            P.flush(f'b{n}')
            A(f"WAITVM b{n}")
            k = 0
            for i in range(3):
                for b_ in (2, 3, 0, 1):
                    d = ACC + ((a0+i)*4+b_)*4
                    P.emit(f"{MF} {v(d,4)}, {a(w5reg(mm)+b_*4,4)}, {v(AF+(n % D)*12+4*i,4)}, {'0' if mm == 0 else v(d,4)}")
                    k += 1
                    if k == 6 and ps == 1 and 1 <= mm <= 12: P.emit(wr1[mm-1], feed=False)
            P.event(f'it{n}')
        self.stamp('p5_mfma')
        for t in self.reduce_writes(ACC, (1,)): A(t)
        self.srd(SRD_B, P_OUT, 0, 2048 * 1280)
        A("s_waitcnt lgkmcnt(0)")
        A("s_barrier")
        self.reduce_finish(ACC, 112)
        self.stamp('p5_red')
        T = 200
        OT = 0
        A("v_and_b32 v2, 15, v1")
        A("v_mul_u32_u24 v2, 144, v2")
        A("v_lshrrev_b32 v3, 4, v1")
        A("v_lshl_add_u32 v2, v3, 3, v2")
        A(f"s_lshr_b32 {s(sT0)}, {s(sW)}, 1")
        A(f"s_mul_i32 {s(sT0)}, {s(sT0)}, {48*144}")
        A(f"s_and_b32 {s(sT1)}, {s(sW)}, 1")
        A(f"s_lshl_b32 {s(sT1)}, {s(sT1)}, 6")
        A(f"s_add_u32 {s(sT0)}, {s(sT0)}, {s(sT1)}")
        A(f"v_add_u32 v2, {s(sT0)}, v2")
        for i in range(3):
            for c in range(2):
                o = ACC + (i*4+c)*4
                for hreg in range(2):
                    A(f"v_accvgpr_read_b32 v{T+2}, a{AHRES + 4*i + 2*c + hreg}")
                    A(f"v_lshlrev_b32 v{T}, 16, v{T+2}")
                    A(f"v_and_b32 v{T+1}, 0xffff0000, v{T+2}")
                    A(f"v_pk_add_f32 {v(o+2*hreg,2)}, {v(o+2*hreg,2)}, {v(T,2)}")
                A(f"v_cvt_pk_bf16_f32 v{o}, v{o}, v{o+1}")
                A(f"v_cvt_pk_bf16_f32 v{o+1}, v{o+2}, v{o+3}")
                A(f"ds_write_b64 v2, {v(o,2)} offset:{OT + i*16*144 + c*32}")
        A("v_lshrrev_b32 v3, 3, v1")
        A("v_and_b32 v4, 7, v1")
        A("v_mul_u32_u24 v5, 144, v3")
        A("v_lshl_add_u32 v5, v4, 4, v5")
        A(f"s_mul_i32 {s(sT0)}, {s(sW)}, {24*144}")
        A(f"v_add_u32 v5, {s(sT0)}, v5")
        A("v_mul_u32_u24 v3, 1280, v3")
        A("v_lshl_add_u32 v3, v4, 4, v3")
        A(f"s_mul_i32 {s(sT0)}, {s(sR3)}, 96")
        A(f"s_mul_i32 {s(sT1)}, {s(sW)}, 24")
        A(f"s_add_u32 {s(sT0)}, {s(sT0)}, {s(sT1)}")
        A(f"s_mul_i32 {s(sT0)}, {s(sT0)}, 1280")
        A(f"s_lshl_b32 {s(sT1)}, {s(sC3)}, 7")
        A(f"s_add_u32 {s(sT0)}, {s(sT0)}, {s(sT1)}")
        A("s_waitcnt lgkmcnt(0)")
        A("s_barrier")
        for k in range(3):
            A(f"ds_read_b128 {v(T+4*k,4)}, v5 offset:{OT + k*8*144}")
        fl = " sc1" if 'outsc1' in self.exp else " nt" if 'outnt' in self.exp else ""
        for k in range(3):
            A(f"s_waitcnt lgkmcnt({2-k})")
            A(f"buffer_store_dwordx4 {v(T+4*k,4)}, v3, {s(SRD_B,4)}, {s(sT0)} offen{fl}")
            if k < 2: A(f"s_add_u32 {s(sT0)}, {s(sT0)}, {8*1280}")
        A.label(Lend)

    def finish(self):
        A = self.A
        if self.prof:
            A("s_waitcnt vmcnt(0)")
            self.stamp('end')
            self.dump_stamps()
        if 'hdbg' in self.exp:
            A("s_waitcnt vmcnt(0)")
            self.stamp('end')
            self.hreport()
        A.label("L_end")
        A("s_endpgm")

    def build(self):
        self.prologue()
        self.p1()
        if not getattr(self, 'early_exit', False):
            self.p2()
            self.p3()
            self.p4()
            self.p5()
            self.finish()
        else:
            self.A.label("L_end")
            self.A("s_endpgm")
        n = self.A.fix_hazards()
        hdr = open('cdna_kernels/' + NAME + '.s.ref').read().split('; Override launch')[0]
        out = hdr
        out += "; Override launch geometry by editing the next line.\n"
        out += f"; @launch grid=(256,1,1) block=(256,1,1) lds={LDS_BYTES}\n"
        out += '.amdgcn_target "amdgcn-amd-amdhsa--gfx950"\n.text\n'
        out += f".globl {KNAME}\n.p2align 8\n.type {KNAME},@function\n{KNAME}:\n"
        out += self.A.text()
        out += f""".section .rodata,"a"
.p2align 6
.amdhsa_kernel {KNAME}
  .amdhsa_next_free_vgpr 512
  .amdhsa_next_free_sgpr 102
  .amdhsa_accum_offset 256
  .amdhsa_group_segment_fixed_size 0
  .amdhsa_kernarg_size 80
  .amdhsa_user_sgpr_count 2
  .amdhsa_user_sgpr_kernarg_segment_ptr 1
  .amdhsa_system_sgpr_workgroup_id_x 1
.end_amdhsa_kernel
"""
        return out, n

sTT4 = 81
sLK, sLQ = 76, 77

def issued_at_zero(sig):
    return 99

if __name__ == '__main__':
    dbg = '--dbg' in sys.argv
    out = [a for a in sys.argv[1:] if not a.startswith('--')]
    g = G(dbg=dbg, prof='--prof' in sys.argv, exp=next((a.split('=')[1] for a in sys.argv if a.startswith('--exp=')), ''))
    txt, n = g.build()
    path = out[0] if out else 'k.s'
    open(path, 'w').write(txt)
    if g.prof: json.dump(g.stamps, open(path + '.stamps', 'w'))
    print('wrote', path, 'nops inserted', n, 'lines', txt.count('\n'))
```
